```python
import torch

def _softmax(x, axis=-1):
    return torch.softmax(x, dim=axis)
def _gelu(x):
    return torch.nn.functional.gelu(x, approximate="tanh")
def _silu(x):
    return torch.nn.functional.silu(x)
def _sigmoid(x):
    return torch.sigmoid(x)
def _layernorm(x, axis=-1, eps=1e-5):
    m = x.mean(dim=axis, keepdim=True)
    v = x.var(dim=axis, keepdim=True, unbiased=False)
    return (x - m) / torch.sqrt(v + eps)
def _scatter_add(tgt, idx, src, axis=0):
    return tgt.clone().index_add_(axis, idx, src)
def _segment_sum(src, seg, n):
    out = torch.zeros((n,) + src.shape[1:], dtype=src.dtype)
    return out.index_add_(0, seg, src)
def _pad(x, pw):
    flat = tuple(v for pair in reversed(pw) for v in pair)
    return torch.nn.functional.pad(x, flat)

kernel_name = 'gated_mix__linear_attn_block__ssm_conv_s4d__prompt'

def setup_inputs():

    _w = (lambda a: (lambda t: t.to(torch.bfloat16) if t.is_floating_point() else t)(torch.as_tensor(a)))
    def _A_setup():
        B, S, D = 1, 2048, 512
        return {
            "x": _w((lambda *s: torch.randn(*s, dtype=torch.bfloat16) * 0.05)(B, S, D)),
            "wqkv": _w((lambda *s: torch.randn(*s, dtype=torch.bfloat16) * 0.8)(D, 3 * D)),
            "wo": _w((lambda *s: torch.randn(*s, dtype=torch.bfloat16) * 0.05)(D, D)),
        }
    _A_in = _A_setup()

    def _B_setup():
        Bsz, L, D, N = 1, 2048, 512, 128
        return {
            "u": _w((lambda *s: torch.randn(*s, dtype=torch.bfloat16) * 0.05)(Bsz, L, D)),
            "log_A_real": _w((lambda *s: torch.randn(*s, dtype=torch.bfloat16) * 6.4)(D, N) * 0.5),
            "A_imag": _w((lambda *s: torch.randn(*s, dtype=torch.bfloat16) * 0.05)(D, N) * 3.14),
            "C_real": _w((lambda *s: torch.randn(*s, dtype=torch.bfloat16) * 0.2)(D, N) / N ** 0.5),
            "C_imag": _w((lambda *s: torch.randn(*s, dtype=torch.bfloat16) * 0.2)(D, N) / N ** 0.5),
            "log_dt": _w((lambda *s: torch.randn(*s, dtype=torch.bfloat16) * 0.05)(D) * 0.5 - 4.0),
            "D_skip": _w((lambda *s: torch.randn(*s, dtype=torch.bfloat16) * 0.05)(D)),
        }
    _B_in = _B_setup()

    return {
        "A_x": _A_in["x"],
        "A_wqkv": _A_in["wqkv"],
        "A_wo": _A_in["wo"],
        "B_u": _B_in["u"],
        "B_log_A_real": _B_in["log_A_real"],
        "B_A_imag": _B_in["A_imag"],
        "B_C_real": _B_in["C_real"],
        "B_C_imag": _B_in["C_imag"],
        "B_log_dt": _B_in["log_dt"],
        "B_D_skip": _B_in["D_skip"],
        "gate_w": _w((lambda *s: torch.randn(*s, dtype=torch.bfloat16) * 0.05)(512) * 16.0),
    }

def reference(A_x, A_wqkv, A_wo, B_u, B_log_A_real, B_A_imag, B_C_real, B_C_imag, B_log_dt, B_D_skip, gate_w):
    def _A_ref(x, wqkv, wo):
        B, S, D = x.shape
        H = 32; Dh = D // H
        qkv = (lambda x, *d: x.permute(*d))((x @ wqkv).reshape(B, S, 3, H, Dh), 2, 0, 3, 1, 4)
        q, k, v = qkv[0], qkv[1], qkv[2]
        phi = lambda t: torch.where(t > 0, t + 1, torch.exp(t)) + 1e-6
        pq, pk = phi(q), phi(k)
        kv = torch.einsum("bhsd,bhse->bhde", pk, v)
        z = torch.einsum("bhsd->bhd", pk)
        num = torch.einsum("bhqd,bhde->bhqe", pq, kv)
        den = torch.einsum("bhqd,bhd->bhq", pq, z)[..., None] + 1e-6
        o = num / den
        return (lambda x, *d: x.permute(*d))(o, 0, 2, 1, 3).reshape(B, S, D) @ wo

    def _B_ref(u, log_A_real, A_imag, C_real, C_imag, log_dt, D_skip):
        L = u.shape[1]
        dt = torch.exp(log_dt)
        A = -torch.exp(log_A_real) + 1j * A_imag
        C = (C_real + 1j * C_imag) * dt[:, None]
        pos = (lambda x, dt: x.to(dt))(torch.arange(L), log_dt.dtype)
        P = torch.exp((A * dt[:, None])[:, :, None] * pos[None, None, :])
        K = 2.0 * torch.einsum("dn,dnl->dl", C, P).real
        L2 = 2 * L
        u_t = (lambda x, *d: x.permute(*d))(u, 0, 2, 1)
        Kf = (lambda x, *a, **k: torch.fft.rfft(x.float(), *a, **k))(K, L2)
        Uf = (lambda x, *a, **k: torch.fft.rfft(x.float(), *a, **k))(u_t, L2)
        y = (lambda x, *a, **k: torch.fft.irfft(x, *a, **k).to(torch.bfloat16))(Uf * Kf[None, :, :], L2)[:, :, :L]
        y = (lambda x, *d: x.permute(*d))(y, 0, 2, 1)
        return y + u * D_skip[None, None, :]

    x = A_x
    g = _sigmoid((x * gate_w).sum(-1, keepdims=True))
    a = _A_ref(x, A_wqkv, A_wo)
    b = _B_ref(x, B_log_A_real, B_A_imag, B_C_real, B_C_imag, B_log_dt, B_D_skip)
    return g * a + (1 - g) * b
```

```python
import re

TRANS = {"v_exp_f32","v_log_f32","v_rcp_f32","v_rsq_f32","v_sqrt_f32","v_sin_f32","v_cos_f32","v_rcp_iflag_f32"}
MFMA_PASSES = {
    "v_mfma_f32_32x32x16_bf16": 8, "v_mfma_f32_16x16x32_bf16": 4,
    "v_mfma_f32_32x32x16_f16": 8, "v_mfma_f32_16x16x32_f16": 4,
}

def parse_reg(tok):
    tok = tok.strip()
    tok = re.sub(r"^-", "", tok)
    m = re.match(r"^abs\((.*)\)$", tok)
    if m: tok = m.group(1)
    m = re.match(r"^\|(.*)\|$", tok)
    if m: tok = m.group(1)
    m = re.match(r"^([vsa])(\d+)$", tok)
    if m: return {(m.group(1), int(m.group(2)))}
    m = re.match(r"^([vsa])\[(\d+):(\d+)\]$", tok)
    if m: return {(m.group(1), i) for i in range(int(m.group(2)), int(m.group(3)) + 1)}
    if tok in ("vcc", "vcc_lo", "vcc_hi"): return {("vcc",)}
    if tok in ("exec", "exec_lo", "exec_hi"): return {("exec",)}
    if tok == "m0": return {("m0",)}
    return set()

class Ins:
    __slots__ = ("text","op","kind","wr","rd","mf_a","mf_b","mf_c","passes","ws","srd")
    pass

def split_ops(s):
    out, depth, cur = [], 0, ""
    for ch in s:
        if ch in "[(": depth += 1
        if ch in "])": depth -= 1
        if ch == "," and depth == 0:
            out.append(cur.strip()); cur = ""
        else:
            cur += ch
    if cur.strip(): out.append(cur.strip())
    return out

def analyze(text):
    t = text.split(";")[0].strip()
    parts = t.split(None, 1)
    op = parts[0]
    rest = parts[1] if len(parts) > 1 else ""
    ops = split_ops(rest)
    toks = []
    mods = ""
    for i, o in enumerate(ops):
        sp = o.split()
        toks.append(sp[0] if sp else "")
        if len(sp) > 1: mods += " " + " ".join(sp[1:])
    I = Ins(); I.text = text; I.op = op; I.wr = set(); I.rd = set(); I.mf_a = I.mf_b = I.mf_c = set(); I.passes = 0; I.ws = 1
    base = re.sub(r"_e(32|64)$", "", op)
    R = [parse_reg(x) for x in toks]
    if base.startswith("v_mfma"):
        I.kind = "mfma"; I.passes = MFMA_PASSES[base]
        I.wr = R[0]; I.mf_a = R[1]; I.mf_b = R[2]; I.mf_c = R[3]; I.rd = R[1] | R[2] | R[3]
    elif base.startswith("v_"):
        I.kind = "trans" if base in TRANS else "valu"
        if base.startswith("v_cmp"):
            I.wr = R[0]; I.rd = set().union(*R[1:])
        elif base in ("v_add_co_u32","v_sub_co_u32","v_subrev_co_u32","v_addc_co_u32","v_subb_co_u32","v_div_scale_f32","v_mad_u64_u32"):
            I.wr = R[0] | R[1]; I.rd = set().union(*R[2:])
        elif base in ("v_permlane32_swap_b32","v_permlane16_swap_b32","v_swap_b32"):
            I.wr = R[0] | R[1]; I.rd = R[0] | R[1]
        elif base in ("v_fmac_f32","v_pk_fmac_f16","v_dot2c_f32_bf16","v_writelane_b32"):
            I.wr = R[0]; I.rd = set().union(*R)
        elif base == "v_nop":
            pass
        else:
            I.wr = R[0]; I.rd = set().union(*R[1:]) if len(R) > 1 else set()
            if base == "v_cndmask_b32" and len(R) == 3: I.rd |= {("vcc",)}
    elif base.startswith("buffer_") or base.startswith("global_"):
        I.kind = "vmem"
        lds = " lds" in mods or "_lds_" in base
        if "load" in base and not lds:
            I.wr = R[0]; I.rd = set().union(*R[1:])
        elif "atomic" in base and ("sc0" in mods):
            if base.startswith("global_"):
                I.wr = R[0]; I.rd = set().union(*R[1:])
            else:
                I.wr = R[0]; I.rd = set().union(*R)
        else:
            I.rd = set().union(*R)
        if lds: I.rd |= {("m0",)}
    elif base.startswith("ds_"):
        I.kind = "ds"
        if "read" in base or "bpermute" in base or "permute" in base or "swizzle" in base or "_rtn" in base:
            I.wr = R[0]; I.rd = set().union(*R[1:])
            if "d16" in base: I.rd |= R[0]
        else:
            I.rd = set().union(*R)
    elif base.startswith("s_"):
        if base == "s_nop":
            I.kind = "nop"; I.ws = int(toks[0], 0) + 1
        elif base.startswith(("s_load","s_buffer_load","s_memtime","s_memrealtime","s_atomic")):
            I.kind = "smem"; I.wr = R[0]; I.rd = set().union(*R[1:]) if len(R) > 1 else set()
        elif base.startswith(("s_waitcnt","s_barrier","s_endpgm","s_branch","s_cbranch","s_setprio","s_sleep","s_cmp","s_bitcmp")):
            I.kind = "sctl"; I.rd = set().union(*R) if R else set()
        else:
            I.kind = "salu"; I.wr = R[0] if R else set(); I.rd = set().union(*R[1:]) if len(R) > 1 else set()
            if "saveexec" in base: I.wr |= {("exec",)}
    else:
        raise ValueError("unknown instr: " + text)
    return I

def vonly(s): return {r for r in s if r[0] in ("v","a")}
def sonly(s): return {r for r in s if r[0] in ("s","vcc")}

def need(p, c):
    n = 0
    pv = p.kind in ("valu","trans")
    cv = c.kind in ("valu","trans")
    cb = re.sub(r"_e(32|64)$", "", c.op)
    if pv:
        wv = vonly(p.wr); ws = sonly(p.wr)
        if c.kind == "mfma" and wv & c.rd: n = max(n, 2)
        if p.kind == "trans" and cv and (wv & (c.rd | c.wr)): n = max(n, 1)
        if cb in ("v_readfirstlane_b32","v_readlane_b32") and wv & c.rd: n = max(n, 1)
        if cb.startswith("v_permlane") and wv & c.rd: n = max(n, 2)
        if "dpp" in c.text or "row_" in c.text or "quad_perm" in c.text:
            if wv & c.rd: n = max(n, 2)
        if ws:
            if cv and ws & c.rd: n = max(n, 2)
            if cb in ("v_readlane_b32","v_writelane_b32") and ws & c.rd: n = max(n, 4)
            if c.kind == "vmem" and ws & c.rd: n = max(n, 5)
            if c.kind in ("salu","sctl","smem") and ws & c.rd: n = max(n, 1)
            if cb.startswith("s_cbranch_vcc") and ("vcc",) in ws: n = max(n, 5)
        if ("op_sel" in p.text and not p.op.startswith("v_pk")) or "sdwa" in p.text or "dst_sel" in p.text:
            if cv and wv & (c.rd | c.wr): n = max(n, 1)
    if p.kind == "mfma":
        P = p.passes
        far = {4: 8, 8: 12}[P]; part = {4: 6, 8: 10}[P]; war = {4: 3, 8: 7}[P]
        if c.kind == "mfma":
            if p.wr & (c.mf_a | c.mf_b): n = max(n, far)
            if p.wr & c.mf_c:
                if not (p.wr == c.mf_c and p.passes == c.passes): n = max(n, part)
            elif p.wr & c.wr:
                n = max(n, part)
        else:
            if p.wr & (c.rd | c.wr): n = max(n, far)
            if cv and (p.mf_c & c.wr): n = max(n, war)
    if p.kind == "salu" and ("m0",) in p.wr and ("m0",) in c.rd and c.kind in ("vmem","ds"): n = max(n, 1)
    if p.kind == "vmem" and "store" in p.op and ("x4" in p.op or "x3" in p.op):
        if vonly(p.rd) & vonly(c.wr): n = max(n, 2 if cv else 1)
    return n

class Asm:
    def __init__(self):
        self.lines = []
        self.hist = []
        self.nops = 0
        self.count = 0
    def raw(self, s): self.lines.append(s)
    def comment(self, s): self.lines.append("    ; " + s)
    def label(self, name, flush=True):
        if flush: self.flush()
        self.lines.append(name + ":")
    def flush(self):
        d = 0; worst = 0
        for p in reversed(self.hist):
            w = 0
            if p.kind == "mfma": w = {4: 8, 8: 12}[p.passes]
            elif p.kind in ("valu","trans"): w = 5 if sonly(p.wr) else 2
            elif p.kind == "vmem" and "store" in p.op: w = 2
            elif p.kind == "salu" and ("m0",) in p.wr: w = 1
            worst = max(worst, w - d)
            d += p.ws
            if d > 20: break
        self._nop(worst)
        self.hist = []
    def _nop(self, n):
        while n > 0:
            k = min(n, 16)
            t = f"s_nop {k-1}"
            self.lines.append("    " + t); self.hist.append(analyze(t)); self.nops += k; n -= k
    def I(self, text):
        c = analyze(text)
        d = 0; worst = 0
        for p in reversed(self.hist):
            worst = max(worst, need(p, c) - d)
            d += p.ws
            if d > 20: break
        self._nop(worst)
        if c.op.startswith(("s_branch","s_cbranch")):
            pass
        self.lines.append("    " + text)
        self.hist.append(c); self.count += 1
        if len(self.hist) > 40: self.hist = self.hist[-30:]
    def branch(self, text):
        self.flush(); self.I(text)
    def text(self): return "\n".join(self.lines) + "\n"

def v(n, k=1): return f"v{n}" if k == 1 else f"v[{n}:{n+k-1}]"
def s(n, k=1): return f"s{n}" if k == 1 else f"s[{n}:{n+k-1}]"
def a(n, k=1): return f"a{n}" if k == 1 else f"a[{n}:{n+k-1}]"
```

```python
from asmlib import *
from k1b import *
import k1b

SLOT = 40960
GWOFF = 3 * SLOT
RED = GWOFF + 1024
REDSZ = 4352

def phi16(A, acc, out, tmp, sL, sEPS):
    I = A.I
    for p in range(8):
        r = acc + 2*p
        t = tmp + 2*(p & 1)
        I(f"v_pk_mul_f32 {v(t,2)}, {v(r,2)}, {s(sL,2)}")
        I(f"v_max_f32 {v(r)}, {s(sEPS)}, {v(r)}")
        I(f"v_exp_f32 {v(t)}, {v(t)} clamp")
        I(f"v_exp_f32 {v(t+1)}, {v(t+1)} clamp")
        I(f"v_max_f32 {v(r+1)}, {s(sEPS)}, {v(r+1)}")
        I(f"v_pk_add_f32 {v(r,2)}, {v(r,2)}, {v(t,2)}")
        I(f"v_cvt_pk_bf16_f32 {v(out+p)}, {v(r)}, {v(r+1)}")

def gen_A(A):
    I = A.I
    sRB, sHQ, sROT, sT, sT2, sLW = 44, 45, 46, 47, 48, 49
    sSRX, sSRW, sSRA = 52, 56, 60
    sL, sEPS = 64, 66
    sSLOT, sCH, sCNT = 67, 68, 69
    sCX, sCW = 8, 9
    sPQ = 70
    I(f"s_sub_u32 {s(sT)}, {s(S_J)}, 16")
    I(f"s_lshr_b32 {s(sRB)}, {s(sT)}, 3")
    I(f"s_and_b32 {s(sHQ)}, {s(sT)}, 7")
    I(f"s_lshl_b32 {s(sROT)}, {s(sRB)}, 2")
    I(f"s_add_u32 {s(sROT)}, {s(sROT)}, {s(sHQ)}")
    I(f"s_and_b32 {s(sROT)}, {s(sROT)}, 7")
    I(f"s_lshl_b32 {s(sT)}, {s(S_XCD)}, 1")
    I(f"s_add_u32 {s(sRB)}, {s(sRB)}, {s(sT)}")
    I("v_and_b32 v1, 63, v0")
    I(f"s_cmp_ge_u32 {s(S_WV)}, 4")
    A.branch("s_cbranch_scc1 A_loader")
    sRH, sHP = 50, 51
    I(f"s_lshr_b32 {s(sRH)}, {s(S_WV)}, 1")
    I(f"s_and_b32 {s(sHP)}, {s(S_WV)}, 1")
    vXA = 4
    vWA = 8
    vT = 10
    FR = [16, 36]
    ACC = 64
    Q = lambda rt: ACC + 16*rt
    K = lambda rt: ACC + 32 + 16*rt
    V = lambda rt: ACC + 64 + 16*rt
    I(f"v_and_b32 {v(vT)}, 31, v1")
    I(f"v_lshrrev_b32 {v(vT+1)}, 5, v1")
    I(f"v_bfe_u32 {v(vT+2)}, {v(vT)}, 1, 3")
    I(f"v_xor_b32 {v(vT+2)}, {v(vT+2)}, {v(vT+1)}")
    I(f"s_lshl_b32 {s(sT)}, {s(sRH)}, 13")
    I(f"v_lshl_add_u32 {v(vT+3)}, {v(vT)}, 7, {s(sT)}")
    for ks in range(4):
        I(f"v_xor_b32 {v(vT+4)}, {2*ks}, {v(vT+2)}")
        I(f"v_lshl_add_u32 {v(vXA+ks)}, {v(vT+4)}, 4, {v(vT+3)}")
    I(f"v_bfe_u32 {v(vT)}, v1, 2, 2")
    I(f"v_lshl_add_u32 {v(vT+2)}, {v(vT+1)}, 3, {v(vT)}")
    I(f"v_lshlrev_b32 {v(vT+2)}, 7, {v(vT+2)}")
    I(f"v_bfe_u32 {v(vT+3)}, v1, 4, 1")
    I(f"v_bfe_u32 {v(vT+4)}, v1, 1, 1")
    I(f"v_lshl_add_u32 {v(vT+3)}, {v(vT+3)}, 1, {v(vT+4)}")
    I(f"v_bfe_u32 {v(vT+4)}, v1, 3, 1")
    I(f"v_xor_b32 {v(vT+4)}, {s(sHP)}, {v(vT+4)}")
    I(f"v_lshl_add_u32 {v(vT+3)}, {v(vT+4)}, 2, {v(vT+3)}")
    I(f"v_lshl_add_u32 {v(vT+2)}, {v(vT+3)}, 4, {v(vT+2)}")
    I(f"v_and_b32 {v(vT+4)}, 1, v1")
    I(f"v_lshl_add_u32 {v(vT+2)}, {v(vT+4)}, 3, {v(vT+2)}")
    I(f"v_add_u32 {v(vWA)}, 16384, {v(vT+2)}")
    I(f"s_mov_b32 {s(sL)}, 0x{f32bits(LOG2E):08x}")
    I(f"s_mov_b32 {s(sL+1)}, 0x{f32bits(LOG2E):08x}")
    I(f"s_mov_b32 {s(sEPS)}, 0x{f32bits(1e-6):08x}")
    I("s_waitcnt lgkmcnt(0)")
    stamp(A, 1)
    I(f"s_mul_i32 {s(sT)}, {s(sHQ)}, {REDSZ}")
    I(f"s_add_u32 {s(sT)}, {s(sT)}, {WS_ACC}")
    I(f"s_add_u32 {s(sSRA)}, {s(S_WS)}, {s(sT)}")
    I(f"s_addc_u32 {s(sSRA+1)}, {s(S_WS+1)}, 0")
    I(f"s_mov_b32 {s(sSRA+2)}, {REDSZ}")
    I(f"s_mov_b32 {s(sSRA+3)}, 0x00020000")
    I(f"s_or_b32 {s(sT)}, {s(sRB)}, {s(S_WV)}")
    I(f"s_cmp_eq_u32 {s(sT)}, 0")
    A.branch("s_cbranch_scc0 A_nozero")
    for r in range(4): I(f"v_mov_b32 {v(16+r)}, 0")
    I(f"v_lshlrev_b32 {v(vT)}, 4, v1")
    for k in range(4):
        I(f"buffer_store_dwordx4 v[16:19], {v(vT)}, {s(sSRA,4)}, 0 offen offset:{1024*k} sc0 sc1")
    I(f"v_add_u32 {v(vT+1)}, 4096, {v(vT)}")
    I(f"buffer_store_dwordx4 v[16:19], {v(vT+1)}, {s(sSRA,4)}, 0 offen sc0 sc1")
    I("s_waitcnt vmcnt(0)")
    I(f"s_lshl_b32 {s(sT)}, {s(sHQ)}, 2")
    I(f"v_mov_b32 {v(vT)}, {s(sT)}")
    I(f"v_mov_b32 {v(vT+1)}, 1")
    I(f"global_store_dword {v(vT)}, {v(vT+1)}, {s(S_DBG,2)} sc0 sc1")
    A.label("A_nozero")
    for r in range(64): I(f"v_mov_b32 {v(ACC+r)}, {s(sEPS)}")
    for r in range(64, 96): I(f"v_mov_b32 {v(ACC+r)}, 0")
    I(f"s_mov_b32 {s(sCNT)}, 0")
    I(f"s_mov_b32 {s(sSLOT)}, 0")
    def rlist(ks, st):
        f = FR[st]
        return [
            f"ds_read_b128 {v(f,4)}, {v(vXA+ks)}",
            f"ds_read_b64_tr_b16 {v(f+12,2)}, {v(vWA)} offset:{8192+2048*ks}",
            f"ds_read_b64_tr_b16 {v(f+14,2)}, {v(vWA)} offset:{8192+2048*ks+512}",
            f"ds_read_b64_tr_b16 {v(f+16,2)}, {v(vWA)} offset:{16384+2048*ks}",
            f"ds_read_b64_tr_b16 {v(f+18,2)}, {v(vWA)} offset:{16384+2048*ks+512}",
            f"ds_read_b128 {v(f+4,4)}, {v(vXA+ks)} offset:4096",
            f"ds_read_b64_tr_b16 {v(f+8,2)}, {v(vWA)} offset:{2048*ks}",
            f"ds_read_b64_tr_b16 {v(f+10,2)}, {v(vWA)} offset:{2048*ks+512}"]
    def kstep(st, nxt, waits):
        f = FR[st]
        X = lambda rt: v(f+4*rt,4)
        seq = [(K(0), X(0), v(f+12,4)), (V(0), X(0), v(f+16,4)), (K(1), X(1), v(f+12,4)), (V(1), X(1), v(f+16,4)),
               (Q(0), v(f+8,4), X(0)), (Q(1), v(f+8,4), X(1))]
        for n, (d, a_, b_) in enumerate(seq):
            if waits and n in waits: I(f"s_waitcnt lgkmcnt({waits[n]})")
            I(f"v_mfma_f32_32x32x16_bf16 {v(d,16)}, {a_}, {b_}, {v(d,16)}")
            if n < 4:
                I(nxt[2*n]); I(nxt[2*n+1])
    I(f"s_mov_b32 s6, {SLOT}")
    I("s_barrier")
    stamp(A, 2)
    for r in rlist(0, 0): I(r)
    A.label("A_loop")
    for ks in range(3):
        kstep(ks & 1, rlist(ks+1, (ks+1) & 1), {0: 5, 1: 5, 2: 6, 4: 8})
    I(f"s_add_u32 {s(sSLOT)}, {s(sSLOT)}, {SLOT}")
    I(f"s_cmp_eq_u32 {s(sSLOT)}, {3*SLOT}")
    I(f"s_cselect_b32 {s(sT)}, {-2*SLOT & 0xffffffff}, s6")
    I(f"s_cselect_b32 {s(sSLOT)}, 0, {s(sSLOT)}")
    for r in range(5): I(f"v_add_u32 {v(vXA+r)}, {s(sT)}, {v(vXA+r)}")
    I(f"s_add_u32 {s(sCNT)}, {s(sCNT)}, 1")
    I(f"s_cmp_lt_u32 {s(sCNT)}, 8")
    I("s_waitcnt lgkmcnt(0)")
    I("s_barrier")
    kstep(1, rlist(0, 0), None)
    I("s_cbranch_scc1 A_loop")
    A.hist = A.hist
    stamp(A, 3)
    I(f"s_lshl_b32 {s(sT)}, {s(sHQ)}, 2")
    I(f"v_mov_b32 v9, {s(sT)}")
    I(f"global_load_dword v3, v9, {s(S_DBG,2)} sc0 sc1")
    I("s_waitcnt lgkmcnt(0)")
    PKK = 16
    PVV = 32
    vONE = 48
    for rt in range(2): phi16(A, K(rt), PKK+8*rt, 56, sL, sEPS)
    for rt in range(2):
        for p in range(8):
            I(f"v_cvt_pk_bf16_f32 {v(PVV+8*rt+p)}, {v(V(rt)+2*p)}, {v(V(rt)+2*p+1)}")
    for r in range(4): I(f"v_mov_b32 {v(vONE+r)}, 0x3f803f80")
    D = K(0); Z = K(1)
    for n in range(4):
        I(f"v_mfma_f32_32x32x16_bf16 {v(D,16)}, {v(PKK+4*n,4)}, {v(PVV+4*n,4)}, {'0' if n == 0 else v(D,16)}")
        I(f"v_mfma_f32_32x32x16_bf16 {v(Z,16)}, {v(PKK+4*n,4)}, {v(vONE,4)}, {'0' if n == 0 else v(Z,16)}")
    PQ0 = V(0)
    phi16(A, Q(0), PQ0, 56, sL, sEPS)
    I(f"s_lshl_b32 {s(sT)}, {s(sRB)}, 2")
    I(f"s_lshl_b32 {s(sT2)}, {s(sRH)}, 1")
    I(f"s_add_u32 {s(sT)}, {s(sT)}, {s(sT2)}")
    I(f"s_lshl_b32 {s(sT)}, {s(sT)}, 5")
    I(f"s_lshl_b32 {s(sT2)}, {s(sHQ)}, 2")
    I(f"s_add_u32 {s(sT)}, {s(sT)}, {s(sT2)}")
    I(f"s_lshl_b32 {s(sT2)}, {s(sHP)}, 1")
    I(f"s_add_u32 {s(sT)}, {s(sT)}, {s(sT2)}")
    I(f"s_lshl_b32 {s(sT)}, {s(sT)}, 10")
    I(f"s_add_u32 {s(sPQ)}, {s(S_WS)}, {s(sT)}")
    I(f"s_addc_u32 {s(sPQ+1)}, {s(S_WS+1)}, 0")
    I(f"v_lshlrev_b32 v2, 4, v1")
    I(f"global_store_dwordx4 v2, {v(PQ0,4)}, {s(sPQ,2)}")
    I(f"global_store_dwordx4 v2, {v(PQ0+4,4)}, {s(sPQ,2)} offset:1024")
    I(f"v_bfe_u32 {v(vT)}, v1, 4, 1")
    I(f"v_cmp_eq_u32 vcc, 1, {v(vT)}")
    for i in range(8):
        I(f"v_cndmask_b32 {v(16+i)}, {v(D+i)}, {v(D+8+i)}, vcc")
    for i in range(8):
        I(f"v_cndmask_b32 {v(24+i)}, {v(Z+i)}, {v(Z+8+i)}, vcc")
    I(f"v_lshrrev_b32 {v(vT+1)}, 5, v1")
    I(f"v_lshl_add_u32 {v(vT+1)}, {v(vT)}, 1, {v(vT+1)}")
    I(f"s_lshl_b32 {s(sT)}, {s(sHP)}, 2")
    I(f"v_add_u32 {v(vT+1)}, {s(sT)}, {v(vT+1)}")
    I(f"v_and_b32 {v(vT+2)}, 15, v1")
    I(f"v_lshl_add_u32 {v(vT+3)}, {v(vT+1)}, 4, {v(vT+2)}")
    I(f"s_mul_i32 {s(sT)}, {s(sRH)}, {REDSZ}")
    I(f"s_add_u32 {s(sT)}, {s(sT)}, {RED}")
    I(f"v_lshl_add_u32 {v(vT+3)}, {v(vT+3)}, 5, {s(sT)}")
    I(f"ds_write_b128 {v(vT+3)}, v[16:19]")
    I(f"ds_write_b128 {v(vT+3)}, v[20:23] offset:16")
    I(f"v_lshl_add_u32 {v(vT+4)}, {v(vT+1)}, 5, {s(sT)}")
    I(f"ds_write_b128 {v(vT+4)}, v[24:27] offset:4096")
    I(f"ds_write_b128 {v(vT+4)}, v[28:31] offset:4112")
    I("s_waitcnt vmcnt(2)")
    A.label("A_poll")
    I("v_readfirstlane_b32 s6, v3")
    I("s_cmp_lg_u32 s6, 0")
    A.branch("s_cbranch_scc1 A_polled")
    I("s_sleep 2")
    I(f"global_load_dword v3, v9, {s(S_DBG,2)} sc0 sc1")
    I("s_waitcnt vmcnt(0)")
    A.branch("s_branch A_poll")
    A.label("A_polled")
    I("s_waitcnt lgkmcnt(0)")
    I("s_barrier")
    PQ1 = V(1)
    phi16(A, Q(1), PQ1, 56, sL, sEPS)
    I(f"v_add_u32 v2, 0x8000, v2")
    I(f"global_store_dwordx4 v2, {v(PQ1,4)}, {s(sPQ,2)}")
    I(f"global_store_dwordx4 v2, {v(PQ1+4,4)}, {s(sPQ,2)} offset:1024")
    stamp_out(A, 4)
    I("s_endpgm")

    A.label("A_loader")
    I(f"s_sub_u32 {s(sLW)}, {s(S_WV)}, 4")
    vX0, vX1, vW = 4, 5, 6
    vT = 10
    I(f"v_lshrrev_b32 {v(vT)}, 3, v1")
    I(f"v_and_b32 {v(vT+1)}, 7, v1")
    I(f"v_lshrrev_b32 {v(vT+2)}, 4, v1")
    I(f"v_xor_b32 {v(vT+3)}, {v(vT+1)}, {v(vT+2)}")
    I(f"v_lshlrev_b32 {v(vT+3)}, 4, {v(vT+3)}")
    I(f"v_lshl_add_u32 {v(vX0)}, {v(vT)}, 10, {v(vT+3)}")
    I(f"v_xor_b32 {v(vX1)}, 64, {v(vX0)}")
    I(f"v_and_b32 {v(vT+2)}, 1, {v(vT+2)}")
    I(f"v_lshlrev_b32 {v(vT+2)}, 2, {v(vT+2)}")
    I(f"v_xor_b32 {v(vT+3)}, {v(vT+1)}, {v(vT+2)}")
    I(f"v_lshlrev_b32 {v(vT+3)}, 4, {v(vT+3)}")
    I(f"v_mul_u32_u24 {v(vW)}, 3072, {v(vT)}")
    I(f"v_add_u32 {v(vW)}, {v(vW)}, {v(vT+3)}")
    I(f"s_lshl_b32 {s(sCX)}, {s(sRB)}, 17")
    I(f"s_lshl_b32 {s(sT)}, {s(sLW)}, 15")
    I(f"s_add_u32 {s(sCX)}, {s(sCX)}, {s(sT)}")
    I(f"s_mul_i32 {s(sT2)}, {s(sLW)}, 6")
    for i in range(6):
        I(f"s_add_u32 {s(sT)}, {s(sT2)}, {i}")
        I(f"s_and_b32 s6, {s(sT)}, 7")
        I(f"s_mul_i32 s6, s6, {8*3072}")
        I(f"s_lshr_b32 {s(sT)}, {s(sT)}, 3")
        I(f"s_lshl_b32 {s(sT)}, {s(sT)}, 10")
        I(f"s_add_u32 s6, s6, {s(sT)}")
        I(f"s_lshl_b32 {s(sT)}, {s(sHQ)}, 7")
        I(f"s_add_u32 {s(sCW+i)}, s6, {s(sT)}")
    sMX, sMW = 50, 51
    I(f"s_lshl_b32 {s(sMX)}, {s(sLW)}, 12")
    I(f"s_mul_i32 {s(sMW)}, {s(sLW)}, 6144")
    I(f"s_add_u32 {s(sMW)}, {s(sMW)}, 16384")
    I("s_waitcnt lgkmcnt(0)")
    stamp(A, 1)
    I(f"s_mov_b32 {s(sSRX)}, {s(S_X)}")
    I(f"s_mov_b32 {s(sSRX+1)}, {s(S_X+1)}")
    I(f"s_mov_b32 {s(sSRX+2)}, 0x200000")
    I(f"s_mov_b32 {s(sSRX+3)}, 0x00020000")
    I(f"s_mov_b32 {s(sSRW)}, {s(S_WQKV)}")
    I(f"s_mov_b32 {s(sSRW+1)}, {s(S_WQKV+1)}")
    I(f"s_mov_b32 {s(sSRW+2)}, 0x180000")
    I(f"s_mov_b32 {s(sSRW+3)}, 0x00020000")
    sSRG = 72+24
    I(f"s_mov_b32 {s(sSRA)}, {s(S_GW)}")
    I(f"s_mov_b32 {s(sSRA+1)}, {s(S_GW+1)}")
    I(f"s_mov_b32 {s(sSRA+2)}, 1024")
    I(f"s_mov_b32 {s(sSRA+3)}, 0x00020000")
    I(f"v_lshlrev_b32 {v(vT)}, 4, v1")
    I(f"s_mov_b32 m0, {GWOFF}")
    I(f"buffer_load_dwordx4 {v(vT)}, {s(sSRA,4)}, 0 offen lds")
    I(f"s_mov_b32 {s(sSLOT)}, 0")
    I(f"s_mov_b32 {s(sCH)}, {s(sROT)}")
    def issue():
        I(f"s_lshl_b32 {s(sT)}, {s(sCH)}, 7")
        I(f"s_add_u32 {s(sT)}, {s(sT)}, {s(sCX)}")
        I(f"s_add_u32 m0, {s(sSLOT)}, {s(sMX)}")
        I(f"s_mul_i32 {s(sT2)}, {s(sCH)}, {64*3072}")
        for i in range(4):
            I(f"buffer_load_dwordx4 {v(vX1 if i & 1 else vX0)}, {s(sSRX,4)}, {s(sT)} offen lds")
            if i < 3:
                I(f"s_add_u32 m0, m0, 1024")
                I(f"s_add_u32 {s(sT)}, {s(sT)}, 8192")
        I(f"s_add_u32 m0, {s(sSLOT)}, {s(sMW)}")
        for i in range(6):
            I(f"s_add_u32 {s(sT)}, {s(sT2)}, {s(sCW+i)}")
            I(f"buffer_load_dwordx4 {v(vW)}, {s(sSRW,4)}, {s(sT)} offen lds")
            if i < 5: I(f"s_add_u32 m0, m0, 1024")
        I(f"s_add_u32 {s(sCH)}, {s(sCH)}, 1")
        I(f"s_and_b32 {s(sCH)}, {s(sCH)}, 7")
        I(f"s_add_u32 {s(sSLOT)}, {s(sSLOT)}, {SLOT}")
        I(f"s_cmp_eq_u32 {s(sSLOT)}, {3*SLOT}")
        I(f"s_cselect_b32 {s(sSLOT)}, 0, {s(sSLOT)}")
    I(f"s_mov_b32 {s(sCNT)}, 0")
    A.label("A_lpro")
    issue()
    I(f"s_add_u32 {s(sCNT)}, {s(sCNT)}, 1")
    I(f"s_cmp_lt_u32 {s(sCNT)}, 3")
    I("s_cbranch_scc1 A_lpro")
    vGX, vGW, vGACC = 16, 18, 20
    vGF = 24
    sGS, sGC = 15, 7
    I(f"v_and_b32 {v(vT)}, 15, v1")
    I(f"s_lshl_b32 {s(sT)}, {s(sHQ)}, 4")
    I(f"v_add_u32 {v(vT)}, {s(sT)}, {v(vT)}")
    I(f"v_lshrrev_b32 {v(vT+1)}, 4, v1")
    I(f"v_bfe_u32 {v(vT+2)}, {v(vT)}, 1, 3")
    I(f"v_xor_b32 {v(vT+2)}, {v(vT+2)}, {v(vT+1)}")
    I(f"v_lshlrev_b32 {v(vT+2)}, 4, {v(vT+2)}")
    I(f"v_lshl_add_u32 {v(vGX)}, {v(vT)}, 7, {v(vT+2)}")
    I(f"v_xor_b32 {v(vGX+1)}, 64, {v(vGX)}")
    I(f"v_lshlrev_b32 {v(vGW)}, 4, {v(vT+1)}")
    for r in range(4): I(f"v_mov_b32 {v(vGACC+r)}, 0")
    I(f"s_mov_b32 {s(sGS)}, 0")
    I(f"s_mov_b32 {s(sGC)}, {s(sROT)}")
    def gate():
        lbl = f"A_gskip{gate.n}"; gate.n += 1
        I(f"s_cmp_eq_u32 {s(sLW)}, 0")
        A.branch(f"s_cbranch_scc0 {lbl}")
        I(f"v_add_u32 {v(vT)}, {s(sGS)}, {v(vGX)}")
        I(f"v_add_u32 {v(vT+1)}, {s(sGS)}, {v(vGX+1)}")
        I(f"s_lshl_b32 s6, {s(sGC)}, 7")
        I(f"s_add_u32 s6, s6, {GWOFF}")
        I(f"v_add_u32 {v(vT+2)}, s6, {v(vGW)}")
        I(f"ds_read_b128 {v(vGF,4)}, {v(vT)}")
        I(f"ds_read_b128 {v(vGF+4,4)}, {v(vT+2)}")
        I(f"ds_read_b128 {v(vGF+8,4)}, {v(vT+1)}")
        I(f"ds_read_b128 {v(vGF+12,4)}, {v(vT+2)} offset:64")
        I(f"s_add_u32 {s(sGC)}, {s(sGC)}, 1")
        I(f"s_and_b32 {s(sGC)}, {s(sGC)}, 7")
        I(f"s_add_u32 {s(sGS)}, {s(sGS)}, {SLOT}")
        I(f"s_cmp_eq_u32 {s(sGS)}, {3*SLOT}")
        I(f"s_cselect_b32 {s(sGS)}, 0, {s(sGS)}")
        I("s_waitcnt lgkmcnt(0)")
        I(f"v_mfma_f32_16x16x32_bf16 {v(vGACC,4)}, {v(vGF,4)}, {v(vGF+4,4)}, {v(vGACC,4)}")
        I(f"v_mfma_f32_16x16x32_bf16 {v(vGACC,4)}, {v(vGF+8,4)}, {v(vGF+12,4)}, {v(vGACC,4)}")
        A.label(lbl)
    gate.n = 0
    I("s_waitcnt vmcnt(20)")
    I("s_barrier")
    gate()
    I(f"s_mov_b32 {s(sCNT)}, 1")
    A.label("A_lloop")
    I("s_waitcnt vmcnt(10)")
    I("s_barrier")
    issue()
    gate()
    I(f"s_add_u32 {s(sCNT)}, {s(sCNT)}, 1")
    I(f"s_cmp_lt_u32 {s(sCNT)}, 6")
    I("s_cbranch_scc1 A_lloop")
    I("s_waitcnt vmcnt(10)")
    I("s_barrier")
    gate()
    I("s_waitcnt vmcnt(0)")
    I("s_barrier")
    stamp(A, 2)
    gate()
    I("s_barrier")
    I(f"s_cmp_eq_u32 {s(sLW)}, 0")
    A.branch("s_cbranch_scc0 A_gdone")
    I(f"v_cvt_pk_bf16_f32 {v(vT)}, {v(vGACC)}, {v(vGACC+1)}")
    I(f"v_cvt_pk_bf16_f32 {v(vT+1)}, {v(vGACC+2)}, {v(vGACC+3)}")
    I(f"v_lshlrev_b32 {v(vGACC)}, 16, {v(vT)}")
    I(f"v_and_b32 {v(vGACC+1)}, 0xffff0000, {v(vT)}")
    I(f"v_lshlrev_b32 {v(vGACC+2)}, 16, {v(vT+1)}")
    I(f"v_and_b32 {v(vGACC+3)}, 0xffff0000, {v(vT+1)}")
    for r in range(4): I(f"v_mul_f32 {v(vGACC+r)}, 0x{f32bits(-LOG2E):08x}, {v(vGACC+r)}")
    for r in range(4): I(f"v_exp_f32 {v(vGACC+r)}, {v(vGACC+r)}")
    for r in range(4): I(f"v_add_f32 {v(vGACC+r)}, 1.0, {v(vGACC+r)}")
    for r in range(4): I(f"v_rcp_f32 {v(vGACC+r)}, {v(vGACC+r)}")
    I(f"v_cvt_pk_bf16_f32 {v(vT)}, {v(vGACC)}, {v(vGACC+1)}")
    I(f"v_cvt_pk_bf16_f32 {v(vT+1)}, {v(vGACC+2)}, {v(vGACC+3)}")
    I(f"v_lshlrev_b32 {v(vGACC)}, 16, {v(vT)}")
    I(f"v_and_b32 {v(vGACC+1)}, 0xffff0000, {v(vT)}")
    I(f"v_lshlrev_b32 {v(vGACC+2)}, 16, {v(vT+1)}")
    I(f"v_and_b32 {v(vGACC+3)}, 0xffff0000, {v(vT+1)}")
    I(f"s_lshl_b32 {s(sT)}, {s(sRB)}, 9")
    I(f"s_lshl_b32 {s(sT2)}, {s(sHQ)}, 6")
    I(f"s_add_u32 {s(sT)}, {s(sT)}, {s(sT2)}")
    I(f"s_add_u32 {s(sT)}, {s(sT)}, {WS_G}")
    I(f"v_add_u32 {v(vT+2)}, {s(sT)}, {v(vGW)}")
    I(f"global_store_dwordx4 {v(vT+2)}, {v(vGACC,4)}, {s(S_WS,2)}")
    A.label("A_gdone")
    I(f"s_mul_i32 {s(sT)}, {s(sHQ)}, {REDSZ}")
    I(f"s_add_u32 {s(sT)}, {s(sT)}, {WS_ACC}")
    I(f"s_add_u32 {s(sSRA)}, {s(S_WS)}, {s(sT)}")
    I(f"s_addc_u32 {s(sSRA+1)}, {s(S_WS+1)}, 0")
    I(f"s_mov_b32 {s(sSRA+2)}, {REDSZ}")
    I(f"s_mov_b32 {s(sSRA+3)}, 0x00020000")
    I(f"v_subrev_u32 {v(vT)}, 256, v0")
    I(f"v_lshlrev_b32 {v(vT)}, 2, {v(vT)}")
    I(f"v_add_u32 {v(vT+1)}, {RED}, {v(vT)}")
    I("s_barrier")
    stamp(A, 3)
    for k in range(5):
        I(f"ds_read_b32 {v(24+2*k)}, {v(vT+1)} offset:{1024*k}")
        I(f"ds_read_b32 {v(25+2*k)}, {v(vT+1)} offset:{1024*k+REDSZ}")
    for k in range(5):
        I(f"s_waitcnt lgkmcnt({8-2*k})")
        I(f"v_add_f32 {v(24+2*k)}, {v(24+2*k)}, {v(25+2*k)}")
        if k < 4:
            I(f"buffer_atomic_add_f32 {v(24+2*k)}, {v(vT)}, {s(sSRA,4)}, 0 offen offset:{1024*k}")
        else:
            I(f"v_add_u32 {v(vT)}, 4096, {v(vT)}")
            I(f"buffer_atomic_add_f32 {v(24+2*k)}, {v(vT)}, {s(sSRA,4)}, 0 offen")
    stamp_out(A, 4)
    I("s_endpgm")
```

```python
from asmlib import *
import struct
def f32bits(x): return struct.unpack("<I", struct.pack("<f", x))[0]
LOG2E = 1.4426950408889634
LOG2E_HI = struct.unpack("<f", struct.pack("<f", LOG2E))[0]
LOG2E_LO = LOG2E - LOG2E_HI
LN2 = 0.6931471805599453
INV2PI = 0.15915494309189535

WS_PQ = 0x000000
WS_BT = 0x200000
WS_ACC = 0x400000
WS_G = 0x410000

S_X, S_WQKV, S_WO, S_U, S_LAR, S_AIM, S_CR, S_CI = 16, 18, 20, 22, 24, 26, 28, 30
S_LDT, S_DSK, S_GW, S_OUT, S_DBG, S_WS = 32, 34, 36, 38, 40, 42
S_XCD, S_J, S_WV = 3, 4, 5

USZ = 4608
STG0 = 4 * USZ
RS = 528
STGSZ = 63 * RS
R1OFF = 4160
XCHOFF = 8320

def nib(tab):
    x = 0
    for r, t in enumerate(tab): x |= t << (4 * r)
    return x & 0xffffffff, x >> 32
T0 = list(range(16))
T1 = [0,0,1,2,2,2,3,4,4,4,5,6,6,6,7,8]
T2 = [0,0,0,1,1,1,2,2,2,2,2,3,3,3,4,4]
T3 = [0]*5 + [1]*7 + [2]*4

def cmul(A, d, x, y):
    A.I(f"v_pk_mul_f32 {v(d,2)}, {v(x,2)}, {v(y,2)} op_sel_hi:[1,0]")
    A.I(f"v_pk_fma_f32 {v(d,2)}, {v(x,2)}, {v(y,2)}, {v(d,2)} op_sel:[1,1,0] op_sel_hi:[0,1,1] neg_lo:[1,0,0]")

def exp_rbf(A, dst, src, t0, t1, sc):
    A.I(f"v_mul_f32 {v(t0)}, {s(sc)}, {v(src)}")
    A.I(f"v_fma_f32 {v(t1)}, {v(src)}, {s(sc)}, -{v(t0)}")
    A.I(f"v_fma_f32 {v(t1)}, {v(src)}, {s(sc+1)}, {v(t1)}")
    A.I(f"v_exp_f32 {v(t0)}, {v(t0)}")
    A.I(f"v_mul_f32 {v(t1)}, {s(sc+2)}, {v(t1)}")
    A.I(f"v_fma_f32 {v(t0)}, {v(t0)}, {v(t1)}, {v(t0)}")
    A.I(f"v_cvt_pk_bf16_f32 {v(t0)}, {v(t0)}, {v(t0)}")
    A.I(f"v_lshlrev_b32 {v(dst)}, 16, {v(t0)}")

STAMP = False
WS_STAMP = 0x500000
def stamp(A, k):
    if not STAMP: return
    A.I("s_waitcnt lgkmcnt(0)")
    A.I(f"s_memtime {s(72+2*k,2)}")
    A.I("s_waitcnt lgkmcnt(0)")
def stamp_out(A, n):
    if not STAMP: return
    I = A.I
    I("s_waitcnt lgkmcnt(0) vmcnt(0)")
    I(f"s_memtime {s(72+2*n,2)}")
    I("s_memrealtime s[94:95]")
    I("s_waitcnt lgkmcnt(0)")
    I(f"s_lshl_b32 s6, s2, 3")
    I(f"s_add_u32 s6, s6, {s(S_WV)}")
    I(f"s_lshl_b32 s6, s6, 6")
    I(f"s_add_u32 s6, s6, {WS_STAMP}")
    I(f"v_mov_b32 v250, s6")
    for k in range(n+1):
        I(f"v_mov_b32 v251, {s(72+2*k)}")
        I(f"global_store_dword v250, v251, {s(S_WS,2)} offset:{4*k}")
    I(f"v_mov_b32 v251, s94")
    I(f"global_store_dword v250, v251, {s(S_WS,2)} offset:60")
    I(f"v_mov_b32 v251, s92")
    I(f"global_store_dword v250, v251, {s(S_WS,2)} offset:56")

def gen_B(A):
    I = A.I
    sCH, sHF, sD0, sD, sT, sUC, sSTG, sROT = 44, 45, 46, 47, 48, 49, 50, 51
    sC = 52
    sTB = 56
    sB = 64
    sBT = 68
    vLANE, vB, vG = 1, 2, 3
    vGA = 8
    vLAR, vAIM, vCR, vCI, vLDT, vDSK = 16, 17, 18, 19, 20, 21
    vT = 22
    W = lambda r: 32 + 2 * (r - 1)
    G = lambda p: 64 + 2 * (p - 1)
    F = lambda f: 80 + 2 * f
    H = lambda k: 112 + 2 * (k - 1)
    vP = 118
    vPK = 126
    vSW = 130
    I(f"s_lshr_b32 {s(sCH)}, {s(S_WV)}, 1")
    I(f"s_and_b32 {s(sHF)}, {s(S_WV)}, 1")
    I(f"s_lshl_b32 {s(sD0)}, {s(S_XCD)}, 6")
    I(f"s_lshl_b32 {s(sT)}, {s(S_J)}, 2")
    I(f"s_add_u32 {s(sD0)}, {s(sD0)}, {s(sT)}")
    I(f"s_add_u32 {s(sD)}, {s(sD0)}, {s(sCH)}")
    I(f"v_and_b32 {v(vLANE)}, 63, v0")
    I(f"s_lshl_b32 {s(sT)}, {s(sD)}, 8")
    I(f"s_lshl_b32 {s(sROT)}, {s(sHF)}, 7")
    I(f"s_add_u32 {s(sT)}, {s(sT)}, {s(sROT)}")
    I(f"v_lshl_add_u32 {v(vT)}, {v(vLANE)}, 1, {s(sT)}")
    I(f"s_lshl_b32 {s(sT)}, {s(sD)}, 1")
    I(f"v_mov_b32 {v(vT+1)}, {s(sT)}")
    I(f"s_lshl_b32 {s(sROT)}, {s(S_J)}, 7")
    I(f"v_add_u32 {v(vT+2)}, {s(sROT)}, v0")
    I("s_waitcnt lgkmcnt(0)")
    stamp(A, 1)
    I(f"global_load_ushort {v(vLDT)}, {v(vT+1)}, {s(S_LDT,2)}")
    I(f"global_load_ushort {v(vLAR)}, {v(vT)}, {s(S_LAR,2)}")
    I(f"global_load_ushort {v(vAIM)}, {v(vT)}, {s(S_AIM,2)}")
    I(f"global_load_ushort {v(vCR)}, {v(vT)}, {s(S_CR,2)}")
    I(f"global_load_ushort {v(vCI)}, {v(vT)}, {s(S_CI,2)}")
    I(f"global_load_ushort {v(vDSK)}, {v(vT+1)}, {s(S_DSK,2)}")
    I(f"s_lshl_b32 {s(sT)}, {s(sD0)}, 1")
    vROW = 4
    for i in range(4):
        I(f"v_add_u32 {v(vROW+i)}, {512*i}, {v(vT+2)}")
        I(f"v_and_b32 {v(vROW+i)}, 0x7ff, {v(vROW+i)}")
        I(f"v_lshl_add_u32 {v(vT+3)}, {v(vROW+i)}, 10, {s(sT)}")
        I(f"global_load_dwordx2 {v(vGA+2*i,2)}, {v(vT+3)}, {s(S_X,2)}")
    I(f"v_and_b32 {v(vB)}, 15, {v(vLANE)}")
    I(f"v_lshrrev_b32 {v(vG)}, 4, {v(vLANE)}")
    I(f"s_mul_i32 {s(sUC)}, {s(sCH)}, {USZ}")
    I(f"s_mul_i32 {s(sSTG)}, {s(sCH)}, {STGSZ}")
    I(f"s_add_u32 {s(sSTG)}, {s(sSTG)}, {STG0}")
    I(f"s_mov_b32 {s(sC)}, 0x{f32bits(LOG2E_HI):08x}")
    I(f"s_mov_b32 {s(sC+1)}, 0x{f32bits(LOG2E_LO):08x}")
    I(f"s_mov_b32 {s(sC+2)}, 0x{f32bits(LN2):08x}")
    I(f"v_lshrrev_b32 {v(vT+3)}, 7, v0")
    I(f"v_mul_u32_u24 {v(vT+3)}, {USZ}, {v(vT+3)}")
    I(f"v_and_b32 {v(vT+4)}, 127, v0")
    I(f"v_lshl_add_u32 {v(vT+3)}, {v(vT+4)}, 2, {v(vT+3)}")
    I(f"v_mov_b32 {v(vT+4)}, 0")
    I(f"ds_write_b32 {v(vT+3)}, {v(vT+4)}")
    I(f"s_lshl_b32 {s(sT)}, {s(sHF)}, 8")
    I(f"s_add_u32 {s(sT)}, {s(sT)}, {s(sSTG)}")
    I(f"v_lshl_add_u32 {v(vSW)}, {v(vLANE)}, 2, {s(sT)}")
    I(f"s_cmp_eq_u32 {s(sHF)}, 0")
    tabs0 = [T0, T1, T2, T2]; bases0 = [16, 32, 41, 46]; bases1 = [51, 54, 57, 60]
    lo3, hi3 = nib(T3)
    for i in range(4):
        lo, hi = nib(tabs0[i])
        I(f"s_mov_b32 {s(sT)}, 0x{lo3:08x}")
        I(f"s_cselect_b32 {s(sTB+2*i)}, 0x{lo:08x}, {s(sT)}")
        I(f"s_mov_b32 {s(sT)}, 0x{hi3:08x}")
        I(f"s_cselect_b32 {s(sTB+2*i+1)}, 0x{hi:08x}, {s(sT)}")
        I(f"s_cselect_b32 {s(sB+i)}, {bases0[i]}, {bases1[i]}")
    vFA = 132; vEA = 133
    I(f"v_lshrrev_b32 {v(vT+3)}, 1, {v(vG)}")
    I(f"v_lshlrev_b32 {v(vT+3)}, 7, {v(vT+3)}")
    I(f"v_and_b32 {v(vT+4)}, 1, {v(vG)}")
    I(f"v_lshl_add_u32 {v(vT+3)}, {v(vT+4)}, 8, {v(vT+3)}")
    I(f"v_add_u32 {v(vT+3)}, {s(sSTG)}, {v(vT+3)}")
    I(f"v_mul_u32_u24 {v(vT+4)}, {RS}, {v(vB)}")
    I(f"v_add_u32 {v(vFA)}, {v(vT+3)}, {v(vT+4)}")
    I(f"v_lshlrev_b32 {v(vT+5)}, 2, {v(vB)}")
    for i in range(4):
        I(f"v_lshrrev_b64 {v(vT+6,2)}, {v(vT+5)}, {s(sTB+2*i,2)}")
        I(f"v_and_b32 {v(vT+6)}, 15, {v(vT+6)}")
        I(f"v_add_u32 {v(vT+6)}, {s(sB+i)}, {v(vT+6)}")
        I(f"v_mul_u32_u24 {v(vT+6)}, {RS}, {v(vT+6)}")
        I(f"v_add_u32 {v(vEA+i)}, {v(vT+3)}, {v(vT+6)}")
    I("s_waitcnt vmcnt(4)")
    stamp(A, 2)
    for r in (vLDT, vLAR, vAIM, vCR, vCI, vDSK):
        I(f"v_lshlrev_b32 {v(r)}, 16, {v(r)}")
    vDT = vLDT
    exp_rbf(A, vDT, vLDT, vT, vT+1, sC)
    exp_rbf(A, vLAR, vLAR, vT+2, vT+3, sC)
    vLR, vFI = vLAR, vAIM
    I(f"v_mul_f32 {v(vLR)}, {v(vLAR)}, {v(vDT)}")
    I(f"v_mul_f32 {v(vFI)}, {v(vAIM)}, {v(vDT)}")
    I(f"v_mul_f32 {v(vLR)}, 0x{f32bits(-LOG2E):08x}, {v(vLR)}")
    I(f"v_mul_f32 {v(vFI)}, 0x{f32bits(INV2PI):08x}, {v(vFI)}")
    I(f"v_add_f32 {v(vDT)}, {v(vDT)}, {v(vDT)}")
    I(f"v_mul_f32 {v(F(0))}, {v(vCR)}, {v(vDT)}")
    I(f"v_mul_f32 {v(F(0)+1)}, {v(vCI)}, {v(vDT)}")
    def anchor(dst, t, tmp):
        tb = f"0x{f32bits(float(t)):08x}"
        if t == 1:
            I(f"v_exp_f32 {v(tmp)}, {v(vLR)}")
            I(f"v_fract_f32 {v(tmp+1)}, {v(vFI)}")
        else:
            I(f"v_mul_f32 {v(tmp)}, {tb}, {v(vLR)}")
            I(f"v_mul_f32 {v(tmp+1)}, {tb}, {v(vFI)}")
            I(f"v_exp_f32 {v(tmp)}, {v(tmp)}")
            I(f"v_fract_f32 {v(tmp+1)}, {v(tmp+1)}")
        I(f"v_cos_f32 {v(dst)}, {v(tmp+1)}")
        I(f"v_sin_f32 {v(dst+1)}, {v(tmp+1)}")
        I(f"v_pk_mul_f32 {v(dst,2)}, {v(dst,2)}, {v(tmp,2)} op_sel_hi:[1,0]")
    anchor(W(1), 1, vT)
    anchor(W(16), 16, vT+2)
    anchor(G(1), 256, vT+4)
    anchor(G(4), 1024, vT+6)
    pk = [0]
    def emit(row, reg, neg=False):
        t = vPK + (pk[0] & 3); pk[0] += 1
        I(f"v_cvt_pk_bf16_f32 {v(t)}, {v(reg)}, {'-' if neg else ''}{v(reg+1)}")
        I(f"ds_write_b32 {v(vSW)}, {v(t)} offset:{row*RS}")
    I(f"v_mov_b32 {v(vPK)}, 0x3f80")
    I(f"ds_write_b32 {v(vSW)}, {v(vPK)} offset:{16*RS}"); pk[0] = 1
    cmul(A, W(2), W(1), W(1)); emit(16+1, W(1))
    cmul(A, H(1), W(16), W(16)); emit(0, F(0), True)
    cmul(A, F(1), F(0), W(16))
    cmul(A, G(2), G(1), G(1)); emit(32, G(1))
    cmul(A, W(3), W(2), W(1)); emit(16+2, W(2))
    cmul(A, W(4), W(2), W(2)); emit(1, F(1), True)
    cmul(A, H(2), H(1), H(1)); emit(51, G(4))
    cmul(A, F(2), F(0), H(1)); emit(16+3, W(3))
    cmul(A, F(3), F(1), H(1)); emit(16+4, W(4))
    cmul(A, G(3), G(2), G(1)); emit(41, G(2))
    cmul(A, W(8), W(4), W(4)); emit(2, F(2), True)
    cmul(A, H(3), H(2), H(2)); emit(3, F(3), True)
    for r in (5, 6, 7):
        cmul(A, W(r), W(4), W(r-4))
    emit(46, G(3)); emit(16+8, W(8))
    for f in range(4):
        cmul(A, F(4+f), F(f), H(2))
    for r in (5, 6, 7): emit(16+r, W(r))
    for p in (5, 6, 7):
        cmul(A, G(p), G(4), G(p-4))
    for f in range(4): emit(4+f, F(4+f), True)
    for r in range(9, 16):
        cmul(A, W(r), W(8), W(r-8))
    for p in (5, 6, 7): emit(51 + 3*(p-4), G(p))
    for f in range(8):
        cmul(A, F(8+f), F(f), H(3))
    for r in range(9, 16): emit(16+r, W(r))
    for f in range(8): emit(8+f, F(8+f), True)
    prods = []
    for i in range(1, 9): prods.append((32+i, 1, 2*i))
    for p, b in ((2, 41), (3, 46)):
        for i in range(1, 5): prods.append((b+i, p, 4*i))
    for p in range(4, 8):
        for i in (1, 2): prods.append((51+3*(p-4)+i, p, 8*i))
    pend = []
    for n, (row, p, r) in enumerate(prods):
        t = vP + 2*(n & 3)
        cmul(A, t, G(p), W(r))
        pend.append((row, t))
        if len(pend) > 2:
            rw, tt = pend.pop(0); emit(rw, tt)
    for rw, tt in pend: emit(rw, tt)
    stamp(A, 3)
    I("s_waitcnt vmcnt(0)")
    stamp(A, 4)
    for i in range(4):
        I(f"v_lshlrev_b32 {v(vROW+i)}, 1, {v(vROW+i)}")
        I(f"ds_write_b16 {v(vROW+i)}, {v(vGA+2*i)} offset:{512}")
        I(f"ds_write_b16_d16_hi {v(vROW+i)}, {v(vGA+2*i)} offset:{512+USZ}")
        I(f"ds_write_b16 {v(vROW+i)}, {v(vGA+2*i+1)} offset:{512+2*USZ}")
        I(f"ds_write_b16_d16_hi {v(vROW+i)}, {v(vGA+2*i+1)} offset:{512+3*USZ}")
    I("s_waitcnt lgkmcnt(0)")
    I("s_barrier")
    stamp(A, 5)
    vFF = 32
    vEF = 64
    vK = 140
    seq = [(ks, i) for ks in range(8) for i in range(4)]
    loads = []
    for ks in range(8):
        loads.append(("F", ks, 0))
        for i in range(4): loads.append(("E", ks, i))
    issued = 0
    def issue_load(n):
        k, ks, i = loads[n]
        if k == "F": I(f"ds_read_b128 {v(vFF+4*ks,4)}, {v(vFA)} offset:{16*ks}")
        else:
            slot = (ks*4+i) % 16
            I(f"ds_read_b128 {v(vEF+4*slot,4)}, {v(vEA+i)} offset:{16*ks}")
    AHEAD = 12
    for n in range(AHEAD): issue_load(n)
    issued = AHEAD
    for m, (ks, i) in enumerate(seq):
        needidx = ks*5 + 1 + i
        out = issued - 1 - needidx
        I(f"s_waitcnt lgkmcnt({out})")
        slot = (ks*4+i) % 16
        c = "0" if ks == 0 else v(vK+4*i,4)
        I(f"v_mfma_f32_16x16x32_bf16 {v(vK+4*i,4)}, {v(vEF+4*slot,4)}, {v(vFF+4*ks,4)}, {c}")
        while issued < len(loads) and issued - needidx <= AHEAD:
            issue_load(issued); issued += 1
    vKW = 4
    I(f"v_lshlrev_b32 {v(vT)}, 5, {v(vB)}")
    I(f"v_lshl_add_u32 {v(vT)}, {v(vG)}, 3, {v(vT)}")
    I(f"s_lshl_b32 {s(sT)}, {s(sHF)}, 11")
    I(f"s_sub_u32 {s(sT)}, {s(sSTG)}, {s(sT)}")
    I(f"s_add_u32 {s(sT)}, {s(sT)}, {2*2044 - 3*512}")
    I(f"v_sub_u32 {v(vKW)}, {s(sT)}, {v(vT)}")
    vOFF = 5
    I(f"v_mov_b32 {v(vOFF)}, {v(vT)}")
    I("s_barrier")
    I(f"s_cmp_eq_u32 {s(sHF)}, 0")
    A.branch("s_cbranch_scc0 B_nozero")
    I(f"v_lshl_add_u32 {v(vT+1)}, {v(vB)}, 2, {s(sSTG)}")
    I(f"v_mov_b32 {v(vT+2)}, 0")
    I(f"v_and_b32 {v(vT+3)}, 7, {v(vB)}")
    I(f"v_lshl_add_u32 {v(vT+1)}, {v(vT+3)}, 2, {s(sSTG)}")
    I(f"ds_write_b32 {v(vT+1)}, {v(vT+2)} offset:{2*2048}")
    I(f"ds_write_b32 {v(vT+1)}, {v(vT+2)} offset:{R1OFF + 2*2046}")
    I(f"ds_write_b32 {v(vT+1)}, {v(vT+2)} offset:{R1OFF + 2*2048}")
    A.label("B_nozero")
    for i in range(4):
        k = vK + 4*i
        t = 8 + 4*(i & 1)
        off = 512*(3-i)
        I(f"v_cvt_pk_bf16_f32 {v(t)}, {v(k+3)}, {v(k+2)}")
        I(f"v_cvt_pk_bf16_f32 {v(t+1)}, {v(k+1)}, {v(k)}")
        I(f"v_cvt_pk_bf16_f32 {v(t+2)}, {v(k+2)}, {v(k+1)}")
        I(f"ds_write_b64 {v(vKW)}, {v(t,2)} offset:{off}")
        I(f"ds_write_b32 {v(vKW)}, {v(t+2)} offset:{off+R1OFF}")
        I(f"ds_write_b16 {v(vKW)}, {v(t)} offset:{off+R1OFF-2}")
        I(f"ds_write_b16_d16_hi {v(vKW)}, {v(t+1)} offset:{off+R1OFF+4}")
    vLA = 16
    vLB = 20
    I(f"v_and_b32 {v(vT)}, 1, {v(vB)}")
    I(f"v_xor_b32 {v(vT)}, 1, {v(vT)}")
    I(f"v_mul_u32_u24 {v(vT+1)}, {R1OFF-2}, {v(vT)}")
    I(f"v_lshl_add_u32 {v(vT+1)}, {v(vG)}, 4, {v(vT+1)}")
    I(f"v_lshlrev_b32 {v(vT+2)}, 1, {v(vB)}")
    I(f"v_sub_u32 {v(vT+1)}, {v(vT+1)}, {v(vT+2)}")
    I(f"s_lshl_b32 {s(sT)}, {s(sHF)}, 8")
    I(f"s_sub_u32 {s(sROT)}, {s(sSTG)}, {s(sT)}")
    I(f"s_add_u32 {s(sROT)}, {s(sROT)}, {2*2031 - 192 - 512}")
    I(f"v_add_u32 {v(vLA)}, {s(sROT)}, {v(vT+1)}")
    for pp in range(1, 4):
        I(f"v_subrev_u32 {v(vLA+pp)}, {1024*pp}, {v(vLA)}")
    I(f"s_sub_u32 {s(sROT)}, {s(sUC)}, {s(sT)}")
    I(f"s_add_u32 {s(sROT)}, {s(sROT)}, {480-192}")
    I(f"v_lshlrev_b32 {v(vT)}, 5, {v(vB)}")
    I(f"v_lshl_add_u32 {v(vT)}, {v(vG)}, 4, {v(vT)}")
    I(f"v_add_u32 {v(vLB)}, {s(sROT)}, {v(vT)}")
    I("s_waitcnt lgkmcnt(0)")
    I("s_barrier")
    stamp(A, 6)
    vY = 160
    bufA = [32, 96]; bufB = [64, 128]
    def ld_list(qq):
        L = []
        for p in range(8):
            L.append(("B", p)); L.append(("A", p, 0)); L.append(("A", p, 1))
        return L
    def do_ld(qq, e):
        st = qq & 1
        if e[0] == "B":
            t = e[1]
            I(f"ds_read_b128 {v(bufB[st]+4*t,4)}, {v(vLB)} offset:{512*t + 64*(3-qq)}")
        else:
            p, h = e[1], e[2]
            o = (128 if (p & 1) == 0 else 0) + 16*(3-qq) + 2*h
            I(f"ds_read2_b32 {v(bufA[st]+4*p+2*h,2)}, {v(vLA+(p>>1))} offset0:{o} offset1:{o+1}")
    order = sorted([(p, tp) for p in range(8) for tp in range(8) if p+tp < 8], key=lambda x: (max(x), x[0]+x[1]))
    touched = set()
    stream = [(qq, e) for qq in range(4) for e in ld_list(qq)]
    issued = 0
    def lidx(qq, lvl): return qq*24 + lvl*3 + 2
    for n in range(14):
        do_ld(*stream[issued]); issued += 1
    for qq in range(4):
        st = qq & 1
        lastw = None
        for m, (p, tp) in enumerate(order):
            lvl = max(p, tp)
            out = issued - 1 - lidx(qq, lvl)
            out = max(0, min(out, 15))
            if lastw is None or lvl != lastw:
                I(f"s_waitcnt lgkmcnt({out})"); lastw = lvl
            t = p + tp
            c = v(vY+4*t,4) if t in touched else "0"
            touched.add(t)
            I(f"v_mfma_f32_16x16x32_bf16 {v(vY+4*t,4)}, {v(bufA[st]+4*p,4)}, {v(bufB[st]+4*tp,4)}, {c}")
            lim = min(len(stream), (qq+2)*24)
            if issued < lim and issued - lidx(qq, lvl) <= 14:
                do_ld(*stream[issued]); issued += 1
    stamp(A, 7)
    I(f"s_cmp_eq_u32 {s(sHF)}, 0")
    A.branch("s_cbranch_scc1 B_noswap")
    for r in range(16):
        I(f"v_swap_b32 {v(vY+r)}, {v(vY+16+r)}")
    A.label("B_noswap")
    vXA = 6
    I(f"s_lshl_b32 {s(sT)}, {s(sHF)}, 12")
    I(f"s_add_u32 {s(sROT)}, {s(sSTG)}, {s(sT)}")
    I(f"v_lshl_add_u32 {v(vXA)}, {v(vLANE)}, 4, {s(sROT)}")
    for i in range(4):
        I(f"ds_write_b128 {v(vXA)}, {v(vY+16+4*i,4)} offset:{XCHOFF+1024*i}")
    I(f"s_xor_b32 {s(sT)}, {s(sT)}, 4096")
    I(f"s_add_u32 {s(sROT)}, {s(sSTG)}, {s(sT)}")
    I(f"v_lshl_add_u32 {v(vXA)}, {v(vLANE)}, 4, {s(sROT)}")
    I(f"s_lshl_b32 {s(sT)}, {s(sHF)}, 11")
    I(f"s_add_u32 {s(sROT)}, {s(sUC)}, {s(sT)}")
    I(f"v_add_u32 {v(vT)}, {s(sROT)}, {v(vOFF)}")
    vUU = 32
    for i in range(4):
        I(f"ds_read_b64 {v(vUU+2*i,2)}, {v(vT)} offset:{512+512*i}")
    I(f"s_lshl_b32 {s(sROT)}, {s(sD)}, 12")
    I(f"s_add_u32 {s(sROT)}, {s(sROT)}, {s(sT)}")
    I(f"s_add_u32 {s(sROT)}, {s(sROT)}, {WS_BT}")
    I(f"s_add_u32 {s(sBT)}, {s(S_WS)}, {s(sROT)}")
    I(f"s_addc_u32 {s(sBT+1)}, {s(S_WS+1)}, 0")
    I("s_waitcnt lgkmcnt(0)")
    I("s_barrier")
    vX = 48
    for i in range(4):
        I(f"ds_read_b128 {v(vX+4*i,4)}, {v(vXA)} offset:{XCHOFF+1024*i}")
    vUD = 64
    for i in range(4):
        u0, u1 = vUU+2*i, vUU+2*i+1
        d = vUD + 4*i
        I(f"v_lshlrev_b32 {v(d)}, 16, {v(u0)}")
        I(f"v_and_b32 {v(d+1)}, 0xffff0000, {v(u0)}")
        I(f"v_lshlrev_b32 {v(d+2)}, 16, {v(u1)}")
        I(f"v_and_b32 {v(d+3)}, 0xffff0000, {v(u1)}")
        for k in range(4): I(f"v_mul_f32 {v(d+k)}, {v(d+k)}, {v(vDSK)}")
        I(f"v_cvt_pk_bf16_f32 {v(u0)}, {v(d)}, {v(d+1)}")
        I(f"v_cvt_pk_bf16_f32 {v(u1)}, {v(d+2)}, {v(d+3)}")
        I(f"v_lshlrev_b32 {v(d)}, 16, {v(u0)}")
        I(f"v_and_b32 {v(d+1)}, 0xffff0000, {v(u0)}")
        I(f"v_lshlrev_b32 {v(d+2)}, 16, {v(u1)}")
        I(f"v_and_b32 {v(d+3)}, 0xffff0000, {v(u1)}")
    for i in range(4):
        I(f"s_waitcnt lgkmcnt({3-i})")
        y = vY + 4*i; x = vX + 4*i; d = vUD + 4*i
        I(f"v_pk_add_f32 {v(y,2)}, {v(y,2)}, {v(x,2)}")
        I(f"v_pk_add_f32 {v(y+2,2)}, {v(y+2,2)}, {v(x+2,2)}")
        I(f"v_cvt_pk_bf16_f32 {v(x)}, {v(y)}, {v(y+1)}")
        I(f"v_cvt_pk_bf16_f32 {v(x+1)}, {v(y+2)}, {v(y+3)}")
        I(f"v_lshlrev_b32 {v(y)}, 16, {v(x)}")
        I(f"v_and_b32 {v(y+1)}, 0xffff0000, {v(x)}")
        I(f"v_lshlrev_b32 {v(y+2)}, 16, {v(x+1)}")
        I(f"v_and_b32 {v(y+3)}, 0xffff0000, {v(x+1)}")
        I(f"v_pk_add_f32 {v(y,2)}, {v(y,2)}, {v(d,2)}")
        I(f"v_pk_add_f32 {v(y+2,2)}, {v(y+2,2)}, {v(d+2,2)}")
        I(f"v_cvt_pk_bf16_f32 {v(x)}, {v(y)}, {v(y+1)}")
        I(f"v_cvt_pk_bf16_f32 {v(x+1)}, {v(y+2)}, {v(y+3)}")
        I(f"global_store_dwordx2 {v(vOFF)}, {v(x,2)}, {s(sBT,2)} offset:{512*i}")
    stamp_out(A, 8)
    I("s_endpgm")
```

```python
from asmlib import *
from k1b import *
import k1b

LDS = 4*16384 + 4*2048
LAUNCH = f"; @launch kernel=k2_kernel grid=(256,1,1) block=(256,1,1) lds={LDS}\n"
VGPRS = 256
BTOFF = 65536

def gen():
    A = Asm(); I = A.I
    A.raw(".globl k2_kernel\n.p2align 8\n.type k2_kernel,@function\nk2_kernel:")
    I("s_cmp_ge_u32 s2, 256")
    I("s_cbranch_scc1 K2_exit")
    if k1b.STAMP:
        I("s_memtime s[72:73]")
        I("s_memrealtime s[92:93]")
    I(f"s_load_dwordx2 {s(S_WO,2)}, s[0:1], 16")
    I(f"s_load_dwordx2 {s(S_OUT,2)}, s[0:1], 88")
    I(f"s_load_dwordx2 {s(S_WS,2)}, s[0:1], 104")
    sRB, sCB, sT, sT2 = 44, 45, 46, 47
    sSRO, sSRB = 52, 56
    sPQ, sAC = 60, 62
    sEPS = 64
    I("v_lshrrev_b32 v1, 6, v0")
    I(f"s_and_b32 {s(sT)}, s2, 7")
    I(f"v_readfirstlane_b32 {s(S_WV)}, v1")
    I(f"s_lshl_b32 {s(sRB)}, {s(sT)}, 2")
    I(f"s_bfe_u32 {s(sT)}, s2, 0x20003")
    I(f"s_add_u32 {s(sRB)}, {s(sRB)}, {s(sT)}")
    I(f"s_lshr_b32 {s(sCB)}, s2, 5")
    I("v_and_b32 v1, 63, v0")
    vT = 2
    vL16 = 10
    vKA = 11
    vWOA = 12
    vTR = 13
    vBTA = 14
    I(f"v_lshlrev_b32 {v(vL16)}, 4, v1")
    I(f"v_and_b32 {v(vT)}, 31, v1")
    I(f"v_lshrrev_b32 {v(vT+1)}, 5, v1")
    I(f"v_lshl_add_u32 {v(vT+2)}, {v(vT+1)}, 4, {v(vT)}")
    I(f"v_lshlrev_b32 {v(vT+2)}, 5, {v(vT+2)}")
    I(f"v_lshlrev_b32 {v(vT+3)}, 5, {v(vT+1)}")
    I(f"v_add_u32 {v(vT+3)}, 4096, {v(vT+3)}")
    I(f"v_cmp_gt_u32 vcc, 16, {v(vT)}")
    I(f"v_cndmask_b32 {v(vKA)}, {v(vT+3)}, {v(vT+2)}, vcc")
    I(f"v_mov_b32 {v(vT+4)}, 64")
    I(f"v_mov_b32 {v(vT+5)}, 1024")
    vKS = 15
    I(f"v_cndmask_b32 {v(vKS)}, {v(vT+4)}, {v(vT+5)}, vcc")
    I(f"v_lshrrev_b32 {v(vT)}, 3, v1")
    I(f"v_and_b32 {v(vT+2)}, 7, v1")
    I(f"v_bfe_u32 {v(vT+3)}, v1, 4, 1")
    I(f"v_lshlrev_b32 {v(vT+3)}, 2, {v(vT+3)}")
    I(f"v_xor_b32 {v(vT+2)}, {v(vT+2)}, {v(vT+3)}")
    I(f"v_lshlrev_b32 {v(vT+2)}, 4, {v(vT+2)}")
    I(f"v_lshl_add_u32 {v(vWOA)}, {v(vT)}, 10, {v(vT+2)}")
    I(f"v_lshrrev_b32 {v(vT)}, 2, v1")
    I(f"v_and_b32 {v(vT+2)}, 3, v1")
    I(f"v_lshlrev_b32 {v(vT+2)}, 4, {v(vT+2)}")
    I(f"v_lshl_add_u32 {v(vBTA)}, {v(vT)}, 12, {v(vT+2)}")
    I("s_waitcnt lgkmcnt(0)")
    stamp(A, 1)
    I(f"s_mul_i32 {s(sT)}, {s(S_WV)}, {2*4352}")
    I(f"s_add_u32 {s(sT)}, {s(sT)}, {WS_ACC}")
    I(f"s_add_u32 {s(sAC)}, {s(S_WS)}, {s(sT)}")
    I(f"s_addc_u32 {s(sAC+1)}, {s(S_WS+1)}, 0")
    KV = 16
    PQ = 80
    ACC = 144
    NUM = [208, 224]
    WF = 240
    OF = 248
    for h in range(8):
        if h == 4:
            I(f"v_lshlrev_b32 {v(vT)}, 2, {v(vKS)}")
            I(f"v_sub_u32 {v(vKA)}, {v(vKA)}, {v(vT)}")
            I(f"v_add_u32 {v(vKA)}, 4352, {v(vKA)}")
        I(f"global_load_dwordx4 {v(KV+8*h,4)}, {v(vKA)}, {s(sAC,2)}")
        I(f"global_load_dwordx4 {v(KV+8*h+4,4)}, {v(vKA)}, {s(sAC,2)} offset:16")
        I(f"v_add_u32 {v(vKA)}, {v(vKA)}, {v(vKS)}")
    I(f"s_lshl_b32 {s(sT)}, {s(sRB)}, 16")
    I(f"s_lshl_b32 {s(sT2)}, {s(S_WV)}, 13")
    I(f"s_add_u32 {s(sT)}, {s(sT)}, {s(sT2)}")
    I(f"s_add_u32 {s(sPQ)}, {s(S_WS)}, {s(sT)}")
    I(f"s_addc_u32 {s(sPQ+1)}, {s(S_WS+1)}, 0")
    I(f"s_mov_b32 {s(sSRO)}, {s(S_WO)}")
    I(f"s_mov_b32 {s(sSRO+1)}, {s(S_WO+1)}")
    I(f"s_mov_b32 {s(sSRO+2)}, 0x80000")
    I(f"s_mov_b32 {s(sSRO+3)}, 0x00020000")
    I(f"s_lshl_b32 {s(sT)}, {s(S_WV)}, 17")
    I(f"s_lshl_b32 {s(sT2)}, {s(sCB)}, 7")
    I(f"s_add_u32 {s(sT)}, {s(sT)}, {s(sT2)}")
    I(f"s_lshl_b32 m0, {s(S_WV)}, 14")
    I(f"v_add_u32 {v(vT)}, 4096, {v(vL16)}")
    I(f"v_add_u32 {v(vT+1)}, 0x8000, {v(vL16)}")
    I(f"v_add_u32 {v(vT+2)}, 0x9000, {v(vL16)}")
    for h in range(8):
        a0 = vL16 if h < 4 else vT
        a1 = vT+1 if h < 4 else vT+2
        I(f"global_load_dwordx4 {v(PQ+8*h,4)}, {v(a0)}, {s(sPQ,2)} offset:{1024*(h&3)}")
        I(f"global_load_dwordx4 {v(PQ+8*h+4,4)}, {v(a1)}, {s(sPQ,2)} offset:{1024*(h&3)}")
        for k in range(2):
            I(f"buffer_load_dwordx4 {v(vWOA)}, {s(sSRO,4)}, {s(sT)} offen lds")
            I(f"s_add_u32 m0, m0, 1024")
            I(f"s_add_u32 {s(sT)}, {s(sT)}, 8192")
    sST, sNT = 48, 49
    I(f"s_lshr_b32 {s(sST)}, {s(S_WV)}, 1")
    I(f"s_and_b32 {s(sNT)}, {s(S_WV)}, 1")
    I(f"s_add_u32 {s(sSRB)}, {s(S_WS)}, {WS_BT}")
    I(f"s_addc_u32 {s(sSRB+1)}, {s(S_WS+1)}, 0")
    I(f"s_mov_b32 {s(sSRB+2)}, 0x200000")
    I(f"s_mov_b32 {s(sSRB+3)}, 0x00020000")
    I(f"s_lshl_b32 {s(sT)}, {s(sCB)}, 18")
    I(f"s_lshl_b32 {s(sT2)}, {s(sNT)}, 17")
    I(f"s_add_u32 {s(sT)}, {s(sT)}, {s(sT2)}")
    I(f"s_lshl_b32 {s(sT2)}, {s(sRB)}, 7")
    I(f"s_add_u32 {s(sT)}, {s(sT)}, {s(sT2)}")
    I(f"s_lshl_b32 {s(sT2)}, {s(sST)}, 6")
    I(f"s_add_u32 {s(sT)}, {s(sT)}, {s(sT2)}")
    I(f"s_lshl_b32 {s(sT2)}, {s(S_WV)}, 11")
    I(f"s_add_u32 m0, {s(sT2)}, {BTOFF}")
    I(f"s_add_u32 s6, {s(sT)}, 0x10000")
    I(f"buffer_load_dwordx4 {v(vBTA)}, {s(sSRB,4)}, {s(sT)} offen lds")
    I(f"s_add_u32 m0, m0, 1024")
    I(f"v_and_b32 {v(vT+3)}, 31, v1")
    I(f"buffer_load_dwordx4 {v(vBTA)}, {s(sSRB,4)}, s6 offen lds")
    I(f"s_lshl_b32 {s(sT)}, {s(sRB)}, 8")
    I(f"s_lshl_b32 {s(sT2)}, {s(sST)}, 7")
    I(f"s_add_u32 {s(sT)}, {s(sT)}, {s(sT2)}")
    I(f"s_add_u32 {s(sT)}, {s(sT)}, {WS_G}")
    I(f"v_lshl_add_u32 {v(vT+3)}, {v(vT+3)}, 2, {s(sT)}")
    vGG = 9
    I(f"global_load_dword {v(vGG)}, {v(vT+3)}, {s(S_WS,2)}")
    I(f"v_bfe_u32 {v(vT)}, v1, 2, 2")
    I(f"v_lshrrev_b32 {v(vT+1)}, 5, v1")
    I(f"v_lshl_add_u32 {v(vT)}, {v(vT+1)}, 2, {v(vT)}")
    I(f"v_lshlrev_b32 {v(vT)}, 7, {v(vT)}")
    I(f"v_and_b32 {v(vT+1)}, 1, v1")
    I(f"v_bfe_u32 {v(vT+2)}, v1, 4, 1")
    I(f"v_lshl_add_u32 {v(vT+1)}, {v(vT+1)}, 1, {v(vT+2)}")
    I(f"v_bfe_u32 {v(vT+2)}, v1, 3, 1")
    I(f"v_lshl_add_u32 {v(vT+1)}, {v(vT+2)}, 2, {v(vT+1)}")
    I(f"v_lshl_add_u32 {v(vT)}, {v(vT+1)}, 4, {v(vT)}")
    I(f"v_bfe_u32 {v(vT+2)}, v1, 1, 1")
    I(f"v_lshl_add_u32 {v(vT)}, {v(vT+2)}, 3, {v(vT)}")
    I(f"s_lshl_b32 {s(sT)}, {s(S_WV)}, 14")
    I(f"v_add_u32 {v(vTR)}, {s(sT)}, {v(vT)}")
    vTR1 = 8
    I(f"v_xor_b32 {v(vTR1)}, 64, {v(vTR)}")
    I(f"s_mov_b32 {s(sEPS)}, 0x{f32bits(1e-6):08x}")
    I("s_waitcnt vmcnt(35)")
    stamp(A, 2)
    for h in range(8):
        for p in range(4):
            I(f"v_cvt_pk_bf16_f32 {v(KV+8*h+p)}, {v(KV+8*h+2*p)}, {v(KV+8*h+2*p+1)}")
    def num(h):
        for st in range(2):
            I(f"v_mfma_f32_32x32x16_bf16 {v(NUM[st],16)}, {v(KV+8*h,4)}, {v(PQ+8*h+4*st,4)}, 0")
    def wread(h):
        I(f"ds_read_b64_tr_b16 {v(KV+8*h+4,2)}, {v(vTR)} offset:{2048*h}")
        I(f"ds_read_b64_tr_b16 {v(KV+8*h+6,2)}, {v(vTR)} offset:{2048*h+1024}")
        w1 = WF + 4*(h & 1)
        I(f"ds_read_b64_tr_b16 {v(w1,2)}, {v(vTR1)} offset:{2048*h}")
        I(f"ds_read_b64_tr_b16 {v(w1+2,2)}, {v(vTR1)} offset:{2048*h+1024}")
    def norm(h, st):
        n = NUM[st]
        I(f"v_add_f32 {v(n+8)}, {s(sEPS)}, {v(n+8)}")
        I(f"v_rcp_f32 {v(n+8)}, {v(n+8)}")
        for p in range(4):
            I(f"v_pk_mul_f32 {v(n+2*p,2)}, {v(n+2*p,2)}, {v(n+8,2)} op_sel_hi:[1,0]")
        o = PQ + 8*h + 4*st
        for p in range(4):
            I(f"v_cvt_pk_bf16_f32 {v(o+p)}, {v(n+2*p)}, {v(n+2*p+1)}")
    def proj(h, st):
        o = PQ + 8*h + 4*st
        w0 = KV+8*h+4; w1 = WF + 4*(h & 1)
        for nt, w in ((0, w0), (1, w1)):
            d = ACC + 16*(2*st+nt)
            I(f"v_mfma_f32_32x32x16_bf16 {v(d,16)}, {v(w,4)}, {v(o,4)}, {'0' if h == 0 else v(d,16)}")
    for h in range(8):
        I(f"s_waitcnt vmcnt({3 + 4*(7-h)})")
        wread(h)
        num(h)
        if h > 0:
            proj(h-1, 0); proj(h-1, 1)
        norm(h, 0); norm(h, 1)
        I("s_waitcnt lgkmcnt(0)")
    proj(7, 0); proj(7, 1)
    stamp(A, 3)
    I("s_barrier")
    I(f"s_lshl_b32 {s(sT)}, {s(S_WV)}, 12")
    I(f"v_add_u32 {v(vT)}, {s(sT)}, {v(vL16)}")
    for t in range(4):
        for k in range(4):
            I(f"ds_write_b128 {v(vT)}, {v(ACC+16*t+4*k,4)} offset:{16384*t+1024*k}")
    I(f"v_bfe_u32 {v(vT+1)}, v1, 2, 2")
    I(f"v_lshrrev_b32 {v(vT+2)}, 5, v1")
    I(f"v_lshl_add_u32 {v(vT+1)}, {v(vT+2)}, 4, {v(vT+1)}")
    I(f"v_lshlrev_b32 {v(vT+1)}, 6, {v(vT+1)}")
    I(f"v_bfe_u32 {v(vT+2)}, v1, 4, 1")
    I(f"v_lshl_add_u32 {v(vT+1)}, {v(vT+2)}, 5, {v(vT+1)}")
    I(f"v_and_b32 {v(vT+2)}, 3, v1")
    I(f"v_lshl_add_u32 {v(vT+1)}, {v(vT+2)}, 3, {v(vT+1)}")
    I(f"s_lshl_b32 {s(sT)}, {s(S_WV)}, 11")
    I(f"s_add_u32 {s(sT)}, {s(sT)}, {BTOFF}")
    I(f"v_add_u32 {v(vT+1)}, {s(sT)}, {v(vT+1)}")
    I("s_waitcnt vmcnt(0)")
    BB = 16
    for j in range(4):
        I(f"ds_read_b64_tr_b16 {v(BB+2*j,2)}, {v(vT+1)} offset:{256*j}")
    I(f"s_lshl_b32 {s(sT)}, {s(S_WV)}, 14")
    I(f"v_add_u32 {v(vT)}, {s(sT)}, {v(vL16)}")
    I(f"v_and_b32 {v(vT+2)}, 31, v1")
    I(f"v_lshrrev_b32 {v(vT+3)}, 5, v1")
    I(f"v_lshlrev_b32 {v(vT+3)}, 5, {v(vT+3)}")
    I(f"v_lshl_add_u32 {v(vT+2)}, {v(vT+2)}, 10, {v(vT+3)}")
    I(f"s_lshl_b32 {s(sT)}, {s(sRB)}, 16")
    I(f"s_lshl_b32 {s(sT2)}, {s(sST)}, 15")
    I(f"s_add_u32 {s(sT)}, {s(sT)}, {s(sT2)}")
    I(f"s_lshl_b32 {s(sT2)}, {s(sCB)}, 7")
    I(f"s_add_u32 {s(sT)}, {s(sT)}, {s(sT2)}")
    I(f"s_lshl_b32 {s(sT2)}, {s(sNT)}, 6")
    I(f"s_add_u32 {s(sT)}, {s(sT)}, {s(sT2)}")
    I(f"v_add_u32 {v(vT+2)}, {s(sT)}, {v(vT+2)}")
    vOM = 7
    I(f"v_sub_f32 {v(vOM)}, 1.0, {v(vGG)}")
    I(f"v_cvt_pk_bf16_f32 {v(vOM)}, {v(vOM)}, {v(vOM)}")
    I(f"v_lshlrev_b32 {v(vOM)}, 16, {v(vOM)}")
    I("s_waitcnt lgkmcnt(0)")
    I("s_barrier")
    R = 80
    for w in range(4):
        for k in range(4):
            I(f"ds_read_b128 {v(R+16*w+4*k,4)}, {v(vT)} offset:{4096*w+1024*k}")
            if w*4+k == 7: I("s_waitcnt lgkmcnt(4)")
    BF = 32
    for p in range(8):
        I(f"v_lshlrev_b32 {v(BF+2*p)}, 16, {v(BB+p)}")
        I(f"v_and_b32 {v(BF+2*p+1)}, 0xffff0000, {v(BB+p)}")
    for r in range(16): I(f"v_mul_f32 {v(BF+r)}, {v(BF+r)}, {v(vOM)}")
    I("s_waitcnt lgkmcnt(8)")
    for p in range(8): I(f"v_pk_add_f32 {v(R+2*p,2)}, {v(R+2*p,2)}, {v(R+16+2*p,2)}")
    I("s_waitcnt lgkmcnt(0)")
    for p in range(8): I(f"v_pk_add_f32 {v(R+32+2*p,2)}, {v(R+32+2*p,2)}, {v(R+48+2*p,2)}")
    for p in range(8): I(f"v_pk_add_f32 {v(R+2*p,2)}, {v(R+2*p,2)}, {v(R+32+2*p,2)}")
    for r in range(16): I(f"v_fma_f32 {v(R+r)}, {v(R+r)}, {v(vGG)}, {v(BF+r)}")
    for p in range(8): I(f"v_cvt_pk_bf16_f32 {v(BB+p)}, {v(R+2*p)}, {v(R+2*p+1)}")
    I(f"global_store_dwordx4 {v(vT+2)}, {v(BB,4)}, {s(S_OUT,2)}")
    I(f"global_store_dwordx4 {v(vT+2)}, {v(BB+4,4)}, {s(S_OUT,2)} offset:16")
    if k1b.STAMP:
        I("s_add_u32 s2, s2, 256")
        stamp_out(A, 4)
    A.label("K2_exit")
    I("s_endpgm")
    return A
```

```python
import sys
from asmlib import *
from k1b import *
import importlib

HEADER = open("gated_mix__linear_attn_block__ssm_conv_s4d__prompt.s.ref").read().split("; Override launch")[0]

def kernel_desc(name, vgpr, sgpr=96, accum=None):
    accum = accum or ((vgpr + 3)//4*4)
    return f""".p2align 6
.amdhsa_kernel {name}
  .amdhsa_next_free_vgpr {vgpr}
  .amdhsa_next_free_sgpr {sgpr}
  .amdhsa_accum_offset {accum}
  .amdhsa_group_segment_fixed_size 0
  .amdhsa_kernarg_size 112
  .amdhsa_user_sgpr_count 2
  .amdhsa_user_sgpr_kernarg_segment_ptr 1
  .amdhsa_system_sgpr_workgroup_id_x 1
.end_amdhsa_kernel
"""

def k1(parts=("A","B")):
    A = Asm(); I = A.I
    A.raw(".globl k1_kernel\n.p2align 8\n.type k1_kernel,@function\nk1_kernel:")
    I("s_cmp_ge_u32 s2, 256")
    I("s_cbranch_scc1 K1_exit")
    import k1b
    if k1b.STAMP:
        I("s_memtime s[72:73]")
        I("s_memrealtime s[92:93]")
    I("s_load_dwordx16 s[16:31], s[0:1], 0")
    I("s_load_dwordx8 s[32:39], s[0:1], 64")
    I("s_load_dwordx4 s[40:43], s[0:1], 96")
    I("v_lshrrev_b32 v1, 6, v0")
    I(f"s_and_b32 {s(S_XCD)}, s2, 7")
    I(f"s_lshr_b32 {s(S_J)}, s2, 3")
    I(f"v_readfirstlane_b32 {s(S_WV)}, v1")
    I(f"s_cmp_ge_u32 {s(S_J)}, 16")
    A.branch("s_cbranch_scc1 K1_A")
    if "B" in parts: gen_B(A)
    else: I("s_endpgm")
    A.label("K1_A")
    if "A" in parts:
        import k1a
        k1a.gen_A(A)
    A.label("K1_exit")
    I("s_endpgm")
    return A

def build(parts=("A","B"), with_k2=True, path="gated_mix__linear_attn_block__ssm_conv_s4d__prompt.s"):
    out = HEADER
    out += "; @launch kernel=k1_kernel grid=(256,1,1) block=(512,1,1) lds=163840\n"
    if with_k2:
        import k2
        out += k2.LAUNCH
    out += '.amdgcn_target "amdgcn-amd-amdhsa--gfx950"\n.text\n'
    a1 = k1(parts)
    out += a1.text()
    print("k1 instrs", a1.count, "nops", a1.nops)
    if with_k2:
        a2 = k2.gen()
        out += a2.text()
        print("k2 instrs", a2.count, "nops", a2.nops)
    out += '.section .rodata,"a"\n'
    out += kernel_desc("k1_kernel", 256)
    if with_k2: out += kernel_desc("k2_kernel", k2.VGPRS)
    open(path, "w").write(out)

if __name__ == "__main__":
    if "stamp" in sys.argv:
        import k1b; k1b.STAMP = True
    if len(sys.argv) > 1 and sys.argv[1] == "B":
        build(("B",), False, "kB.s")
    elif len(sys.argv) > 1 and sys.argv[1] == "AB":
        build(("A","B"), False, "kAB.s")
    elif "stamp" in sys.argv:
        build(path="kS.s")
    else:
        build()
```

```python
from asmlib import *
from k1b import *
import k1b

LDS = 4*16384 + 4*2048
LAUNCH = f"; @launch kernel=k2_kernel grid=(256,1,1) block=(256,1,1) lds={LDS}\n"
VGPRS = 256
BTOFF = 65536
DBGSTAMP = True

def gen():
    A = Asm(); I = A.I
    A.raw(".globl k2_kernel\n.p2align 8\n.type k2_kernel,@function\nk2_kernel:")
    I("s_cmp_ge_u32 s2, 256")
    I("s_cbranch_scc1 K2_exit")
    if k1b.STAMP:
        I("s_memtime s[72:73]")
        I("s_memrealtime s[92:93]")
    I(f"s_load_dwordx2 {s(S_WO,2)}, s[0:1], 16")
    I(f"s_load_dwordx2 {s(S_OUT,2)}, s[0:1], 88")
    I(f"s_load_dwordx2 {s(S_WS,2)}, s[0:1], 104")
    sRB, sCB, sT, sT2 = 44, 45, 46, 47
    sSRO, sSRB = 52, 56
    sPQ, sAC = 60, 62
    sEPS = 64
    I("v_lshrrev_b32 v1, 6, v0")
    I(f"s_and_b32 {s(sT)}, s2, 7")
    I(f"v_readfirstlane_b32 {s(S_WV)}, v1")
    I(f"s_lshl_b32 {s(sRB)}, {s(sT)}, 2")
    I(f"s_bfe_u32 {s(sT)}, s2, 0x20003")
    I(f"s_add_u32 {s(sRB)}, {s(sRB)}, {s(sT)}")
    I(f"s_lshr_b32 {s(sCB)}, s2, 5")
    I("v_and_b32 v1, 63, v0")
    vT = 2
    vL16 = 10
    vKA = 11
    vWOA = 12
    vTR = 13
    vBTA = 14
    I(f"v_lshlrev_b32 {v(vL16)}, 4, v1")
    I(f"v_and_b32 {v(vT)}, 31, v1")
    I(f"v_lshrrev_b32 {v(vT+1)}, 5, v1")
    I(f"v_lshl_add_u32 {v(vT+2)}, {v(vT+1)}, 4, {v(vT)}")
    I(f"v_lshlrev_b32 {v(vT+2)}, 5, {v(vT+2)}")
    I(f"v_lshlrev_b32 {v(vT+3)}, 5, {v(vT+1)}")
    I(f"v_add_u32 {v(vT+3)}, 4096, {v(vT+3)}")
    I(f"v_cmp_gt_u32 vcc, 16, {v(vT)}")
    I(f"v_cndmask_b32 {v(vKA)}, {v(vT+3)}, {v(vT+2)}, vcc")
    I(f"v_mov_b32 {v(vT+4)}, 64")
    I(f"v_mov_b32 {v(vT+5)}, 1024")
    vKS = 15
    I(f"v_cndmask_b32 {v(vKS)}, {v(vT+4)}, {v(vT+5)}, vcc")
    I(f"v_lshrrev_b32 {v(vT)}, 3, v1")
    I(f"v_and_b32 {v(vT+2)}, 7, v1")
    I(f"v_bfe_u32 {v(vT+3)}, v1, 4, 1")
    I(f"v_lshlrev_b32 {v(vT+3)}, 2, {v(vT+3)}")
    I(f"v_xor_b32 {v(vT+2)}, {v(vT+2)}, {v(vT+3)}")
    I(f"v_lshlrev_b32 {v(vT+2)}, 4, {v(vT+2)}")
    I(f"v_lshl_add_u32 {v(vWOA)}, {v(vT)}, 10, {v(vT+2)}")
    I(f"v_lshrrev_b32 {v(vT)}, 2, v1")
    I(f"v_and_b32 {v(vT+2)}, 3, v1")
    I(f"v_lshlrev_b32 {v(vT+2)}, 4, {v(vT+2)}")
    I(f"v_lshl_add_u32 {v(vBTA)}, {v(vT)}, 12, {v(vT+2)}")
    I("s_waitcnt lgkmcnt(0)")
    stamp(A, 1)
    I(f"s_mul_i32 {s(sT)}, {s(S_WV)}, {2*4352}")
    I(f"s_add_u32 {s(sT)}, {s(sT)}, {WS_ACC}")
    I(f"s_add_u32 {s(sAC)}, {s(S_WS)}, {s(sT)}")
    I(f"s_addc_u32 {s(sAC+1)}, {s(S_WS+1)}, 0")
    KV = 16
    PQ = 80
    ACC = 144
    NUM = [208, 224]
    WF = 240
    OF = 248
    for h in range(8):
        if h == 4:
            I(f"v_lshlrev_b32 {v(vT)}, 2, {v(vKS)}")
            I(f"v_sub_u32 {v(vKA)}, {v(vKA)}, {v(vT)}")
            I(f"v_add_u32 {v(vKA)}, 4352, {v(vKA)}")
        I(f"global_load_dwordx4 {v(KV+8*h,4)}, {v(vKA)}, {s(sAC,2)}")
        I(f"global_load_dwordx4 {v(KV+8*h+4,4)}, {v(vKA)}, {s(sAC,2)} offset:16")
        I(f"v_add_u32 {v(vKA)}, {v(vKA)}, {v(vKS)}")
    I(f"s_lshl_b32 {s(sT)}, {s(sRB)}, 16")
    I(f"s_lshl_b32 {s(sT2)}, {s(S_WV)}, 13")
    I(f"s_add_u32 {s(sT)}, {s(sT)}, {s(sT2)}")
    I(f"s_add_u32 {s(sPQ)}, {s(S_WS)}, {s(sT)}")
    I(f"s_addc_u32 {s(sPQ+1)}, {s(S_WS+1)}, 0")
    I(f"s_mov_b32 {s(sSRO)}, {s(S_WO)}")
    I(f"s_mov_b32 {s(sSRO+1)}, {s(S_WO+1)}")
    I(f"s_mov_b32 {s(sSRO+2)}, 0x80000")
    I(f"s_mov_b32 {s(sSRO+3)}, 0x00020000")
    I(f"s_lshl_b32 {s(sT)}, {s(S_WV)}, 17")
    I(f"s_lshl_b32 {s(sT2)}, {s(sCB)}, 7")
    I(f"s_add_u32 {s(sT)}, {s(sT)}, {s(sT2)}")
    I(f"s_lshl_b32 m0, {s(S_WV)}, 14")
    I(f"v_add_u32 {v(vT)}, 4096, {v(vL16)}")
    I(f"v_add_u32 {v(vT+1)}, 0x8000, {v(vL16)}")
    I(f"v_add_u32 {v(vT+2)}, 0x9000, {v(vL16)}")
    for h in range(8):
        a0 = vL16 if h < 4 else vT
        a1 = vT+1 if h < 4 else vT+2
        I(f"global_load_dwordx4 {v(PQ+8*h,4)}, {v(a0)}, {s(sPQ,2)} offset:{1024*(h&3)}")
        I(f"global_load_dwordx4 {v(PQ+8*h+4,4)}, {v(a1)}, {s(sPQ,2)} offset:{1024*(h&3)}")
        for k in range(2):
            I(f"buffer_load_dwordx4 {v(vWOA)}, {s(sSRO,4)}, {s(sT)} offen lds")
            I(f"s_add_u32 m0, m0, 1024")
            I(f"s_add_u32 {s(sT)}, {s(sT)}, 8192")
    sST, sNT = 48, 49
    I(f"s_lshr_b32 {s(sST)}, {s(S_WV)}, 1")
    I(f"s_and_b32 {s(sNT)}, {s(S_WV)}, 1")
    I(f"s_add_u32 {s(sSRB)}, {s(S_WS)}, {WS_BT}")
    I(f"s_addc_u32 {s(sSRB+1)}, {s(S_WS+1)}, 0")
    I(f"s_mov_b32 {s(sSRB+2)}, 0x200000")
    I(f"s_mov_b32 {s(sSRB+3)}, 0x00020000")
    I(f"s_lshl_b32 {s(sT)}, {s(sCB)}, 18")
    I(f"s_lshl_b32 {s(sT2)}, {s(sNT)}, 17")
    I(f"s_add_u32 {s(sT)}, {s(sT)}, {s(sT2)}")
    I(f"s_lshl_b32 {s(sT2)}, {s(sRB)}, 7")
    I(f"s_add_u32 {s(sT)}, {s(sT)}, {s(sT2)}")
    I(f"s_lshl_b32 {s(sT2)}, {s(sST)}, 6")
    I(f"s_add_u32 {s(sT)}, {s(sT)}, {s(sT2)}")
    I(f"s_lshl_b32 {s(sT2)}, {s(S_WV)}, 11")
    I(f"s_add_u32 m0, {s(sT2)}, {BTOFF}")
    I(f"s_add_u32 s6, {s(sT)}, 0x10000")
    I(f"buffer_load_dwordx4 {v(vBTA)}, {s(sSRB,4)}, {s(sT)} offen lds")
    I(f"s_add_u32 m0, m0, 1024")
    I(f"v_and_b32 {v(vT+3)}, 31, v1")
    I(f"buffer_load_dwordx4 {v(vBTA)}, {s(sSRB,4)}, s6 offen lds")
    I(f"s_lshl_b32 {s(sT)}, {s(sRB)}, 8")
    I(f"s_lshl_b32 {s(sT2)}, {s(sST)}, 7")
    I(f"s_add_u32 {s(sT)}, {s(sT)}, {s(sT2)}")
    I(f"s_add_u32 {s(sT)}, {s(sT)}, {WS_G}")
    I(f"v_lshl_add_u32 {v(vT+3)}, {v(vT+3)}, 2, {s(sT)}")
    vGG = 9
    I(f"global_load_dword {v(vGG)}, {v(vT+3)}, {s(S_WS,2)}")
    I(f"v_bfe_u32 {v(vT)}, v1, 2, 2")
    I(f"v_lshrrev_b32 {v(vT+1)}, 5, v1")
    I(f"v_lshl_add_u32 {v(vT)}, {v(vT+1)}, 2, {v(vT)}")
    I(f"v_lshlrev_b32 {v(vT)}, 7, {v(vT)}")
    I(f"v_and_b32 {v(vT+1)}, 1, v1")
    I(f"v_bfe_u32 {v(vT+2)}, v1, 4, 1")
    I(f"v_lshl_add_u32 {v(vT+1)}, {v(vT+1)}, 1, {v(vT+2)}")
    I(f"v_bfe_u32 {v(vT+2)}, v1, 3, 1")
    I(f"v_lshl_add_u32 {v(vT+1)}, {v(vT+2)}, 2, {v(vT+1)}")
    I(f"v_lshl_add_u32 {v(vT)}, {v(vT+1)}, 4, {v(vT)}")
    I(f"v_bfe_u32 {v(vT+2)}, v1, 1, 1")
    I(f"v_lshl_add_u32 {v(vT)}, {v(vT+2)}, 3, {v(vT)}")
    I(f"s_lshl_b32 {s(sT)}, {s(S_WV)}, 14")
    I(f"v_add_u32 {v(vTR)}, {s(sT)}, {v(vT)}")
    vTR1 = 8
    I(f"v_xor_b32 {v(vTR1)}, 64, {v(vTR)}")
    I(f"s_mov_b32 {s(sEPS)}, 0x{f32bits(1e-6):08x}")
    I("s_waitcnt vmcnt(35)")
    stamp(A, 2)
    for h in range(8):
        for p in range(4):
            I(f"v_cvt_pk_bf16_f32 {v(KV+8*h+p)}, {v(KV+8*h+2*p)}, {v(KV+8*h+2*p+1)}")
    def num(h):
        for st in range(2):
            I(f"v_mfma_f32_32x32x16_bf16 {v(NUM[st],16)}, {v(KV+8*h,4)}, {v(PQ+8*h+4*st,4)}, 0")
    def wread(h):
        I(f"ds_read_b64_tr_b16 {v(KV+8*h+4,2)}, {v(vTR)} offset:{2048*h}")
        I(f"ds_read_b64_tr_b16 {v(KV+8*h+6,2)}, {v(vTR)} offset:{2048*h+1024}")
        w1 = WF + 4*(h & 1)
        I(f"ds_read_b64_tr_b16 {v(w1,2)}, {v(vTR1)} offset:{2048*h}")
        I(f"ds_read_b64_tr_b16 {v(w1+2,2)}, {v(vTR1)} offset:{2048*h+1024}")
    def norm(h, st):
        n = NUM[st]
        I(f"v_add_f32 {v(n+8)}, {s(sEPS)}, {v(n+8)}")
        I(f"v_rcp_f32 {v(n+8)}, {v(n+8)}")
        for p in range(4):
            I(f"v_pk_mul_f32 {v(n+2*p,2)}, {v(n+2*p,2)}, {v(n+8,2)} op_sel_hi:[1,0]")
        o = PQ + 8*h + 4*st
        for p in range(4):
            I(f"v_cvt_pk_bf16_f32 {v(o+p)}, {v(n+2*p)}, {v(n+2*p+1)}")
    def proj(h, st):
        o = PQ + 8*h + 4*st
        w0 = KV+8*h+4; w1 = WF + 4*(h & 1)
        for nt, w in ((0, w0), (1, w1)):
            d = ACC + 16*(2*st+nt)
            I(f"v_mfma_f32_32x32x16_bf16 {v(d,16)}, {v(w,4)}, {v(o,4)}, {'0' if h == 0 else v(d,16)}")
    for h in range(8):
        I(f"s_waitcnt vmcnt({3 + 4*(7-h)})")
        wread(h)
        num(h)
        if h > 0:
            proj(h-1, 0); proj(h-1, 1)
        norm(h, 0); norm(h, 1)
        I("s_waitcnt lgkmcnt(0)")
    proj(7, 0); proj(7, 1)
    stamp(A, 3)
    I("s_barrier")
    I(f"s_lshl_b32 {s(sT)}, {s(S_WV)}, 12")
    I(f"v_add_u32 {v(vT)}, {s(sT)}, {v(vL16)}")
    for t in range(4):
        for k in range(4):
            I(f"ds_write_b128 {v(vT)}, {v(ACC+16*t+4*k,4)} offset:{16384*t+1024*k}")
    I(f"v_bfe_u32 {v(vT+1)}, v1, 2, 2")
    I(f"v_lshrrev_b32 {v(vT+2)}, 5, v1")
    I(f"v_lshl_add_u32 {v(vT+1)}, {v(vT+2)}, 4, {v(vT+1)}")
    I(f"v_lshlrev_b32 {v(vT+1)}, 6, {v(vT+1)}")
    I(f"v_bfe_u32 {v(vT+2)}, v1, 4, 1")
    I(f"v_lshl_add_u32 {v(vT+1)}, {v(vT+2)}, 5, {v(vT+1)}")
    I(f"v_and_b32 {v(vT+2)}, 3, v1")
    I(f"v_lshl_add_u32 {v(vT+1)}, {v(vT+2)}, 3, {v(vT+1)}")
    I(f"s_lshl_b32 {s(sT)}, {s(S_WV)}, 11")
    I(f"s_add_u32 {s(sT)}, {s(sT)}, {BTOFF}")
    I(f"v_add_u32 {v(vT+1)}, {s(sT)}, {v(vT+1)}")
    I("s_waitcnt vmcnt(0)")
    BB = 16
    for j in range(4):
        I(f"ds_read_b64_tr_b16 {v(BB+2*j,2)}, {v(vT+1)} offset:{256*j}")
    I(f"s_lshl_b32 {s(sT)}, {s(S_WV)}, 14")
    I(f"v_add_u32 {v(vT)}, {s(sT)}, {v(vL16)}")
    I(f"v_and_b32 {v(vT+2)}, 31, v1")
    I(f"v_lshrrev_b32 {v(vT+3)}, 5, v1")
    I(f"v_lshlrev_b32 {v(vT+3)}, 5, {v(vT+3)}")
    I(f"v_lshl_add_u32 {v(vT+2)}, {v(vT+2)}, 10, {v(vT+3)}")
    I(f"s_lshl_b32 {s(sT)}, {s(sRB)}, 16")
    I(f"s_lshl_b32 {s(sT2)}, {s(sST)}, 15")
    I(f"s_add_u32 {s(sT)}, {s(sT)}, {s(sT2)}")
    I(f"s_lshl_b32 {s(sT2)}, {s(sCB)}, 7")
    I(f"s_add_u32 {s(sT)}, {s(sT)}, {s(sT2)}")
    I(f"s_lshl_b32 {s(sT2)}, {s(sNT)}, 6")
    I(f"s_add_u32 {s(sT)}, {s(sT)}, {s(sT2)}")
    I(f"v_add_u32 {v(vT+2)}, {s(sT)}, {v(vT+2)}")
    vOM = 7
    I(f"v_sub_f32 {v(vOM)}, 1.0, {v(vGG)}")
    I(f"v_cvt_pk_bf16_f32 {v(vOM)}, {v(vOM)}, {v(vOM)}")
    I(f"v_lshlrev_b32 {v(vOM)}, 16, {v(vOM)}")
    I("s_waitcnt lgkmcnt(0)")
    I("s_barrier")
    R = 80
    for w in range(4):
        for k in range(4):
            I(f"ds_read_b128 {v(R+16*w+4*k,4)}, {v(vT)} offset:{4096*w+1024*k}")
            if w*4+k == 7: I("s_waitcnt lgkmcnt(4)")
    BF = 32
    for p in range(8):
        I(f"v_lshlrev_b32 {v(BF+2*p)}, 16, {v(BB+p)}")
        I(f"v_and_b32 {v(BF+2*p+1)}, 0xffff0000, {v(BB+p)}")
    for r in range(16): I(f"v_mul_f32 {v(BF+r)}, {v(BF+r)}, {v(vOM)}")
    I("s_waitcnt lgkmcnt(8)")
    for p in range(8): I(f"v_pk_add_f32 {v(R+2*p,2)}, {v(R+2*p,2)}, {v(R+16+2*p,2)}")
    I("s_waitcnt lgkmcnt(0)")
    for p in range(8): I(f"v_pk_add_f32 {v(R+32+2*p,2)}, {v(R+32+2*p,2)}, {v(R+48+2*p,2)}")
    for p in range(8): I(f"v_pk_add_f32 {v(R+2*p,2)}, {v(R+2*p,2)}, {v(R+32+2*p,2)}")
    for r in range(16): I(f"v_fma_f32 {v(R+r)}, {v(R+r)}, {v(vGG)}, {v(BF+r)}")
    for p in range(8): I(f"v_cvt_pk_bf16_f32 {v(BB+p)}, {v(R+2*p)}, {v(R+2*p+1)}")
    I(f"global_store_dwordx4 {v(vT+2)}, {v(BB,4)}, {s(S_OUT,2)}")
    I(f"global_store_dwordx4 {v(vT+2)}, {v(BB+4,4)}, {s(S_OUT,2)} offset:16")
    if k1b.STAMP:
        I("s_add_u32 s2, s2, 256")
        stamp_out(A, 4)
        if DBGSTAMP:
            I("s_waitcnt vmcnt(0)")
            I(f"s_or_b32 s6, s2, {s(S_WV)}")
            I("s_cmp_eq_u32 s6, 256")
            A.branch("s_cbranch_scc0 K2_exit")
            I(f"s_load_dwordx2 {s(S_DBG,2)}, s[0:1], 96")
            offs = [(0*8+7)*64+56, (0*8+7)*64+60, (0*8+7)*64+0, (0*8+7)*64+32,
                    (128*8+0)*64+56, (128*8+0)*64+60, (128*8+0)*64+0, (128*8+0)*64+8, (128*8+0)*64+12, (128*8+0)*64+16,
                    (256*8)*64+56, (256*8)*64+60, (256*8)*64+0, (256*8)*64+8, (256*8)*64+12, (256*8)*64+16]
            I("v_mov_b32 v2, 0")
            for i, o in enumerate(offs):
                I(f"s_mov_b32 s6, {o + k1b.WS_STAMP}")
                I(f"v_writelane_b32 v2, s6, {i}")
            I("v_lshlrev_b32 v3, 2, v1")
            I("v_cmp_gt_u32 vcc, 16, v1")
            I("s_and_saveexec_b64 s[6:7], vcc")
            I(f"global_load_dword v4, v2, {s(S_WS,2)} sc0 sc1")
            I("s_waitcnt vmcnt(0) lgkmcnt(0)")
            I(f"global_store_dword v3, v4, {s(S_DBG,2)}")
    A.label("K2_exit")
    I("s_endpgm")
    return A
```

```python
import re

TRANS = {"v_exp_f32","v_log_f32","v_rcp_f32","v_rsq_f32","v_sqrt_f32","v_sin_f32","v_cos_f32","v_rcp_iflag_f32"}
MFMA_PASSES = {
    "v_mfma_f32_32x32x16_bf16": 8, "v_mfma_f32_16x16x32_bf16": 4,
    "v_mfma_f32_32x32x16_f16": 8, "v_mfma_f32_16x16x32_f16": 4,
}

def parse_reg(tok):
    tok = tok.strip()
    tok = re.sub(r"^-", "", tok)
    m = re.match(r"^abs\((.*)\)$", tok)
    if m: tok = m.group(1)
    m = re.match(r"^\|(.*)\|$", tok)
    if m: tok = m.group(1)
    m = re.match(r"^([vsa])(\d+)$", tok)
    if m: return {(m.group(1), int(m.group(2)))}
    m = re.match(r"^([vsa])\[(\d+):(\d+)\]$", tok)
    if m: return {(m.group(1), i) for i in range(int(m.group(2)), int(m.group(3)) + 1)}
    if tok in ("vcc", "vcc_lo", "vcc_hi"): return {("vcc",)}
    if tok in ("exec", "exec_lo", "exec_hi"): return {("exec",)}
    if tok == "m0": return {("m0",)}
    return set()

class Ins:
    __slots__ = ("text","op","kind","wr","rd","mf_a","mf_b","mf_c","passes","ws","srd")
    pass

def split_ops(s):
    out, depth, cur = [], 0, ""
    for ch in s:
        if ch in "[(": depth += 1
        if ch in "])": depth -= 1
        if ch == "," and depth == 0:
            out.append(cur.strip()); cur = ""
        else:
            cur += ch
    if cur.strip(): out.append(cur.strip())
    return out

def analyze(text):
    t = text.split(";")[0].strip()
    parts = t.split(None, 1)
    op = parts[0]
    rest = parts[1] if len(parts) > 1 else ""
    ops = split_ops(rest)
    toks = []
    mods = ""
    for i, o in enumerate(ops):
        sp = o.split()
        toks.append(sp[0] if sp else "")
        if len(sp) > 1: mods += " " + " ".join(sp[1:])
    I = Ins(); I.text = text; I.op = op; I.wr = set(); I.rd = set(); I.mf_a = I.mf_b = I.mf_c = set(); I.passes = 0; I.ws = 1
    base = re.sub(r"_e(32|64)$", "", op)
    R = [parse_reg(x) for x in toks]
    if base.startswith("v_mfma"):
        I.kind = "mfma"; I.passes = MFMA_PASSES[base]
        I.wr = R[0]; I.mf_a = R[1]; I.mf_b = R[2]; I.mf_c = R[3]; I.rd = R[1] | R[2] | R[3]
    elif base.startswith("v_"):
        I.kind = "trans" if base in TRANS else "valu"
        if base.startswith("v_cmp"):
            I.wr = R[0]; I.rd = set().union(*R[1:])
        elif base in ("v_add_co_u32","v_sub_co_u32","v_subrev_co_u32","v_addc_co_u32","v_subb_co_u32","v_div_scale_f32","v_mad_u64_u32"):
            I.wr = R[0] | R[1]; I.rd = set().union(*R[2:])
        elif base in ("v_permlane32_swap_b32","v_permlane16_swap_b32","v_swap_b32"):
            I.wr = R[0] | R[1]; I.rd = R[0] | R[1]
        elif base in ("v_fmac_f32","v_pk_fmac_f16","v_dot2c_f32_bf16","v_writelane_b32"):
            I.wr = R[0]; I.rd = set().union(*R)
        elif base == "v_nop":
            pass
        else:
            I.wr = R[0]; I.rd = set().union(*R[1:]) if len(R) > 1 else set()
            if base == "v_cndmask_b32" and len(R) == 3: I.rd |= {("vcc",)}
    elif base.startswith("buffer_") or base.startswith("global_"):
        I.kind = "vmem"
        lds = " lds" in mods or "_lds_" in base
        if "load" in base and not lds:
            I.wr = R[0]; I.rd = set().union(*R[1:])
        elif "atomic" in base and ("sc0" in mods):
            if base.startswith("global_"):
                I.wr = R[0]; I.rd = set().union(*R[1:])
            else:
                I.wr = R[0]; I.rd = set().union(*R)
        else:
            I.rd = set().union(*R)
        if lds: I.rd |= {("m0",)}
    elif base.startswith("ds_"):
        I.kind = "ds"
        if "read" in base or "bpermute" in base or "permute" in base or "swizzle" in base or "_rtn" in base:
            I.wr = R[0]; I.rd = set().union(*R[1:])
            if "d16" in base: I.rd |= R[0]
        else:
            I.rd = set().union(*R)
        if "addtid" in base: I.rd |= {("m0",)}
    elif base.startswith("s_"):
        if base == "s_nop":
            I.kind = "nop"; I.ws = int(toks[0], 0) + 1
        elif base.startswith(("s_load","s_buffer_load","s_memtime","s_memrealtime","s_atomic")):
            I.kind = "smem"; I.wr = R[0]; I.rd = set().union(*R[1:]) if len(R) > 1 else set()
        elif base.startswith(("s_waitcnt","s_barrier","s_endpgm","s_branch","s_cbranch","s_setprio","s_sleep","s_cmp","s_bitcmp")):
            I.kind = "sctl"; I.rd = set().union(*R) if R else set()
        else:
            I.kind = "salu"; I.wr = R[0] if R else set(); I.rd = set().union(*R[1:]) if len(R) > 1 else set()
            if "saveexec" in base: I.wr |= {("exec",)}
    else:
        raise ValueError("unknown instr: " + text)
    return I

def vonly(s): return {r for r in s if r[0] in ("v","a")}
def sonly(s): return {r for r in s if r[0] in ("s","vcc")}

def need(p, c):
    n = 0
    pv = p.kind in ("valu","trans")
    cv = c.kind in ("valu","trans")
    cb = re.sub(r"_e(32|64)$", "", c.op)
    if pv:
        wv = vonly(p.wr); ws = sonly(p.wr)
        if c.kind == "mfma" and wv & c.rd: n = max(n, 2)
        if p.kind == "trans" and cv and (wv & (c.rd | c.wr)): n = max(n, 1)
        if cb in ("v_readfirstlane_b32","v_readlane_b32") and wv & c.rd: n = max(n, 1)
        if cb.startswith("v_permlane") and wv & c.rd: n = max(n, 2)
        if "dpp" in c.text or "row_" in c.text or "quad_perm" in c.text:
            if wv & c.rd: n = max(n, 2)
        if ws:
            if cv and ws & c.rd: n = max(n, 2)
            if cb in ("v_readlane_b32","v_writelane_b32") and ws & c.rd: n = max(n, 4)
            if c.kind == "vmem" and ws & c.rd: n = max(n, 5)
            if c.kind in ("salu","sctl","smem") and ws & c.rd: n = max(n, 1)
            if cb.startswith("s_cbranch_vcc") and ("vcc",) in ws: n = max(n, 5)
        if ("op_sel" in p.text and not p.op.startswith("v_pk")) or "sdwa" in p.text or "dst_sel" in p.text:
            if cv and wv & (c.rd | c.wr): n = max(n, 1)
    if p.kind == "mfma":
        P = p.passes
        far = {4: 8, 8: 12}[P]; part = {4: 6, 8: 10}[P]; war = {4: 3, 8: 7}[P]
        if c.kind == "mfma":
            if p.wr & (c.mf_a | c.mf_b): n = max(n, far)
            if p.wr & c.mf_c:
                if not (p.wr == c.mf_c and p.passes == c.passes): n = max(n, part)
            elif p.wr & c.wr:
                n = max(n, part)
        else:
            if p.wr & (c.rd | c.wr): n = max(n, far)
            if cv and (p.mf_c & c.wr): n = max(n, war)
    if p.kind == "salu" and ("m0",) in p.wr and ("m0",) in c.rd and c.kind in ("vmem","ds"): n = max(n, 1)
    if p.kind == "vmem" and "store" in p.op and ("x4" in p.op or "x3" in p.op):
        if vonly(p.rd) & vonly(c.wr): n = max(n, 2 if cv else 1)
    return n

class Asm:
    def __init__(self):
        self.lines = []
        self.hist = []
        self.nops = 0
        self.count = 0
    def raw(self, s): self.lines.append(s)
    def comment(self, s): self.lines.append("    ; " + s)
    def label(self, name, flush=True):
        if flush: self.flush()
        self.lines.append(name + ":")
    def flush(self):
        d = 0; worst = 0
        for p in reversed(self.hist):
            w = 0
            if p.kind == "mfma": w = {4: 8, 8: 12}[p.passes]
            elif p.kind in ("valu","trans"): w = 5 if sonly(p.wr) else 2
            elif p.kind == "vmem" and "store" in p.op: w = 2
            elif p.kind == "salu" and ("m0",) in p.wr: w = 1
            worst = max(worst, w - d)
            d += p.ws
            if d > 20: break
        self._nop(worst)
        self.hist = []
    def _nop(self, n):
        while n > 0:
            k = min(n, 16)
            t = f"s_nop {k-1}"
            self.lines.append("    " + t); self.hist.append(analyze(t)); self.nops += k; n -= k
    def I(self, text):
        c = analyze(text)
        d = 0; worst = 0
        for p in reversed(self.hist):
            worst = max(worst, need(p, c) - d)
            d += p.ws
            if d > 20: break
        self._nop(worst)
        if c.op.startswith(("s_branch","s_cbranch")):
            pass
        self.lines.append("    " + text)
        self.hist.append(c); self.count += 1
        if len(self.hist) > 40: self.hist = self.hist[-30:]
    def branch(self, text):
        self.flush(); self.I(text)
    def text(self): return "\n".join(self.lines) + "\n"

def v(n, k=1): return f"v{n}" if k == 1 else f"v[{n}:{n+k-1}]"
def s(n, k=1): return f"s{n}" if k == 1 else f"s[{n}:{n+k-1}]"
def a(n, k=1): return f"a{n}" if k == 1 else f"a[{n}:{n+k-1}]"

class LQ:
    def __init__(self, A):
        self.A = A; self.n = 0; self.done = 0; self.tag = {}
    def issue(self, text, tag=None):
        if self.n - self.done >= 15:
            self.wait_idx(self.n - 12)
        self.A.I(text); self.n += 1
        if tag is not None: self.tag[tag] = self.n
    def wait_idx(self, idx):
        if idx > self.done:
            self.A.I(f"s_waitcnt lgkmcnt({self.n - idx})"); self.done = idx
    def need(self, *tags):
        idx = max(self.tag[t] for t in tags)
        self.wait_idx(idx)
    def drain(self):
        self.wait_idx(self.n)
    def reset(self):
        self.done = self.n
```

```python
from asmlib import *
from k1b import *
import k1b
import os
NOBAR = bool(os.environ.get('NOBAR')); NODMA = bool(os.environ.get('NODMA')); NOQ = bool(os.environ.get('NOQ'))

SLOT = 40960
GWOFF = 3 * SLOT
RED = GWOFF + 1024
REDSZ = 4352
QX = 2 * SLOT

def phi16(A, acc, out, tmp, sL, sEPS):
    I = A.I
    for p in range(8):
        I(f"v_pk_mul_f32 {v(tmp+2*p,2)}, {v(acc+2*p,2)}, {s(sL,2)}")
    for r in range(16):
        I(f"v_exp_f32 {v(tmp+r)}, {v(tmp+r)} clamp")
        I(f"v_max_f32 {v(acc+r)}, {s(sEPS)}, {v(acc+r)}")
    for p in range(8):
        I(f"v_pk_add_f32 {v(acc+2*p,2)}, {v(acc+2*p,2)}, {v(tmp+2*p,2)}")
    for p in range(8):
        I(f"v_cvt_pk_bf16_f32 {v(out+p)}, {v(acc+2*p)}, {v(acc+2*p+1)}")

def gen_A(A):
    I = A.I
    sRB, sHQ, sROT, sT, sT2, sLW = 44, 45, 46, 47, 48, 49
    sRH, sHP = 50, 51
    sSRX, sSRW, sSRA = 52, 56, 60
    sL, sEPS = 64, 66
    sSLOT, sCH, sCNT = 67, 68, 69
    sCX, sCW = 8, 9
    sPQ = 70
    sMX, sMW, sRS = 15, 7, 96
    sGC = 97
    vXA, vWA, vT = 4, 8, 10
    I(f"s_sub_u32 {s(sT)}, {s(S_J)}, 16")
    I(f"s_lshr_b32 {s(sRB)}, {s(sT)}, 2")
    I(f"s_and_b32 {s(sHQ)}, {s(sT)}, 3")
    I(f"s_add_u32 {s(sROT)}, {s(sRB)}, {s(sHQ)}")
    I(f"s_and_b32 {s(sROT)}, {s(sROT)}, 3")
    I(f"s_lshl_b32 {s(sROT)}, {s(sROT)}, 1")
    I(f"s_lshr_b32 {s(sT)}, {s(S_XCD)}, 1")
    I(f"s_lshl_b32 {s(sT)}, {s(sT)}, 2")
    I(f"s_add_u32 {s(sRB)}, {s(sRB)}, {s(sT)}")
    I(f"s_and_b32 {s(sT)}, {s(S_XCD)}, 1")
    I(f"s_lshl_b32 {s(sT)}, {s(sT)}, 2")
    I(f"s_add_u32 {s(sHQ)}, {s(sHQ)}, {s(sT)}")
    I("v_and_b32 v1, 63, v0")
    I(f"s_and_b32 {s(sLW)}, {s(S_WV)}, 3")
    I(f"s_cmp_lt_u32 {s(S_WV)}, 4")
    A.branch("s_cbranch_scc1 A_kv")

    def frag_addrs():
        I(f"s_lshr_b32 {s(sRH)}, {s(sLW)}, 1")
        I(f"s_and_b32 {s(sHP)}, {s(sLW)}, 1")
        I(f"v_and_b32 {v(vT)}, 31, v1")
        I(f"v_lshrrev_b32 {v(vT+1)}, 5, v1")
        I(f"v_bfe_u32 {v(vT+2)}, {v(vT)}, 1, 3")
        I(f"v_xor_b32 {v(vT+2)}, {v(vT+2)}, {v(vT+1)}")
        I(f"s_lshl_b32 {s(sT)}, {s(sRH)}, 13")
        I(f"v_lshl_add_u32 {v(vT+3)}, {v(vT)}, 7, {s(sT)}")
        for ks in range(4):
            I(f"v_xor_b32 {v(vT+4)}, {2*ks}, {v(vT+2)}")
            I(f"v_lshl_add_u32 {v(vXA+ks)}, {v(vT+4)}, 4, {v(vT+3)}")
        I(f"v_bfe_u32 {v(vT)}, v1, 2, 2")
        I(f"v_lshl_add_u32 {v(vT+2)}, {v(vT+1)}, 3, {v(vT)}")
        I(f"v_lshlrev_b32 {v(vT+2)}, 7, {v(vT+2)}")
        I(f"v_bfe_u32 {v(vT+3)}, v1, 4, 1")
        I(f"v_bfe_u32 {v(vT+4)}, v1, 1, 1")
        I(f"v_lshl_add_u32 {v(vT+3)}, {v(vT+3)}, 1, {v(vT+4)}")
        I(f"v_bfe_u32 {v(vT+4)}, v1, 3, 1")
        I(f"v_xor_b32 {v(vT+4)}, {s(sHP)}, {v(vT+4)}")
        I(f"v_lshl_add_u32 {v(vT+3)}, {v(vT+4)}, 2, {v(vT+3)}")
        I(f"v_lshl_add_u32 {v(vT+2)}, {v(vT+3)}, 4, {v(vT+2)}")
        I(f"v_and_b32 {v(vT+4)}, 1, v1")
        I(f"v_lshl_add_u32 {v(vT+2)}, {v(vT+4)}, 3, {v(vT+2)}")
        I(f"v_add_u32 {v(vWA)}, 16384, {v(vT+2)}")
        I(f"s_mov_b32 {s(sL)}, 0x{f32bits(LOG2E):08x}")
        I(f"s_mov_b32 {s(sL+1)}, 0x{f32bits(LOG2E):08x}")
        I(f"s_mov_b32 {s(sEPS)}, 0x{f32bits(1e-6):08x}")
        I(f"s_mov_b32 {s(sRS)}, 0")
        I(f"s_mov_b32 s6, {SLOT}")
    def adv_slot(extra=()):
        I(f"s_add_u32 {s(sRS)}, {s(sRS)}, {SLOT}")
        I(f"s_cmp_eq_u32 {s(sRS)}, {3*SLOT}")
        I(f"s_cselect_b32 {s(sT2)}, {-2*SLOT & 0xffffffff}, s6")
        I(f"s_cselect_b32 {s(sRS)}, 0, {s(sRS)}")
        for r in list(range(vXA, vXA+5)) + list(extra): I(f"v_add_u32 {v(r)}, {s(sT2)}, {v(r)}")
    def acc_srd():
        I(f"s_mul_i32 {s(sT)}, {s(sHQ)}, {REDSZ}")
        I(f"s_add_u32 {s(sT)}, {s(sT)}, {WS_ACC}")
        I(f"s_add_u32 {s(sSRA)}, {s(S_WS)}, {s(sT)}")
        I(f"s_addc_u32 {s(sSRA+1)}, {s(S_WS+1)}, 0")
        I(f"s_mov_b32 {s(sSRA+2)}, {REDSZ}")
        I(f"s_mov_b32 {s(sSRA+3)}, 0x00020000")
    def atomics(post=None):
        I(f"v_lshlrev_b32 {v(vT)}, 2, v0")
        I(f"v_add_u32 {v(vT+1)}, {RED}, {v(vT)}")
        I("s_waitcnt lgkmcnt(0)")
        stamp(A, 7)
        I("s_barrier")
        stamp(A, 8)
        for k in range(3):
            I(f"ds_read_b32 {v(24+2*k)}, {v(vT+1)} offset:{2048*k}")
            I(f"ds_read_b32 {v(25+2*k)}, {v(vT+1)} offset:{2048*k+REDSZ}")
        I(f"v_add_u32 {v(vT+2)}, 4096, {v(vT)}")
        for k in range(3):
            I(f"s_waitcnt lgkmcnt({4-2*k})")
            I(f"v_add_f32 {v(24+2*k)}, {v(24+2*k)}, {v(25+2*k)}")
            if k < 2: I(f"buffer_atomic_add_f32 {v(24+2*k)}, {v(vT)}, {s(sSRA,4)}, 0 offen offset:{2048*k}")
            else: I(f"buffer_atomic_add_f32 {v(24+2*k)}, {v(vT+2)}, {s(sSRA,4)}, 0 offen")
        if post: post()
        stamp_out(A, 9)
        I("s_endpgm")

    vX0, vX1, vW = 2, 3, 9
    I(f"v_lshrrev_b32 {v(vT)}, 3, v1")
    I(f"v_and_b32 {v(vT+1)}, 7, v1")
    I(f"v_lshrrev_b32 {v(vT+2)}, 4, v1")
    I(f"v_xor_b32 {v(vT+3)}, {v(vT+1)}, {v(vT+2)}")
    I(f"v_lshlrev_b32 {v(vT+3)}, 4, {v(vT+3)}")
    I(f"v_lshl_add_u32 {v(vX0)}, {v(vT)}, 10, {v(vT+3)}")
    I(f"v_xor_b32 {v(vX1)}, 64, {v(vX0)}")
    I(f"v_and_b32 {v(vT+2)}, 1, {v(vT+2)}")
    I(f"v_lshlrev_b32 {v(vT+2)}, 2, {v(vT+2)}")
    I(f"v_xor_b32 {v(vT+3)}, {v(vT+1)}, {v(vT+2)}")
    I(f"v_lshlrev_b32 {v(vT+3)}, 4, {v(vT+3)}")
    I(f"v_mul_u32_u24 {v(vW)}, 3072, {v(vT)}")
    I(f"v_add_u32 {v(vW)}, {v(vW)}, {v(vT+3)}")
    I(f"s_lshl_b32 {s(sCX)}, {s(sRB)}, 17")
    I(f"s_lshl_b32 {s(sT)}, {s(sLW)}, 15")
    I(f"s_add_u32 {s(sCX)}, {s(sCX)}, {s(sT)}")
    I(f"s_mul_i32 {s(sCW)}, {s(sLW)}, {16*3072}")
    I(f"s_lshl_b32 {s(sT)}, {s(sHQ)}, 7")
    I(f"s_add_u32 {s(sCW)}, {s(sCW)}, {s(sT)}")
    I(f"s_lshl_b32 {s(sMX)}, {s(sLW)}, 12")
    I(f"s_lshl_b32 {s(sMW)}, {s(sLW)}, 11")
    I(f"s_add_u32 {s(sMW)}, {s(sMW)}, 16384")
    I(f"s_mov_b32 {s(sSRX+2)}, 0x200000")
    I(f"s_mov_b32 {s(sSRX+3)}, 0x00020000")
    I(f"s_mov_b32 {s(sSRW+2)}, 0x180000")
    I(f"s_mov_b32 {s(sSRW+3)}, 0x00020000")
    I(f"s_mov_b32 {s(sSLOT)}, 0")
    I(f"s_mov_b32 {s(sCH)}, {s(sROT)}")
    I("s_waitcnt lgkmcnt(0)")
    stamp(A, 1)
    I(f"s_mov_b32 {s(sSRX)}, {s(S_X)}")
    I(f"s_mov_b32 {s(sSRX+1)}, {s(S_X+1)}")
    I(f"s_mov_b32 {s(sSRW)}, {s(S_WQKV)}")
    I(f"s_mov_b32 {s(sSRW+1)}, {s(S_WQKV+1)}")
    sA, sB = 10, 11
    def issue_list():
        Gs = []
        g = [f"s_lshl_b32 {s(sA)}, {s(sCH)}, 7", f"s_add_u32 {s(sA)}, {s(sA)}, {s(sCX)}", f"s_add_u32 m0, {s(sSLOT)}, {s(sMX)}",
             f"s_mul_i32 {s(sB)}, {s(sCH)}, {64*3072}"]
        for i in range(4):
            if i: g = [f"s_add_u32 m0, m0, 1024", f"s_add_u32 {s(sA)}, {s(sA)}, 8192"]
            g.append(f"buffer_load_dwordx4 {v(vX1 if i & 1 else vX0)}, {s(sSRX,4)}, {s(sA)} offen lds")
            Gs.append(g)
        order = [(1,0),(1,1),(2,0),(2,1),(0,0),(0,1)]
        for n, (p, h) in enumerate(order):
            g = []
            if n == 0: g.append(f"s_add_u32 {s(sB)}, {s(sB)}, {s(sCW)}"); g.append(f"s_add_u32 {s(sA)}, {s(sSLOT)}, {s(sMW)}")
            g.append(f"s_add_u32 m0, {s(sA)}, {p*8192 + h*1024}")
            g.append(f"s_add_u32 s12, {s(sB)}, {h*8*3072 + p*1024}")
            g.append(f"buffer_load_dwordx4 {v(vW)}, {s(sSRW,4)}, s12 offen lds")
            Gs.append(g)
        Gs[-1] += [f"s_add_u32 {s(sCH)}, {s(sCH)}, 1", f"s_and_b32 {s(sCH)}, {s(sCH)}, 7", f"s_add_u32 {s(sSLOT)}, {s(sSLOT)}, {SLOT}",
                   f"s_cmp_eq_u32 {s(sSLOT)}, {3*SLOT}", f"s_cselect_b32 {s(sSLOT)}, 0, {s(sSLOT)}"]
        return Gs
    I(f"s_mov_b32 {s(sSRA)}, {s(S_GW)}")
    I(f"s_mov_b32 {s(sSRA+1)}, {s(S_GW+1)}")
    I(f"s_mov_b32 {s(sSRA+2)}, 1024")
    I(f"s_mov_b32 {s(sSRA+3)}, 0x00020000")
    I(f"v_lshlrev_b32 {v(vT)}, 4, v1")
    I(f"s_mov_b32 m0, {GWOFF}")
    I(f"s_mov_b32 {s(sCNT)}, 0")
    I(f"buffer_load_dwordx4 {v(vT)}, {s(sSRA,4)}, 0 offen lds")
    A.label("A_lpro")
    for g in issue_list():
        for x in g: I(x)
    I(f"s_add_u32 {s(sCNT)}, {s(sCNT)}, 1")
    I(f"s_cmp_lt_u32 {s(sCNT)}, 2")
    I("s_cbranch_scc1 A_lpro")
    I(f"s_lshr_b32 {s(sRH)}, {s(sLW)}, 1")
    I(f"s_and_b32 {s(sHP)}, {s(sLW)}, 1")
    I(f"s_mov_b32 {s(sL)}, 0x{f32bits(LOG2E):08x}")
    I(f"s_mov_b32 {s(sL+1)}, 0x{f32bits(LOG2E):08x}")
    I(f"s_mov_b32 {s(sEPS)}, 0x{f32bits(1e-6):08x}")
    I(f"s_mov_b32 {s(sRS)}, 0")
    I(f"s_mov_b32 s6, {SLOT}")
    QACC = 64
    vGX, vGW, vGACC, vGF = 40, 42, 44, 48
    I(f"v_and_b32 {v(vT)}, 15, v1")
    I(f"s_lshl_b32 {s(sT)}, {s(sHQ)}, 4")
    I(f"v_add_u32 {v(vT)}, {s(sT)}, {v(vT)}")
    I(f"v_lshrrev_b32 {v(vT+1)}, 4, v1")
    I(f"v_bfe_u32 {v(vT+2)}, {v(vT)}, 1, 3")
    I(f"v_xor_b32 {v(vT+2)}, {v(vT+2)}, {v(vT+1)}")
    I(f"v_lshlrev_b32 {v(vT+2)}, 4, {v(vT+2)}")
    I(f"v_lshl_add_u32 {v(vGX)}, {v(vT)}, 7, {v(vT+2)}")
    I(f"s_lshl_b32 {s(sT)}, {s(sHP)}, 6")
    I(f"v_xor_b32 {v(vGX)}, {s(sT)}, {v(vGX)}")
    I(f"v_lshlrev_b32 {v(vGW)}, 4, {v(vT+1)}")
    I(f"s_add_u32 {s(sT)}, {s(sT)}, {GWOFF}")
    I(f"v_add_u32 {v(vGX+1)}, {s(sT)}, {v(vGW)}")
    for r in range(4): I(f"v_mov_b32 {v(vGACC+r)}, 0")
    I(f"s_mov_b32 {s(sGC)}, {s(sROT)}")
    def hstage(dma):
        I(f"s_lshl_b32 s12, {s(sGC)}, 7")
        I(f"v_add_u32 {v(vT+2)}, s12, {v(vGX+1)}")
        I(f"ds_read_b128 {v(vGF,4)}, {v(vGX)}")
        I(f"ds_read_b128 {v(vGF+4,4)}, {v(vT+2)}")
        I(f"s_add_u32 {s(sGC)}, {s(sGC)}, 1")
        I(f"s_and_b32 {s(sGC)}, {s(sGC)}, 7")
        if dma:
            for g in issue_list():
                for x in g: I(x)
        I(f"s_add_u32 {s(sRS)}, {s(sRS)}, {SLOT}")
        I(f"s_cmp_eq_u32 {s(sRS)}, {3*SLOT}")
        I(f"s_cselect_b32 {s(sT2)}, {-2*SLOT & 0xffffffff}, s6")
        I(f"s_cselect_b32 {s(sRS)}, 0, {s(sRS)}")
        I(f"v_add_u32 {v(vGX)}, {s(sT2)}, {v(vGX)}")
        I("s_waitcnt lgkmcnt(0)")
        I(f"v_mfma_f32_16x16x32_bf16 {v(vGACC,4)}, {v(vGF,4)}, {v(vGF+4,4)}, {v(vGACC,4)}")
    I("s_waitcnt vmcnt(10)")
    I(f"s_mov_b32 {s(sCNT)}, 0")
    A.label("A_qloop")
    I("s_barrier")
    hstage(not NODMA)
    I(f"s_add_u32 {s(sCNT)}, {s(sCNT)}, 1")
    I(f"s_cmp_lt_u32 {s(sCNT)}, 6")
    I("s_waitcnt vmcnt(10)")
    I("s_cbranch_scc1 A_qloop")
    I(f"s_lshl_b32 {s(sT)}, {s(sHQ)}, 2")
    I(f"v_mov_b32 v9, {s(sT)}")
    I("v_mov_b32 v3, 1")
    I(f"s_cmp_eq_u32 {s(sLW)}, 1")
    I("s_cbranch_scc0 A_qtail")
    I(f"global_load_dword v3, v9, {s(S_DBG,2)} sc0 sc1")
    A.label("A_qtail")
    I("s_barrier")
    hstage(False)
    I(f"s_add_u32 {s(sCNT)}, {s(sCNT)}, 1")
    I(f"s_cmp_lt_u32 {s(sCNT)}, 8")
    I("s_waitcnt vmcnt(0)")
    I("s_cbranch_scc1 A_qtail")
    A.flush()
    A.label("A_poll")
    I("v_readfirstlane_b32 s12, v3")
    I("s_cmp_lg_u32 s12, 0")
    I("s_cbranch_scc1 A_polled")
    I("s_sleep 2")
    I(f"global_load_dword v3, v9, {s(S_DBG,2)} sc0 sc1")
    I("s_waitcnt vmcnt(0)")
    I("s_branch A_poll")
    A.label("A_polled")
    I(f"s_lshl_b32 {s(sT)}, {s(sHP)}, 6")
    I(f"s_add_u32 {s(sT)}, {s(sT)}, {RED + 2*REDSZ}")
    I(f"v_add_u32 {v(vGX)}, {s(sT)}, {v(vGW)}")
    I(f"ds_write_b128 {v(vGX)}, {v(vGACC,4)}")
    acc_srd()
    I(f"s_lshl_b32 {s(sT)}, {s(sRB)}, 2")
    I(f"s_lshl_b32 {s(sT2)}, {s(sRH)}, 1")
    I(f"s_add_u32 {s(sT)}, {s(sT)}, {s(sT2)}")
    I(f"s_lshl_b32 {s(sT)}, {s(sT)}, 5")
    I(f"s_lshl_b32 {s(sT2)}, {s(sHQ)}, 2")
    I(f"s_add_u32 {s(sT)}, {s(sT)}, {s(sT2)}")
    I(f"s_lshl_b32 {s(sT2)}, {s(sHP)}, 1")
    I(f"s_add_u32 {s(sT)}, {s(sT)}, {s(sT2)}")
    I(f"s_lshl_b32 {s(sT)}, {s(sT)}, 10")
    I(f"s_add_u32 {s(sPQ)}, {s(S_WS)}, {s(sT)}")
    I(f"s_addc_u32 {s(sPQ+1)}, {s(S_WS+1)}, 0")
    I(f"v_lshlrev_b32 v2, 4, v1")
    I(f"v_add_u32 v3, 0x8000, v2")
    I(f"s_lshl_b32 {s(sT)}, {s(sLW)}, 13")
    I(f"s_add_u32 {s(sT)}, {s(sT)}, {QX}")
    I(f"v_add_u32 v4, {s(sT)}, v2")
    I("s_waitcnt lgkmcnt(0)")
    I("s_barrier")
    stamp(A, 3)
    for k in range(8): I(f"ds_read_b128 {v(QACC+4*k,4)}, v4 offset:{1024*k}")
    def gatefin():
        I(f"s_cmp_eq_u32 {s(sLW)}, 0")
        A.branch("s_cbranch_scc0 A_gdone")
        I(f"ds_read_b128 {v(vGF,4)}, {v(vGX)} offset:64")
        I("s_waitcnt lgkmcnt(0)")
        for r in range(4): I(f"v_add_f32 {v(vGACC+r)}, {v(vGACC+r)}, {v(vGF+r)}")
        def rb4():
            I(f"v_cvt_pk_bf16_f32 {v(vGF)}, {v(vGACC)}, {v(vGACC+1)}")
            I(f"v_cvt_pk_bf16_f32 {v(vGF+1)}, {v(vGACC+2)}, {v(vGACC+3)}")
            I(f"v_lshlrev_b32 {v(vGACC)}, 16, {v(vGF)}")
            I(f"v_and_b32 {v(vGACC+1)}, 0xffff0000, {v(vGF)}")
            I(f"v_lshlrev_b32 {v(vGACC+2)}, 16, {v(vGF+1)}")
            I(f"v_and_b32 {v(vGACC+3)}, 0xffff0000, {v(vGF+1)}")
        rb4()
        for r in range(4): I(f"v_mul_f32 {v(vGACC+r)}, 0x{f32bits(-LOG2E):08x}, {v(vGACC+r)}")
        for r in range(4): I(f"v_exp_f32 {v(vGACC+r)}, {v(vGACC+r)}")
        for r in range(4): I(f"v_add_f32 {v(vGACC+r)}, 1.0, {v(vGACC+r)}")
        for r in range(4): I(f"v_rcp_f32 {v(vGACC+r)}, {v(vGACC+r)}")
        rb4()
        I(f"s_lshl_b32 {s(sT)}, {s(sRB)}, 9")
        I(f"s_lshl_b32 {s(sT2)}, {s(sHQ)}, 6")
        I(f"s_add_u32 {s(sT)}, {s(sT)}, {s(sT2)}")
        I(f"s_add_u32 {s(sT)}, {s(sT)}, {WS_G}")
        I(f"v_add_u32 {v(vGF+2)}, {s(sT)}, {v(vGW)}")
        I(f"global_store_dwordx4 {v(vGF+2)}, {v(vGACC,4)}, {s(S_WS,2)}")
        A.label("A_gdone")
    def qepi():
        phi16(A, QACC, 16, 96, sL, sEPS)
        I(f"global_store_dwordx4 v2, v[16:19], {s(sPQ,2)}")
        I(f"global_store_dwordx4 v2, v[20:23], {s(sPQ,2)} offset:1024")
        phi16(A, QACC+16, 32, 112, sL, sEPS)
        I(f"global_store_dwordx4 v3, v[32:35], {s(sPQ,2)}")
        I(f"global_store_dwordx4 v3, v[36:39], {s(sPQ,2)} offset:1024")
        stamp(A, 6)
    gatefin()
    atomics(qepi)

    A.label("A_kv")
    I("s_getpc_b64 s[6:7]")
    A.raw("A_pc:")
    I(f"s_sub_u32 {s(sT)}, {s(S_J)}, 16")
    I(f"s_lshl_b32 {s(sT)}, {s(sT)}, 2")
    I(f"s_add_u32 {s(sT)}, {s(sT)}, {s(S_WV)}")
    I(f"s_lshl_b32 {s(sT)}, {s(sT)}, 10")
    I("s_sub_u32 s6, s6, A_pc-k1_kernel")
    I("s_subb_u32 s7, s7, 0")
    I(f"s_cmp_lt_u32 {s(sT)}, CODE_END-k1_kernel")
    I(f"s_cselect_b32 {s(sT)}, {s(sT)}, 0")
    I(f"v_lshl_add_u32 v2, v1, 4, {s(sT)}")
    I("global_load_dwordx4 v[60:63], v2, s[6:7]")
    frag_addrs()
    FR = [160, 180, 200, 220]
    ACC = 64
    K = lambda rt: ACC + 16*rt
    Q = lambda rt: ACC + 32 + 16*rt
    V = lambda rt: ACC + 64 + 16*rt
    I("s_waitcnt lgkmcnt(0)")
    stamp(A, 1)
    acc_srd()
    I(f"s_or_b32 {s(sT)}, {s(sRB)}, {s(S_WV)}")
    I(f"s_cmp_eq_u32 {s(sT)}, 0")
    A.branch("s_cbranch_scc0 A_nozero")
    for r in range(4): I(f"v_mov_b32 {v(16+r)}, 0")
    I(f"v_lshlrev_b32 {v(vT)}, 4, v1")
    for k in range(4):
        I(f"buffer_store_dwordx4 v[16:19], {v(vT)}, {s(sSRA,4)}, 0 offen offset:{1024*k} sc0 sc1")
    I(f"v_add_u32 {v(vT+1)}, 4096, {v(vT)}")
    I(f"buffer_store_dwordx4 v[16:19], {v(vT+1)}, {s(sSRA,4)}, 0 offen sc0 sc1")
    I("s_waitcnt vmcnt(0)")
    I(f"s_lshl_b32 {s(sT)}, {s(sHQ)}, 2")
    I(f"v_mov_b32 {v(vT)}, {s(sT)}")
    I(f"v_mov_b32 {v(vT+1)}, 1")
    I(f"global_store_dword {v(vT)}, {v(vT+1)}, {s(S_DBG,2)} sc0 sc1")
    A.label("A_nozero")
    for r in range(64): I(f"v_mov_b32 {v(ACC+r)}, {s(sEPS)}")
    for r in range(64, 96): I(f"v_mov_b32 {v(ACC+r)}, 0")
    I(f"s_lshl_b32 {s(sT)}, {s(sLW)}, 13")
    I(f"s_add_u32 {s(sT)}, {s(sT)}, {QX}")
    I(f"v_lshl_add_u32 v2, v1, 4, {s(sT)}")
    I(f"s_mov_b32 {s(sCNT)}, 0")
    def rlist(ks, st):
        f = FR[st]
        return [
            f"ds_read_b128 {v(f,4)}, {v(vXA+ks)}",
            f"ds_read_b64_tr_b16 {v(f+8,2)}, {v(vWA)} offset:{8192+2048*ks}",
            f"ds_read_b64_tr_b16 {v(f+10,2)}, {v(vWA)} offset:{8192+2048*ks+512}",
            f"ds_read_b64_tr_b16 {v(f+12,2)}, {v(vWA)} offset:{16384+2048*ks}",
            f"ds_read_b64_tr_b16 {v(f+14,2)}, {v(vWA)} offset:{16384+2048*ks+512}",
            f"ds_read_b128 {v(f+4,4)}, {v(vXA+ks)} offset:4096",
            f"ds_read_b64_tr_b16 {v(f+16,2)}, {v(vWA)} offset:{2048*ks}",
            f"ds_read_b64_tr_b16 {v(f+18,2)}, {v(vWA)} offset:{2048*ks+512}"]
    def mlist(st):
        f = FR[st]
        X = lambda rt: v(f+4*rt,4)
        seq = [(K(0), X(0), v(f+8,4)), (V(0), X(0), v(f+12,4)), (K(1), X(1), v(f+8,4)), (V(1), X(1), v(f+12,4)),
               (Q(0), v(f+16,4), X(0)), (Q(1), v(f+16,4), X(1))]
        return [f"v_mfma_f32_32x32x16_bf16 {v(d,16)}, {a_}, {b_}, {v(d,16)}" for d, a_, b_ in seq]
    def kstep(st, nxt, waits, hook=None):
        for n, m in enumerate(mlist(st)):
            if waits and n in waits: I(f"s_waitcnt lgkmcnt({waits[n]})")
            I(m)
            if hook and n in hook: hook[n]()
            for x in nxt[n]: I(x)
    I("s_barrier")
    stamp(A, 2)
    r0 = rlist(0, 0); r1 = rlist(1, 1)
    for r in r0 + r1[:4]: I(r)
    A.label("A_loop")
    r1 = rlist(1, 1); r2 = rlist(2, 2); r3 = rlist(3, 3); r0 = rlist(0, 0)
    sp = lambda r: [r[0:2], r[2:3], r[3:4], r[4:6], r[6:7], r[7:8]]
    kstep(0, sp(r1[4:] + r2[:4]), {0: 4})
    kstep(1, sp(r2[4:] + r3[:4]), {0: 4})
    bk = [[f"s_add_u32 {s(sRS)}, {s(sRS)}, {SLOT}", f"s_cmp_eq_u32 {s(sRS)}, {3*SLOT}",
           f"s_cselect_b32 {s(sT2)}, {-2*SLOT & 0xffffffff}, s6", f"s_cselect_b32 {s(sRS)}, 0, {s(sRS)}"],
          [f"v_add_u32 {v(vXA+r)}, {s(sT2)}, {v(vXA+r)}" for r in range(3)],
          [f"v_add_u32 {v(vXA+r)}, {s(sT2)}, {v(vXA+r)}" for r in range(3, 5)] + [f"s_add_u32 {s(sCNT)}, {s(sCNT)}, 1", f"s_cmp_lt_u32 {s(sCNT)}, 8"]]
    def bar():
        I("s_waitcnt lgkmcnt(0)")
        I("s_cbranch_scc0 A_last")
        I("s_barrier")
    kstep(2, [r3[4:6], r3[6:8], bk[0], bk[1], bk[2], r0[0:1]], {0: 4}, {5: bar})
    kstep(3, [r0[1:3], r0[3:5], r0[5:7], r0[7:8]+r1[0:1], r1[1:3], r1[3:4]], None)
    I("s_branch A_loop")
    A.label("A_last", flush=False)
    m = mlist(3)
    I(m[4]); I(m[5]); I(m[0]); I(m[2])
    for k in range(4): I(f"ds_write_b128 v2, {v(Q(0)+4*k,4)} offset:{1024*k}")
    I(m[1])
    for k in range(4, 8): I(f"ds_write_b128 v2, {v(Q(0)+4*k,4)} offset:{1024*k}")
    I(m[3])
    stamp(A, 3)
    PKK, PVV, vONE = 16, 32, 48
    D, Z = 160, 176
    for r in range(4): I(f"v_mov_b32 {v(vONE+r)}, 0x3f803f80")
    I("s_waitcnt lgkmcnt(0)")
    I("s_barrier")
    stamp(A, 4)
    for rt in range(2):
        if rt: stamp(A, 5)
        phi16(A, K(rt), PKK+8*rt, 192+16*rt, sL, sEPS)
        for p in range(8):
            I(f"v_cvt_pk_bf16_f32 {v(PVV+8*rt+p)}, {v(V(rt)+2*p)}, {v(V(rt)+2*p+1)}")
        for n in (2*rt, 2*rt+1):
            I(f"v_mfma_f32_32x32x16_bf16 {v(D,16)}, {v(PKK+4*n,4)}, {v(PVV+4*n,4)}, {'0' if n == 0 else v(D,16)}")
            I(f"v_mfma_f32_32x32x16_bf16 {v(Z,16)}, {v(PKK+4*n,4)}, {v(vONE,4)}, {'0' if n == 0 else v(Z,16)}")
    stamp(A, 6)
    I(f"v_bfe_u32 {v(vT)}, v1, 4, 1")
    I(f"v_cmp_eq_u32 vcc, 1, {v(vT)}")
    I(f"v_lshrrev_b32 {v(vT+1)}, 5, v1")
    I(f"v_lshl_add_u32 {v(vT+1)}, {v(vT)}, 1, {v(vT+1)}")
    I(f"s_lshl_b32 {s(sT)}, {s(sHP)}, 2")
    I(f"v_add_u32 {v(vT+1)}, {s(sT)}, {v(vT+1)}")
    I(f"v_and_b32 {v(vT+2)}, 15, v1")
    I(f"v_lshl_add_u32 {v(vT+3)}, {v(vT+1)}, 4, {v(vT+2)}")
    I(f"s_mul_i32 {s(sT)}, {s(sRH)}, {REDSZ}")
    I(f"s_add_u32 {s(sT)}, {s(sT)}, {RED}")
    I(f"v_lshl_add_u32 {v(vT+3)}, {v(vT+3)}, 5, {s(sT)}")
    I(f"v_lshl_add_u32 {v(vT+4)}, {v(vT+1)}, 5, {s(sT)}")
    for i in range(8):
        I(f"v_cndmask_b32 {v(16+i)}, {v(D+i)}, {v(D+8+i)}, vcc")
    I(f"ds_write_b128 {v(vT+3)}, v[16:19]")
    I(f"ds_write_b128 {v(vT+3)}, v[20:23] offset:16")
    for i in range(8):
        I(f"v_cndmask_b32 {v(32+i)}, {v(Z+i)}, {v(Z+8+i)}, vcc")
    I("s_mov_b32 exec_lo, 0x00010001")
    I("s_mov_b32 exec_hi, 0x00010001")
    I(f"ds_write_b128 {v(vT+4)}, v[32:35] offset:4096")
    I(f"ds_write_b128 {v(vT+4)}, v[36:39] offset:4112")
    I("s_mov_b64 exec, -1")
    atomics()
```

```python
from asmlib import *
import struct
def f32bits(x): return struct.unpack("<I", struct.pack("<f", x))[0]
LOG2E = 1.4426950408889634
LOG2E_HI = struct.unpack("<f", struct.pack("<f", LOG2E))[0]
LOG2E_LO = LOG2E - LOG2E_HI
LN2 = 0.6931471805599453
INV2PI = 0.15915494309189535

WS_PQ = 0x000000
WS_BT = 0x200000
WS_ACC = 0x400000
WS_G = 0x410000

S_X, S_WQKV, S_WO, S_U, S_LAR, S_AIM, S_CR, S_CI = 16, 18, 20, 22, 24, 26, 28, 30
S_LDT, S_DSK, S_GW, S_OUT, S_DBG, S_WS = 32, 34, 36, 38, 40, 42
S_XCD, S_J, S_WV = 3, 4, 5

RS = 2064
NROW = 56
ONEROW = NROW * RS
U0 = ONEROW + 512
USZ = 4608
K0 = U0 + 4 * USZ
KSZ = 3200
R1OFF = 1216
X3OFF = 2336
X4OFF = 2848
PT0 = K0 + 4 * KSZ
PTSZ = 2 * R1OFF
B_LDS_END = PT0 + PTSZ
CEN, CEN4, LO5 = 33, 32, 33
assert B_LDS_END <= 163840

def nib(tab):
    x = 0
    for r, t in enumerate(tab): x |= t << (4 * r)
    return x & 0xffffffff, x >> 32
T0 = list(range(16))
T1 = [0,0,1,2,2,2,3,4,4,4,5,6,6,6,7,8]
T2 = [0,0,0,1,1,1,2,2,2,2,2,3,3,3,4,4]
T3 = [0]*5 + [1]*7 + [2]*4

def cmul(A, d, x, y):
    A.I(f"v_pk_mul_f32 {v(d,2)}, {v(x,2)}, {v(y,2)} op_sel_hi:[1,0]")
    A.I(f"v_pk_fma_f32 {v(d,2)}, {v(x,2)}, {v(y,2)}, {v(d,2)} op_sel:[1,1,0] op_sel_hi:[0,1,1] neg_lo:[1,0,0]")

def exp_rbf(A, dst, src, t0, t1, sc):
    A.I(f"v_mul_f32 {v(t0)}, {s(sc)}, {v(src)}")
    A.I(f"v_fma_f32 {v(t1)}, {v(src)}, {s(sc)}, -{v(t0)}")
    A.I(f"v_fma_f32 {v(t1)}, {v(src)}, {s(sc+1)}, {v(t1)}")
    A.I(f"v_exp_f32 {v(t0)}, {v(t0)}")
    A.I(f"v_mul_f32 {v(t1)}, {s(sc+2)}, {v(t1)}")
    A.I(f"v_fma_f32 {v(t0)}, {v(t0)}, {v(t1)}, {v(t0)}")
    A.I(f"v_cvt_pk_bf16_f32 {v(t0)}, {v(t0)}, {v(t0)}")
    A.I(f"v_lshlrev_b32 {v(dst)}, 16, {v(t0)}")

STAMP = False
WS_STAMP = 0x500000
def stamp(A, k):
    if not STAMP: return
    A.I("s_waitcnt lgkmcnt(0)")
    A.I(f"s_memtime {s(72+2*k,2)}")
    A.I("s_waitcnt lgkmcnt(0)")
def stamp_out(A, n):
    if not STAMP: return
    I = A.I
    I("s_waitcnt lgkmcnt(0) vmcnt(0)")
    I(f"s_memtime {s(72+2*n,2)}")
    I("s_memrealtime s[94:95]")
    I("s_waitcnt lgkmcnt(0)")
    I(f"s_lshl_b32 s6, s2, 3")
    I(f"s_add_u32 s6, s6, {s(S_WV)}")
    I(f"s_lshl_b32 s6, s6, 6")
    I(f"s_add_u32 s6, s6, {WS_STAMP}")
    I(f"v_mov_b32 v250, s6")
    for k in range(n+1):
        I(f"v_mov_b32 v251, {s(72+2*k)}")
        I(f"global_store_dword v250, v251, {s(S_WS,2)} offset:{4*k}")
    I(f"v_mov_b32 v251, s94")
    I(f"global_store_dword v250, v251, {s(S_WS,2)} offset:60")
    I(f"v_mov_b32 v251, s92")
    I(f"global_store_dword v250, v251, {s(S_WS,2)} offset:56")
    I("s_getreg_b32 s6, hwreg(HW_REG_HW_ID)")
    I(f"v_mov_b32 v251, s6")
    I(f"global_store_dword v250, v251, {s(S_WS,2)} offset:52")

def gen_B(A):
    I = A.I
    sCH, sHF, sD0, sD, sT, sUC, sKC, sROT = 44, 45, 46, 47, 48, 49, 50, 51
    sC = 52
    sM = 56
    sTB = 58
    sBT = 68
    vLANE, vB, vG = 1, 2, 3
    vROW = 4
    vGA = 8
    vLAR, vAIM, vCR, vCI, vLDT, vDSK = 16, 17, 18, 19, 20, 21
    vT = 22
    W = lambda r: 32 + 2 * (r - 1)
    G = lambda p: 64 + 2 * (p - 1)
    F = lambda f: 80 + 2 * f
    H = lambda k: 112 + 2 * (k - 1)
    vP = 118
    vPK = 126
    vFA, vE0, vE1 = 130, 131, 132
    vY = 204
    I(f"s_and_b32 {s(sCH)}, {s(S_WV)}, 3")
    I(f"s_lshr_b32 {s(sHF)}, {s(S_WV)}, 2")
    I(f"s_lshl_b32 {s(sD0)}, {s(S_XCD)}, 6")
    I(f"s_lshl_b32 {s(sT)}, {s(S_J)}, 2")
    I(f"s_add_u32 {s(sD0)}, {s(sD0)}, {s(sT)}")
    I(f"s_add_u32 {s(sD)}, {s(sD0)}, {s(sCH)}")
    I(f"v_and_b32 {v(vLANE)}, 63, v0")
    I(f"s_lshl_b32 {s(sT)}, {s(sD)}, 8")
    I(f"s_lshl_b32 {s(sROT)}, {s(sHF)}, 7")
    I(f"s_add_u32 {s(sT)}, {s(sT)}, {s(sROT)}")
    I(f"v_lshl_add_u32 {v(vT)}, {v(vLANE)}, 1, {s(sT)}")
    I(f"s_lshl_b32 {s(sT)}, {s(sD)}, 1")
    I(f"v_mov_b32 {v(vT+1)}, {s(sT)}")
    I(f"s_lshl_b32 {s(sROT)}, {s(S_J)}, 5")
    I(f"v_add_u32 {v(vT+2)}, {s(sROT)}, v0")
    I(f"v_and_b32 {v(vT+2)}, 0x1ff, {v(vT+2)}")
    I("s_waitcnt lgkmcnt(0)")
    stamp(A, 1)
    I(f"global_load_ushort {v(vLDT)}, {v(vT+1)}, {s(S_LDT,2)}")
    I(f"global_load_ushort {v(vLAR)}, {v(vT)}, {s(S_LAR,2)}")
    I(f"global_load_ushort {v(vAIM)}, {v(vT)}, {s(S_AIM,2)}")
    I(f"global_load_ushort {v(vCR)}, {v(vT)}, {s(S_CR,2)}")
    I(f"global_load_ushort {v(vCI)}, {v(vT)}, {s(S_CI,2)}")
    I(f"global_load_ushort {v(vDSK)}, {v(vT+1)}, {s(S_DSK,2)}")
    I(f"s_lshl_b32 {s(sT)}, {s(sD0)}, 1")
    vGA = 140
    vUW, vGAD, vSEL = 148, 150, 154
    I(f"v_add_u32 {v(vT+3)}, {s(S_J)}, v0")
    I(f"v_and_b32 {v(vT+3)}, 3, {v(vT+3)}")
    I(f"v_lshl_add_u32 {v(vT+4)}, {v(vT+2)}, 2, {v(vT+3)}")
    I(f"v_lshl_add_u32 {v(vGAD)}, {v(vT+4)}, 10, {s(sT)}")
    for i in range(1, 4): I(f"v_xor_b32 {v(vGAD+i)}, {1024*i}, {v(vGAD)}")
    I("s_barrier")
    def gather(i): I(f"global_load_dwordx2 {v(vGA+2*i,2)}, {v(vGAD+i)}, {s(S_X,2)}")
    gather(0); gather(1)
    I(f"v_and_b32 {v(vT+4)}, -2, {v(vT+4)}")
    I(f"v_lshlrev_b32 {v(vUW)}, 1, {v(vT+4)}")
    I(f"v_add_u32 {v(vUW)}, {U0+512}, {v(vUW)}")
    I(f"v_xor_b32 {v(vUW+1)}, 4, {v(vUW)}")
    I(f"v_and_b32 {v(vT+3)}, 1, {v(vT+3)}")
    I(f"v_mul_u32_u24 {v(vT+3)}, 0x040404, {v(vT+3)}")
    I(f"v_lshl_or_b32 {v(vT+3)}, {v(vT+3)}, 8, {v(vT+3)}")
    I(f"v_xor_b32 {v(vSEL)}, 0x05040100, {v(vT+3)}")
    I(f"v_xor_b32 {v(vSEL+1)}, 0x07060302, {v(vT+3)}")
    I(f"v_and_b32 {v(vB)}, 15, {v(vLANE)}")
    I(f"v_lshrrev_b32 {v(vG)}, 4, {v(vLANE)}")
    I(f"s_mul_i32 {s(sUC)}, {s(sCH)}, {USZ}")
    I(f"s_add_u32 {s(sUC)}, {s(sUC)}, {U0}")
    I(f"s_mul_i32 {s(sKC)}, {s(sCH)}, {KSZ}")
    I(f"s_add_u32 {s(sKC)}, {s(sKC)}, {K0}")
    I(f"s_mov_b32 {s(sC)}, 0x{f32bits(LOG2E_HI):08x}")
    I(f"s_mov_b32 {s(sC+1)}, 0x{f32bits(LOG2E_LO):08x}")
    I(f"s_mov_b32 {s(sC+2)}, 0x{f32bits(LN2):08x}")
    for r in range(4): I(f"v_mov_b32 {v(24+r)}, 0")
    I(f"v_lshrrev_b32 {v(vT)}, 7, v0")
    I(f"v_mul_u32_u24 {v(vT)}, {USZ}, {v(vT)}")
    I(f"v_and_b32 {v(vT+1)}, 127, v0")
    I(f"v_lshl_add_u32 {v(vT)}, {v(vT+1)}, 2, {v(vT)}")
    I(f"v_add_u32 {v(vT)}, {U0}, {v(vT)}")
    I(f"ds_write_b32 {v(vT)}, v24")
    I(f"v_lshlrev_b32 {v(vT)}, 4, v0")
    I(f"v_add_u32 {v(vT)}, {K0}, {v(vT)}")
    I(f"ds_write_b128 {v(vT)}, v[24:27]")
    I(f"v_min_u32 {v(vT)}, {K0 + 4*KSZ - 16 - 8192}, {v(vT)}")
    I(f"ds_write_b128 {v(vT)}, v[24:27] offset:8192")
    I(f"v_lshlrev_b32 {v(vT+1)}, 2, {v(vT+1)}")
    I(f"v_add_u32 {v(vT+1)}, {ONEROW}, {v(vT+1)}")
    I(f"v_mov_b32 v28, 0x3f80")
    I(f"ds_write_b32 {v(vT+1)}, v28")
    lo_t = [4, 3, 2, 1, 3, 5, 0, 0]
    ln_t = [3, 5, 7, 9, 3, 2, 0, 0]
    lo_c = sum(t << (4*i) for i, t in enumerate(lo_t)); ln_c = sum(t << (4*i) for i, t in enumerate(ln_t))
    I(f"v_lshrrev_b32 {v(vT)}, 6, v0")
    I(f"v_lshlrev_b32 {v(vT+1)}, 2, {v(vT)}")
    I(f"s_mov_b32 {s(sT)}, 0x{lo_c:08x}")
    I(f"v_bfe_u32 v28, {s(sT)}, {v(vT+1)}, 4")
    I(f"s_mov_b32 {s(sT)}, 0x{ln_c:08x}")
    I(f"v_bfe_u32 v29, {s(sT)}, {v(vT+1)}, 4")
    I(f"v_subrev_u32 v30, 28, {v(vLANE)}")
    I(f"v_sub_u32 v30, v30, v28")
    I(f"v_mov_b32 v28, 0x3f80")
    I(f"v_mov_b32 v31, 0xffff")
    I(f"v_cmp_lt_u32 vcc, 3, {v(vT)}")
    I(f"v_cndmask_b32 v28, v28, v31, vcc")
    I(f"v_cmp_lt_u32 vcc, v30, v29")
    I(f"v_cndmask_b32 v28, 0, v28, vcc")
    I(f"v_lshlrev_b32 {v(vT)}, 1, v0")
    I(f"v_add_u32 {v(vT)}, {PT0}, {v(vT)}")
    I(f"ds_write_b16 {v(vT)}, v28")
    I(f"ds_write_b16 {v(vT)}, v28 offset:{R1OFF-2}")
    I(f"s_lshl_b32 {s(sM)}, {s(sCH)}, 9")
    I(f"s_lshl_b32 {s(sT)}, {s(sHF)}, 8")
    I(f"s_add_u32 {s(sM)}, {s(sM)}, {s(sT)}")
    I(f"s_add_u32 {s(sM+1)}, {s(sM)}, {28*RS}")
    I(f"v_lshrrev_b32 {v(vT)}, 1, {v(vG)}")
    I(f"v_lshlrev_b32 {v(vT)}, 7, {v(vT)}")
    I(f"v_and_b32 {v(vT+1)}, 1, {v(vG)}")
    I(f"v_lshl_add_u32 {v(vT)}, {v(vT+1)}, 8, {v(vT)}")
    I(f"s_lshl_b32 {s(sT)}, {s(sCH)}, 9")
    I(f"v_add_u32 {v(vT+1)}, {s(sT)}, {v(vT)}")
    I(f"v_mul_u32_u24 {v(vT+2)}, {RS}, {v(vB)}")
    I(f"v_add_u32 {v(vFA)}, {v(vT+1)}, {v(vT+2)}")
    I(f"s_cmp_eq_u32 {s(sHF)}, 0")
    I(f"s_cselect_b32 {s(sT)}, {40*RS}, {s(sT)}")
    I(f"s_mov_b32 s6, {15*RS}")
    I(f"s_cselect_b32 {s(sT)}, {s(sT)}, s6")
    I(f"v_add_u32 {v(vE0)}, {s(sT)}, {v(vFA)}")
    I(f"v_add_u32 {v(vT+3)}, {ONEROW}, {v(vT)}")
    I(f"v_sub_u32 {v(vT+4)}, {v(vB)}, {s(sHF)}")
    I(f"v_cmp_eq_u32 vcc, -1, {v(vT+4)}")
    I(f"v_cndmask_b32 {v(vE0)}, {v(vE0)}, {v(vT+3)}, vcc")
    lo, hi = nib(T1)
    I(f"s_mov_b32 {s(sTB)}, 0x{lo:08x}")
    I(f"s_mov_b32 {s(sTB+1)}, 0x{hi:08x}")
    I(f"v_lshlrev_b32 {v(vT+3)}, 2, {v(vB)}")
    I(f"v_lshrrev_b64 {v(vT+4,2)}, {v(vT+3)}, {s(sTB,2)}")
    I(f"v_and_b32 {v(vT+4)}, 15, {v(vT+4)}")
    I(f"v_add_u32 {v(vT+4)}, 31, {v(vT+4)}")
    I(f"v_mul_u32_u24 {v(vT+4)}, {RS}, {v(vT+4)}")
    I(f"v_add_u32 {v(vE1)}, {v(vT+1)}, {v(vT+4)}")
    I("s_waitcnt vmcnt(2)")
    stamp(A, 2)
    for r in (vLDT, vLAR, vAIM, vCR, vCI, vDSK):
        I(f"v_lshlrev_b32 {v(r)}, 16, {v(r)}")
    vDT = vLDT
    exp_rbf(A, vDT, vLDT, vT, vT+1, sC)
    exp_rbf(A, vLAR, vLAR, vT+2, vT+3, sC)
    vLR, vFI = vLAR, vAIM
    I(f"v_mul_f32 {v(vLR)}, {v(vLAR)}, {v(vDT)}")
    I(f"v_mul_f32 {v(vFI)}, {v(vAIM)}, {v(vDT)}")
    I(f"v_mul_f32 {v(vLR)}, 0x{f32bits(-LOG2E):08x}, {v(vLR)}")
    I(f"v_mul_f32 {v(vFI)}, 0x{f32bits(INV2PI):08x}, {v(vFI)}")
    I(f"v_add_f32 {v(vDT)}, {v(vDT)}, {v(vDT)}")
    I(f"v_mul_f32 {v(F(0))}, {v(vCR)}, {v(vDT)}")
    I(f"v_mul_f32 {v(F(0)+1)}, {v(vCI)}, {v(vDT)}")
    def anchor(dst, t, tmp):
        tb = f"0x{f32bits(float(t)):08x}"
        if t == 1:
            I(f"v_exp_f32 {v(tmp)}, {v(vLR)}")
            I(f"v_fract_f32 {v(tmp+1)}, {v(vFI)}")
        else:
            I(f"v_mul_f32 {v(tmp)}, {tb}, {v(vLR)}")
            I(f"v_mul_f32 {v(tmp+1)}, {tb}, {v(vFI)}")
            I(f"v_exp_f32 {v(tmp)}, {v(tmp)}")
            I(f"v_fract_f32 {v(tmp+1)}, {v(tmp+1)}")
        I(f"v_cos_f32 {v(dst)}, {v(tmp+1)}")
        I(f"v_sin_f32 {v(dst+1)}, {v(tmp+1)}")
        I(f"v_pk_mul_f32 {v(dst,2)}, {v(dst,2)}, {v(tmp,2)} op_sel_hi:[1,0]")
    anchor(W(1), 1, vT)
    anchor(W(16), 16, vT+2)
    anchor(G(1), 256, vT+4)
    anchor(G(4), 1024, vT+6)
    gather(2)
    st = {"pk": 0, "m0": None}
    def emit(row, reg, neg=False):
        t = vPK + (st["pk"] & 3); st["pk"] += 1
        grp = row // 28
        if st["m0"] != grp:
            I(f"s_mov_b32 m0, {s(sM+grp)}"); st["m0"] = grp
        I(f"v_cvt_pk_bf16_f32 {v(t)}, {v(reg)}, {'-' if neg else ''}{v(reg+1)}")
        I(f"ds_write_addtid_b32 {v(t)} offset:{(row % 28)*RS}")
    EW = lambda r: 15 + r
    cmul(A, W(2), W(1), W(1)); emit(EW(1), W(1))
    cmul(A, H(1), W(16), W(16)); emit(0, F(0), True)
    cmul(A, F(1), F(0), W(16))
    cmul(A, G(2), G(1), G(1))
    cmul(A, W(3), W(2), W(1)); emit(EW(2), W(2))
    cmul(A, W(4), W(2), W(2)); emit(1, F(1), True)
    cmul(A, H(2), H(1), H(1))
    cmul(A, F(2), F(0), H(1)); emit(EW(3), W(3))
    cmul(A, F(3), F(1), H(1)); emit(EW(4), W(4))
    cmul(A, G(3), G(2), G(1))
    cmul(A, W(8), W(4), W(4)); emit(2, F(2), True)
    cmul(A, H(3), H(2), H(2)); emit(3, F(3), True)
    for r in (5, 6, 7): cmul(A, W(r), W(4), W(r-4))
    emit(EW(8), W(8))
    gather(3)
    for f in range(4):
        cmul(A, F(4+f), F(f), H(2))
        if f < 3: emit(EW(5+f), W(5+f))
    for p in (5, 6, 7):
        cmul(A, G(p), G(4), G(p-4)); emit(4+p-5, F(4+p-5), True)
    emit(7, F(7), True)
    for f in range(8):
        cmul(A, F(8+f), F(f), H(3))
        if f > 0: emit(8+f-1, F(8+f-1), True)
    for r in range(9, 16):
        cmul(A, W(r), W(8), W(r-8))
        if r == 9: emit(15, F(15), True)
        else: emit(EW(r-1), W(r-1))
    emit(EW(15), W(15)); emit(31, G(1))
    prods = []
    for i in range(1, 9): prods.append((31+i, 1, 2*i))
    for p in (2, 3):
        for i in range(1, 5): prods.append((40 + 4*(p-2) + i-1, p, 4*i))
    for p in range(4, 8):
        for i in (1, 2): prods.append((48 + 2*(p-4) + i-1, p, 8*i))
    pend = []
    for n, (row, p, r) in enumerate(prods):
        t = vP + 2*(n & 3)
        cmul(A, t, G(p), W(r))
        pend.append((row, t))
        if len(pend) > 1:
            rw, tt = pend.pop(0); emit(rw, tt)
    for rw, tt in pend: emit(rw, tt)
    stamp(A, 3)
    def ustage():
        I("s_waitcnt vmcnt(0)")
        stamp(A, 4)
        for c in range(4):
            sel = v(vSEL + (c % 2))
            o = c // 2
            t = 156 + 2*c
            I(f"v_perm_b32 {v(t)}, {v(vGA+2+o)}, {v(vGA+o)}, {sel}")
            I(f"v_perm_b32 {v(t+1)}, {v(vGA+6+o)}, {v(vGA+4+o)}, {sel}")
            I(f"ds_write_b32 {v(vUW)}, {v(t)} offset:{c*USZ}")
            I(f"ds_write_b32 {v(vUW+1)}, {v(t+1)} offset:{c*USZ}")
    def wopf():
        I(f"s_lshl_b32 {s(sT)}, {s(S_J)}, 15")
        I(f"v_lshl_add_u32 {v(vUW)}, v0, 4, {s(sT)}")
        for i in range(8):
            if i: I(f"v_add_u32 {v(vUW)}, 4096, {v(vUW)}")
            I(f"global_load_dwordx4 v[236:239], {v(vUW)}, {s(S_WO,2)}")
    vOFF, vKW, vLT, vLB = 4, 5, 6, 7
    I(f"v_lshlrev_b32 {v(vT)}, 5, {v(vB)}")
    I(f"v_lshl_add_u32 {v(vOFF)}, {v(vG)}, 3, {v(vT)}")
    I(f"v_lshl_add_u32 {v(vT)}, {v(vG)}, 4, {v(vT)}")
    I(f"v_add_u32 {v(vLB)}, {s(sUC)}, {v(vT)}")
    I(f"v_and_b32 {v(vT)}, 1, {v(vB)}")
    I(f"v_xor_b32 {v(vT)}, 1, {v(vT)}")
    I(f"v_mul_u32_u24 {v(vT+1)}, {R1OFF-2}, {v(vT)}")
    I(f"v_lshl_add_u32 {v(vT+1)}, {v(vG)}, 4, {v(vT+1)}")
    I(f"v_lshlrev_b32 {v(vT+2)}, 1, {v(vB)}")
    I(f"v_sub_u32 {v(vLT)}, {v(vT+1)}, {v(vT+2)}")
    I(f"s_lshl_b32 {s(sT)}, {s(sHF)}, 9")
    I(f"s_add_u32 {s(sT)}, {s(sT)}, {s(sKC)}")
    I(f"s_add_u32 {s(sT)}, {s(sT)}, {2*540 - 512}")
    I(f"v_sub_u32 {v(vKW)}, {s(sT)}, {v(vOFF)}")
    I(f"v_cmp_eq_u32 vcc, 0, {v(vLANE)}")
    for r in range(1, 4): I(f"v_mov_b32 {v(248+r)}, 0")
    I(f"v_cndmask_b32 v248, 0, {v(vDSK)}, vcc")
    I("s_waitcnt lgkmcnt(0)")
    I("s_barrier")
    stamp(A, 5)
    vFF = 32; vEF = 64; vK = 248
    def ktile_write(k, t):
        I(f"v_cvt_pk_bf16_f32 {v(t)}, {v(k+3)}, {v(k+2)}")
        I(f"v_cvt_pk_bf16_f32 {v(t+1)}, {v(k+1)}, {v(k)}")
        I(f"v_cvt_pk_bf16_f32 {v(t+2)}, {v(k+2)}, {v(k+1)}")
        I(f"ds_write_b64 {v(vKW)}, {v(t,2)}")
        I(f"ds_write_b32 {v(vKW)}, {v(t+2)} offset:{R1OFF}")
        I(f"ds_write_b16 {v(vKW)}, {v(t)} offset:{R1OFF-2}")
        I(f"ds_write_b16_d16_hi {v(vKW)}, {v(t+1)} offset:{R1OFF+4}")
    def kphase(ntile):
        loads = []
        for ks in range(8):
            loads.append(f"ds_read_b128 {v(vFF+4*ks,4)}, {v(vFA)} offset:{16*ks}")
            for i in range(ntile):
                loads.append(f"ds_read_b128 {v(vEF+32*i+4*ks,4)}, {v(vE0+i)} offset:{16*ks}")
        per = 1 + ntile
        issued = min(len(loads), 12)
        for x in loads[:issued]: I(x)
        for ks in range(8):
            for i in range(ntile):
                idx = ks*per + 1 + i
                I(f"s_waitcnt lgkmcnt({issued-1-idx})")
                c = "0" if (ks == 0 and ntile == 2) else v(vK+4*i,4)
                I(f"v_mfma_f32_16x16x32_bf16 {v(vK+4*i,4)}, {v(vEF+32*i+4*ks,4)}, {v(vFF+4*ks,4)}, {c}")
                while issued < len(loads) and issued - idx <= 12:
                    I(loads[issued]); issued += 1
    touched = set()
    yx = [0]
    def mf(t, a_, b_):
        y = vY + 4*(t ^ yx[0])
        c = v(y,4) if t in touched else "0"
        touched.add(t)
        I(f"v_mfma_f32_16x16x32_bf16 {v(y,4)}, {v(a_,4)}, {v(b_,4)}, {c}")
    def toep(dst, base, s0):
        o = (s0 - 1)//2
        assert 0 <= o and o+3 <= 255, o
        return [f"ds_read2_b32 {v(dst,2)}, {v(base)} offset0:{o} offset1:{o+1}",
                f"ds_read2_b32 {v(dst+2,2)}, {v(base)} offset0:{o+2} offset1:{o+3}"]
    I(f"s_cmp_eq_u32 {s(sHF)}, 0")
    A.branch("s_cbranch_scc0 B_waveB")
    kphase(2)
    vLO, vHI, vKT, vPT, vV3, vV4 = 16, 17, 10, 11, 12, 13
    I(f"v_lshlrev_b32 {v(vT)}, 7, {v(vG)}")
    I(f"v_lshl_add_u32 {v(vT+1)}, {v(vB)}, 3, {v(vT)}")
    I(f"v_sub_u32 {v(vT+1)}, {X3OFF + 2*188}, {v(vT+1)}")
    I(f"v_add_u32 {v(vT+2)}, 4, {v(vT+1)}")
    I(f"v_lshl_add_u32 {v(vT+3)}, {v(vB)}, 2, {v(vT)}")
    I(f"v_sub_u32 {v(vT+3)}, {X4OFF + 2*126 + 256}, {v(vT+3)}")
    I(f"v_subrev_u32 {v(vT+4)}, 64, {v(vT+3)}")
    I(f"v_cmp_gt_u32 vcc, 2, {v(vG)}")
    I(f"v_cndmask_b32 {v(vLO)}, {v(vT+3)}, {v(vT+2)}, vcc")
    I(f"v_cndmask_b32 {v(vHI)}, {v(vT+4)}, {v(vT+1)}, vcc")
    I(f"v_add_u32 {v(vLO)}, {s(sKC)}, {v(vLO)}")
    I(f"v_add_u32 {v(vHI)}, {s(sKC)}, {v(vHI)}")
    I(f"v_cvt_pk_bf16_f32 {v(vT)}, {v(vK+1)}, {v(vK)}")
    I(f"v_cvt_pk_bf16_f32 {v(vT+1)}, {v(vK+3)}, {v(vK+2)}")
    I(f"ds_write_b32 {v(vLO)}, {v(vT)}")
    I(f"ds_write_b32 {v(vHI)}, {v(vT+1)}")
    ktile_write(vK+4, vT+2)
    stamp(A, 8)
    ustage()
    wopf()
    UA, UC, BX, MK, TP, TM, SS, VV = 32, 64, 72, 96, 104, 116, 140, 164
    I(f"s_add_u32 {s(sT)}, {s(sKC)}, 2")
    I(f"v_add_u32 {v(vKT)}, {s(sT)}, {v(vLT)}")
    I(f"v_add_u32 {v(vPT)}, {PT0+2}, {v(vLT)}")
    I(f"v_lshlrev_b32 {v(vT)}, 5, {v(vG)}")
    I(f"v_lshlrev_b32 {v(vT+1)}, 3, {v(vB)}")
    I(f"v_sub_u32 {v(vT)}, {v(vT)}, {v(vT+1)}")
    I(f"s_add_u32 {s(sT)}, {s(sKC)}, {X3OFF + 120}")
    I(f"v_add_u32 {v(vV3)}, {s(sT)}, {v(vT)}")
    I(f"v_ashrrev_i32 {v(vT)}, 1, {v(vT)}")
    I(f"s_add_u32 {s(sT)}, {s(sKC)}, {X4OFF + 60}")
    I(f"v_add_u32 {v(vV4)}, {s(sT)}, {v(vT)}")
    boxes = [(0, 12), (1, 8), (0, 4), (1, 8), (2, 8), (3, 8)]
    I("s_waitcnt lgkmcnt(4)")
    for n, (run, ctr) in enumerate(boxes):
        for x in toep(BX+4*n, vPT, 64*run + CEN - ctr): I(x)
        if n == 3: I("s_waitcnt lgkmcnt(4)")
    for x in toep(MK, vPT, 64*4 + CEN4 - 15): I(x)
    for x in toep(MK+4, vPT, 64*5 + LO5 - 12): I(x)
    I("s_waitcnt lgkmcnt(0)")
    I("s_barrier")
    stamp(A, 6)
    I(f"ds_read_b128 {v(UA,4)}, {v(vLB)} offset:{480}")
    I(f"ds_read_b128 {v(UC,4)}, {v(vLB)} offset:{480-16}")
    for k in range(1, 8):
        I(f"ds_read_b128 {v(UA+4*k,4)}, {v(vLB)} offset:{480 + 512*k}")
    I("s_waitcnt lgkmcnt(7)")
    ld = []
    I(f"v_add_u32 {v(vLO)}, 512, {v(vKT)}")
    ld += toep(TP, vLO, 543-16-256)
    ld += toep(TP+4, vKT, 543-16-256)
    ld += toep(TP+8, vKT, 543-16-512)
    I(f"v_mov_b32 {v(vT)}, {s(sKC)}")
    ld.append(f"ds_read_u16 {v(vT+2)}, {v(vT)} offset:{2*32}")
    ld.append(f"ds_read_u16 {v(vT+3)}, {v(vT)} offset:{X3OFF + 2*64}")
    for Dl in (2, 3, 4):
        for ph in range(2):
            d = VV + 4*(2*(Dl-2)+ph)
            o = 128*(4-Dl) + 16*ph
            ld.append(f"ds_read_b64 {v(d,2)}, {v(vV3)} offset:{o}")
            ld.append(f"ds_read_b64 {v(d+2,2)}, {v(vV3)} offset:{o+8}")
    for Dl in (4, 5, 6, 7):
        d = VV + 24 + 4*(Dl-4)
        o = 16*(7-Dl)
        ld.append(f"ds_read2_b32 {v(d,2)}, {v(vV4)} offset0:{o} offset1:{o+1}")
        ld.append(f"ds_read2_b32 {v(d+2,2)}, {v(vV4)} offset0:{o+2} offset1:{o+3}")
    def box(k):
        uc = UC + 4*(k & 1)
        n = 6 if k < 4 else 4
        for t in range(n):
            u = uc if t in (3, 5) else UA+4*k
            I(f"v_mfma_f32_16x16x32_bf16 {v(TM+4*t,4)}, {v(u,4)}, {v(BX+4*t,4)}, 0")
            for _ in range(3):
                if ld: I(ld.pop(0))
    def cvt(k):
        sb = SS + 12*(k & 1)
        S4, S8, S12, S16, Q8, Q16 = (TM+4*t for t in range(6))
        for ph in range(2):
            for cc in range(2):
                r = 2*ph + cc
                I(f"v_cvt_pk_bf16_f32 {v(sb+4*ph+2*cc)}, {v(S16+r)}, {v(S12+r)}")
                I(f"v_cvt_pk_bf16_f32 {v(sb+4*ph+2*cc+1)}, {v(S8+r)}, {v(S4+r)}")
        if k < 4:
            for r in range(4):
                I(f"v_cvt_pk_bf16_f32 {v(sb+8+r)}, {v(Q16+r)}, {v(Q8+r)}")
    def far(k):
        sb = SS + 12*(k & 1)
        for Dl in (2, 3, 4):
            if k + Dl < 8:
                for ph in range(2): mf(k+Dl, sb+4*ph, VV + 4*(2*(Dl-2)+ph))
        if k < 4:
            for Dl in (4, 5, 6, 7):
                if k + Dl < 8: mf(k+Dl, sb+8, VV+24+4*(Dl-4))
    box(0)
    while ld: I(ld.pop(0))
    I(f"ds_read_b128 {v(UC+4,4)}, {v(vLB)} offset:{480-16+512}")
    I("s_waitcnt lgkmcnt(15)")
    I("s_waitcnt lgkmcnt(0)")
    for t in range(8): mf(t, TP, UA+4*t)
    cvt(0)
    I(f"v_lshl_or_b32 {v(vT+2)}, {v(vT+2)}, 16, {v(vT+2)}")
    I(f"v_lshl_or_b32 {v(vT+3)}, {v(vT+3)}, 16, {v(vT+3)}")
    for r in range(4):
        I(f"v_and_or_b32 {v(TP+8+r)}, {v(MK+r)}, {v(vT+2)}, {v(TP+8+r)}")
        I(f"v_and_b32 {v(MK+4+r)}, {v(MK+4+r)}, {v(vT+3)}")
    fill = [(t+1, TP+4, UA+4*t) for t in range(7)] + [(t+2, TP+8, UA+4*t) for t in range(6)] + [(t+4, MK+4, UA+4*t) for t in range(4)]
    for k in range(1, 6):
        I("s_waitcnt lgkmcnt(0)")
        box(k)
        if k < 5: I(f"ds_read_b128 {v(UC+4*((k+1)&1),4)}, {v(vLB)} offset:{480-16+512*(k+1)}")
        far(k-1)
        for _ in range(3):
            if fill: mf(*fill.pop(0))
        cvt(k)
    while fill: mf(*fill.pop(0))
    far(5)
    A.branch("s_branch B_epi")
    A.label("B_waveB")
    touched.clear(); yx[0] = 4
    kphase(1)
    ktile_write(vK, vT)
    stamp(A, 8)
    ustage()
    vKA0 = 8
    I(f"s_add_u32 {s(sT)}, {s(sKC)}, 2")
    I(f"v_add_u32 {v(vKA0)}, {s(sT)}, {v(vLT)}")
    NB = 3
    bufB = lambda q: 32 + 40*(q % NB)
    bufA = lambda q: 32 + 40*(q % NB) + 32
    def ldB(q): return [f"ds_read_b128 {v(bufB(q)+4*t,4)}, {v(vLB)} offset:{480 + 512*t - 64*q}" for t in range(8)]
    def ldA(q): return toep(bufA(q), vKA0, 543-16-32*q) + toep(bufA(q)+4, vKA0, 543-16-256-32*q)
    I("s_waitcnt lgkmcnt(0)")
    I("s_barrier")
    stamp(A, 6)
    stream = []
    for q in range(1, 8): stream += [(q, x) for x in ldA(q) + ldB(q)]
    issued = 0
    def last_idx(q): return max(i for i, (qq, _) in enumerate(stream) if qq == q)
    while issued < 14: I(stream[issued][1]); issued += 1
    for q in range(1, 8):
        I(f"s_waitcnt lgkmcnt({min(15, issued-1-last_idx(q))})")
        seq = [(t, bufA(q), bufB(q)+4*t) for t in range(8)] + [(t+1, bufA(q)+4, bufB(q)+4*t) for t in range(7)]
        for m in seq:
            mf(*m)
            if issued < len(stream) and stream[issued][0] <= q + NB - 1 and issued - last_idx(q) <= 14:
                I(stream[issued][1]); issued += 1
        while q < 7 and issued <= last_idx(q+1):
            I(stream[issued][1]); issued += 1
    A.label("B_epi")
    stamp(A, 7)
    vXA = 6
    I(f"s_lshl_b32 {s(sROT)}, {s(sCH)}, 13")
    I(f"s_lshl_b32 {s(sT)}, {s(sHF)}, 12")
    I(f"s_add_u32 s6, {s(sROT)}, {s(sT)}")
    I(f"v_lshl_add_u32 {v(vXA)}, {v(vLANE)}, 4, s6")
    for i in range(4):
        I(f"ds_write_b128 {v(vXA)}, {v(vY+16+4*i,4)} offset:{1024*i}")
    I(f"v_xor_b32 {v(vXA)}, 4096, {v(vXA)}")
    I(f"s_lshl_b32 {s(sT)}, {s(sHF)}, 11")
    I(f"s_lshl_b32 {s(sROT)}, {s(sD)}, 12")
    I(f"s_add_u32 {s(sROT)}, {s(sROT)}, {s(sT)}")
    I(f"s_add_u32 {s(sROT)}, {s(sROT)}, {WS_BT}")
    I(f"s_add_u32 {s(sBT)}, {s(S_WS)}, {s(sROT)}")
    I(f"s_addc_u32 {s(sBT+1)}, {s(S_WS+1)}, 0")
    I("s_waitcnt lgkmcnt(0)")
    I("s_barrier")
    vX = 48
    for i in range(4):
        I(f"ds_read_b128 {v(vX+4*i,4)}, {v(vXA)} offset:{1024*i}")
    for i in range(4):
        I(f"s_waitcnt lgkmcnt({3-i})")
        y = vY + 4*i; x = vX + 4*i
        I(f"v_pk_add_f32 {v(y,2)}, {v(y,2)}, {v(x,2)}")
        I(f"v_pk_add_f32 {v(y+2,2)}, {v(y+2,2)}, {v(x+2,2)}")
        I(f"v_cvt_pk_bf16_f32 {v(x)}, {v(y)}, {v(y+1)}")
        I(f"v_cvt_pk_bf16_f32 {v(x+1)}, {v(y+2)}, {v(y+3)}")
        I(f"global_store_dwordx2 {v(vOFF)}, {v(x,2)}, {s(sBT,2)} offset:{512*i}")
    stamp_out(A, 9)
    I("s_endpgm")
```

```python
from asmlib import *
from k1b import *
import k1b

BTOFF = 65536
RBUF = BTOFF + 8192
LDS = RBUF + 4*3*4096
LAUNCH = f"; @launch kernel=k2_kernel grid=(256,1,1) block=(256,1,1) lds={LDS}\n"
VGPRS = 256
DBGSTAMP = True
LA = 3

def gen():
    A = Asm(); I = A.I
    A.raw(".globl k2_kernel\n.p2align 8\n.type k2_kernel,@function\nk2_kernel:")
    I("s_cmp_ge_u32 s2, 256")
    I("s_cbranch_scc1 K2_exit")
    if k1b.STAMP:
        I("s_memtime s[72:73]")
        I("s_memrealtime s[92:93]")
    I(f"s_load_dwordx2 {s(S_WO,2)}, s[0:1], 16")
    I(f"s_load_dwordx2 {s(S_OUT,2)}, s[0:1], 88")
    I(f"s_load_dwordx2 {s(S_WS,2)}, s[0:1], 104")
    sRB, sCB, sT, sT2, sST, sNT, sWO = 44, 45, 46, 47, 48, 49, 50
    sSRO, sSRB = 52, 56
    sPQ, sAC = 60, 62
    sEPS = 64
    I("v_lshrrev_b32 v1, 6, v0")
    I(f"s_and_b32 {s(sT)}, s2, 7")
    I(f"v_readfirstlane_b32 {s(S_WV)}, v1")
    I(f"s_lshl_b32 {s(sRB)}, {s(sT)}, 2")
    I(f"s_bfe_u32 {s(sT)}, s2, 0x20003")
    I(f"s_add_u32 {s(sRB)}, {s(sRB)}, {s(sT)}")
    I(f"s_lshr_b32 {s(sCB)}, s2, 5")
    I("v_and_b32 v1, 63, v0")
    I(f"s_lshr_b32 {s(sST)}, {s(S_WV)}, 1")
    I(f"s_and_b32 {s(sNT)}, {s(S_WV)}, 1")
    vT = 2
    vOM, vTR1, vGG, vL16, vKA, vWOA, vTR, vBTA, vKS = 7, 8, 9, 10, 11, 12, 13, 14, 15
    vP0, vP1 = 248, 249
    I(f"v_lshlrev_b32 {v(vL16)}, 4, v1")
    I(f"v_and_b32 {v(vT)}, 31, v1")
    I(f"v_lshrrev_b32 {v(vT+1)}, 5, v1")
    I(f"v_lshl_add_u32 {v(vT+2)}, {v(vT+1)}, 4, {v(vT)}")
    I(f"v_lshlrev_b32 {v(vT+2)}, 5, {v(vT+2)}")
    I(f"v_lshlrev_b32 {v(vT+3)}, 5, {v(vT+1)}")
    I(f"v_add_u32 {v(vT+3)}, 4096, {v(vT+3)}")
    I(f"v_cmp_gt_u32 vcc, 16, {v(vT)}")
    I(f"v_mov_b32 {v(vT+4)}, 1024")
    I(f"v_cndmask_b32 {v(vKA)}, {v(vT+3)}, {v(vT+2)}, vcc")
    I(f"v_cndmask_b32 {v(vKS)}, 64, {v(vT+4)}, vcc")
    I(f"v_lshrrev_b32 {v(vT)}, 3, v1")
    I(f"v_and_b32 {v(vT+2)}, 7, v1")
    I(f"v_bfe_u32 {v(vT+3)}, v1, 4, 1")
    I(f"v_lshlrev_b32 {v(vT+3)}, 2, {v(vT+3)}")
    I(f"v_xor_b32 {v(vT+2)}, {v(vT+2)}, {v(vT+3)}")
    I(f"v_lshlrev_b32 {v(vT+2)}, 4, {v(vT+2)}")
    I(f"v_lshl_add_u32 {v(vWOA)}, {v(vT)}, 10, {v(vT+2)}")
    I(f"s_lshl_b32 {s(sT)}, {s(sST)}, 15")
    I(f"v_add_u32 {v(vP0)}, {s(sT)}, {v(vL16)}")
    I(f"v_xor_b32 {v(vP1)}, 0x8000, {v(vP0)}")
    I(f"s_mul_i32 {s(sAC)}, {s(S_WV)}, {2*4352}")
    I(f"s_add_u32 {s(sAC)}, {s(sAC)}, {WS_ACC}")
    I(f"s_lshl_b32 {s(sPQ)}, {s(sRB)}, 16")
    I(f"s_lshl_b32 {s(sT2)}, {s(S_WV)}, 13")
    I(f"s_add_u32 {s(sPQ)}, {s(sPQ)}, {s(sT2)}")
    I(f"s_lshl_b32 {s(sWO)}, {s(S_WV)}, 17")
    I(f"s_lshl_b32 {s(sT2)}, {s(sCB)}, 7")
    I(f"s_add_u32 {s(sWO)}, {s(sWO)}, {s(sT2)}")
    I(f"s_lshl_b32 m0, {s(S_WV)}, 14")
    I(f"s_mov_b32 {s(sSRO+2)}, 0x80000")
    I(f"s_mov_b32 {s(sSRO+3)}, 0x00020000")
    I("s_waitcnt lgkmcnt(0)")
    stamp(A, 1)
    I(f"s_add_u32 {s(sAC)}, {s(S_WS)}, {s(sAC)}")
    I(f"s_addc_u32 {s(sAC+1)}, {s(S_WS+1)}, 0")
    I(f"s_add_u32 {s(sPQ)}, {s(S_WS)}, {s(sPQ)}")
    I(f"s_addc_u32 {s(sPQ+1)}, {s(S_WS+1)}, 0")
    I(f"s_mov_b32 {s(sSRO)}, {s(S_WO)}")
    I(f"s_mov_b32 {s(sSRO+1)}, {s(S_WO+1)}")
    KV = 16
    PQ = 80
    ACC = 144
    NUM = [208, 224]
    WF = 240
    nvm = [0]
    def loads(h):
        L = []
        if h == 4:
            L.append(f"v_lshlrev_b32 {v(vT)}, 2, {v(vKS)}")
            L.append(f"v_sub_u32 {v(vKA)}, {v(vKA)}, {v(vT)}")
            L.append(f"v_add_u32 {v(vKA)}, 4352, {v(vKA)}")
            L.append(f"v_add_u32 {v(vP0)}, 4096, {v(vP0)}")
            L.append(f"v_add_u32 {v(vP1)}, 4096, {v(vP1)}")
        L.append(f"global_load_dwordx4 {v(KV+8*h,4)}, {v(vKA)}, {s(sAC,2)}")
        L.append(f"global_load_dwordx4 {v(KV+8*h+4,4)}, {v(vKA)}, {s(sAC,2)} offset:16")
        L.append(f"global_load_dwordx4 {v(PQ+8*h,4)}, {v(vP0)}, {s(sPQ,2)} offset:{1024*(h&3)}")
        L.append(f"global_load_dwordx4 {v(PQ+8*h+4,4)}, {v(vP1)}, {s(sPQ,2)} offset:{1024*(h&3)}")
        L.append(f"v_add_u32 {v(vKA)}, {v(vKA)}, {v(vKS)}")
        for k in range(2):
            L.append(f"buffer_load_dwordx4 {v(vWOA)}, {s(sSRO,4)}, {s(sWO)} offen lds")
            L.append(f"s_add_u32 m0, m0, 1024")
            L.append(f"s_add_u32 {s(sWO)}, {s(sWO)}, 8192")
        return L
    for h in range(LA):
        for x in loads(h): I(x)
    I(f"v_bfe_u32 {v(vT)}, v1, 2, 2")
    I(f"v_lshrrev_b32 {v(vT+1)}, 5, v1")
    I(f"v_lshl_add_u32 {v(vT)}, {v(vT+1)}, 2, {v(vT)}")
    I(f"v_lshlrev_b32 {v(vT)}, 7, {v(vT)}")
    I(f"v_and_b32 {v(vT+1)}, 1, v1")
    I(f"v_bfe_u32 {v(vT+2)}, v1, 4, 1")
    I(f"v_lshl_add_u32 {v(vT+1)}, {v(vT+1)}, 1, {v(vT+2)}")
    I(f"v_bfe_u32 {v(vT+2)}, v1, 3, 1")
    I(f"v_xor_b32 {v(vT+2)}, {s(sNT)}, {v(vT+2)}")
    I(f"v_lshl_add_u32 {v(vT+1)}, {v(vT+2)}, 2, {v(vT+1)}")
    I(f"v_lshl_add_u32 {v(vT)}, {v(vT+1)}, 4, {v(vT)}")
    I(f"v_bfe_u32 {v(vT+2)}, v1, 1, 1")
    I(f"v_lshl_add_u32 {v(vT)}, {v(vT+2)}, 3, {v(vT)}")
    I(f"s_lshl_b32 {s(sT)}, {s(S_WV)}, 14")
    I(f"v_add_u32 {v(vTR)}, {s(sT)}, {v(vT)}")
    I(f"v_xor_b32 {v(vTR1)}, 64, {v(vTR)}")
    I(f"s_mov_b32 {s(sEPS)}, 0x{f32bits(1e-6):08x}")
    I(f"v_lshrrev_b32 {v(vT)}, 2, v1")
    I(f"v_and_b32 {v(vT+2)}, 3, v1")
    I(f"v_lshlrev_b32 {v(vT+2)}, 4, {v(vT+2)}")
    I(f"v_lshl_add_u32 {v(vBTA)}, {v(vT)}, 12, {v(vT+2)}")
    I(f"s_add_u32 {s(sSRB)}, {s(S_WS)}, {WS_BT}")
    I(f"s_addc_u32 {s(sSRB+1)}, {s(S_WS+1)}, 0")
    I(f"s_mov_b32 {s(sSRB+2)}, 0x200000")
    I(f"s_mov_b32 {s(sSRB+3)}, 0x00020000")
    sBO, sGO = 66, 67
    I(f"s_lshl_b32 {s(sBO)}, {s(sCB)}, 18")
    I(f"s_lshl_b32 {s(sT2)}, {s(sNT)}, 17")
    I(f"s_add_u32 {s(sBO)}, {s(sBO)}, {s(sT2)}")
    I(f"s_lshl_b32 {s(sT2)}, {s(sRB)}, 7")
    I(f"s_add_u32 {s(sBO)}, {s(sBO)}, {s(sT2)}")
    I(f"s_lshl_b32 {s(sT2)}, {s(sST)}, 6")
    I(f"s_add_u32 {s(sBO)}, {s(sBO)}, {s(sT2)}")
    I(f"s_lshl_b32 {s(sGO)}, {s(sRB)}, 8")
    I(f"s_lshl_b32 {s(sT2)}, {s(sST)}, 7")
    I(f"s_add_u32 {s(sGO)}, {s(sGO)}, {s(sT2)}")
    I(f"s_add_u32 {s(sGO)}, {s(sGO)}, {WS_G}")
    I(f"v_and_b32 {v(vGG)}, 31, v1")
    I(f"v_lshl_add_u32 {v(vGG)}, {v(vGG)}, 2, {s(sGO)}")
    def extra_loads():
        L = []
        L.append(f"s_lshl_b32 {s(sT2)}, {s(S_WV)}, 11")
        L.append(f"s_add_u32 m0, {s(sT2)}, {BTOFF}")
        L.append(f"s_add_u32 s6, {s(sBO)}, 0x10000")
        L.append(f"buffer_load_dwordx4 {v(vBTA)}, {s(sSRB,4)}, {s(sBO)} offen lds")
        L.append(f"s_add_u32 m0, m0, 1024")
        L.append(f"global_load_dword {v(vGG)}, {v(vGG)}, {s(S_WS,2)}")
        L.append(f"buffer_load_dwordx4 {v(vBTA)}, {s(sSRB,4)}, s6 offen lds")
        return L
    def norm_list(h, st):
        n = NUM[st]; o = PQ + 8*h + 4*st
        L = [f"v_add_f32 {v(n+8)}, {s(sEPS)}, {v(n+8)}", f"v_rcp_f32 {v(n+8)}, {v(n+8)}"]
        for p in range(4): L.append(f"v_pk_mul_f32 {v(n+2*p,2)}, {v(n+2*p,2)}, {v(n+8,2)} op_sel_hi:[1,0]")
        for p in range(4): L.append(f"v_cvt_pk_bf16_f32 {v(o+p)}, {v(n+2*p)}, {v(n+2*p+1)}")
        return L
    def proj(h, st, nt):
        o = PQ + 8*h + 4*st
        w = KV+8*h+4 if nt == 0 else WF + 4*(h & 1)
        d = ACC + 16*(2*st+nt)
        return f"v_mfma_f32_32x32x16_bf16 {v(d,16)}, {v(w,4)}, {v(o,4)}, {'0' if h == 0 else v(d,16)}"
    issued = LA*6
    for h in range(8):
        I(f"s_waitcnt vmcnt({issued - 6*(h+1)})")
        if h == 0: stamp(A, 2)
        for p in range(4):
            I(f"v_cvt_pk_bf16_f32 {v(KV+8*h+p)}, {v(KV+8*h+2*p)}, {v(KV+8*h+2*p+1)}")
        if h > 0: I("s_waitcnt lgkmcnt(0)")
        I(f"ds_read_b64_tr_b16 {v(KV+8*h+4,2)}, {v(vTR)} offset:{2048*h}")
        I(f"ds_read_b64_tr_b16 {v(KV+8*h+6,2)}, {v(vTR)} offset:{2048*h+1024}")
        I(f"v_mfma_f32_32x32x16_bf16 {v(NUM[0],16)}, {v(KV+8*h,4)}, {v(PQ+8*h,4)}, 0")
        w1 = WF + 4*(h & 1)
        I(f"ds_read_b64_tr_b16 {v(w1,2)}, {v(vTR1)} offset:{2048*h}")
        I(f"ds_read_b64_tr_b16 {v(w1+2,2)}, {v(vTR1)} offset:{2048*h+1024}")
        I(f"v_mfma_f32_32x32x16_bf16 {v(NUM[1],16)}, {v(KV+8*h,4)}, {v(PQ+8*h+4,4)}, 0")
        if h + LA < 8:
            for x in loads(h+LA): I(x)
            issued += 6
        elif h + LA == 8:
            for x in extra_loads(): I(x)
            issued += 3
        n0, n1 = norm_list(h, 0), norm_list(h, 1)
        if h > 0:
            I(proj(h-1, 0, 0))
            for x in n0[:5]: I(x)
            I(proj(h-1, 0, 1))
            for x in n0[5:]: I(x)
            I(proj(h-1, 1, 0))
            for x in n1[:5]: I(x)
            I(proj(h-1, 1, 1))
            for x in n1[5:]: I(x)
        else:
            for x in n0 + n1: I(x)
    I("s_waitcnt lgkmcnt(0)")
    I(proj(7, 0, 1)); I(proj(7, 1, 0)); I(proj(7, 1, 1)); I(proj(7, 0, 0))
    stamp(A, 3)
    for t in range(1, 4):
        I(f"s_xor_b32 {s(sT)}, {s(S_WV)}, {t}")
        I(f"s_mul_i32 {s(sT)}, {s(sT)}, {3*4096}")
        I(f"s_add_u32 {s(sT)}, {s(sT)}, {RBUF}")
        I(f"v_add_u32 {v(vT+t)}, {s(sT)}, {v(vL16)}")
    I(f"v_bfe_u32 {v(vT)}, v1, 2, 2")
    I(f"v_lshrrev_b32 {v(vKA)}, 5, v1")
    I(f"v_lshl_add_u32 {v(vT)}, {v(vKA)}, 4, {v(vT)}")
    I(f"v_lshlrev_b32 {v(vT)}, 6, {v(vT)}")
    I(f"v_bfe_u32 {v(vKS)}, v1, 4, 1")
    I(f"v_lshl_add_u32 {v(vT)}, {v(vKS)}, 5, {v(vT)}")
    I(f"v_and_b32 {v(vKS)}, 3, v1")
    I(f"v_lshl_add_u32 {v(vT)}, {v(vKS)}, 3, {v(vT)}")
    I(f"s_lshl_b32 {s(sT)}, {s(S_WV)}, 11")
    I(f"s_add_u32 {s(sT)}, {s(sT)}, {BTOFF}")
    I(f"v_add_u32 {v(vT)}, {s(sT)}, {v(vT)}")
    I("s_waitcnt vmcnt(0)")
    BB = 16
    for j in range(4):
        I(f"ds_read_b64_tr_b16 {v(BB+2*j,2)}, {v(vT)} offset:{256*j}")
    for t in range(1, 4):
        for k in range(4):
            I(f"ds_write_b128 {v(vT+t)}, {v(ACC+16*t+4*k,4)} offset:{4096*(t-1)+1024*k}")
    I(f"s_mul_i32 {s(sT)}, {s(S_WV)}, {3*4096}")
    I(f"s_add_u32 {s(sT)}, {s(sT)}, {RBUF}")
    I(f"v_add_u32 {v(vT)}, {s(sT)}, {v(vL16)}")
    vOA = vWOA
    I(f"v_and_b32 {v(vOA)}, 31, v1")
    I(f"v_lshlrev_b32 {v(vKA)}, 5, {v(vKA)}")
    I(f"v_lshl_add_u32 {v(vOA)}, {v(vOA)}, 10, {v(vKA)}")
    I(f"s_lshl_b32 {s(sT)}, {s(sRB)}, 16")
    I(f"s_lshl_b32 {s(sT2)}, {s(sST)}, 15")
    I(f"s_add_u32 {s(sT)}, {s(sT)}, {s(sT2)}")
    I(f"s_lshl_b32 {s(sT2)}, {s(sCB)}, 7")
    I(f"s_add_u32 {s(sT)}, {s(sT)}, {s(sT2)}")
    I(f"s_lshl_b32 {s(sT2)}, {s(sNT)}, 6")
    I(f"s_add_u32 {s(sT)}, {s(sT)}, {s(sT2)}")
    I(f"v_add_u32 {v(vOA)}, {s(sT)}, {v(vOA)}")
    I(f"v_sub_f32 {v(vOM)}, 1.0, {v(vGG)}")
    I(f"v_cvt_pk_bf16_f32 {v(vOM)}, {v(vOM)}, {v(vOM)}")
    I(f"v_lshlrev_b32 {v(vOM+1)}, 16, {v(vOM)}")
    I("s_waitcnt lgkmcnt(12)")
    BF = 32
    for p in range(8):
        I(f"v_lshlrev_b32 {v(BF+2*p)}, 16, {v(BB+p)}")
        I(f"v_and_b32 {v(BF+2*p+1)}, 0xffff0000, {v(BB+p)}")
    for p in range(8): I(f"v_pk_mul_f32 {v(BF+2*p,2)}, {v(BF+2*p,2)}, {v(vOM+1,2)} op_sel_hi:[1,0]")
    I("s_waitcnt lgkmcnt(0)")
    I("s_barrier")
    R = 80
    for k in range(4):
        for w in range(3):
            I(f"ds_read_b128 {v(R+16*w+4*k,4)}, {v(vT)} offset:{4096*w+1024*k}")
    for k in range(4):
        I(f"s_waitcnt lgkmcnt({9-3*k})")
        for hh in range(2):
            r = 4*k + 2*hh
            I(f"v_pk_add_f32 {v(ACC+r,2)}, {v(ACC+r,2)}, {v(R+r,2)}")
            I(f"v_pk_add_f32 {v(R+16+r,2)}, {v(R+16+r,2)}, {v(R+32+r,2)}")
        for hh in range(2):
            r = 4*k + 2*hh
            I(f"v_pk_add_f32 {v(ACC+r,2)}, {v(ACC+r,2)}, {v(R+16+r,2)}")
        for hh in range(2):
            r = 4*k + 2*hh
            I(f"v_pk_fma_f32 {v(ACC+r,2)}, {v(ACC+r,2)}, {v(vOM+1,2)}, {v(BF+r,2)} op_sel:[0,1,0] op_sel_hi:[1,1,1]")
        for hh in range(2):
            r = 4*k + 2*hh
            I(f"v_cvt_pk_bf16_f32 {v(BB+r//2)}, {v(ACC+r)}, {v(ACC+r+1)}")
        if k == 1: I(f"global_store_dwordx4 {v(vOA)}, {v(BB,4)}, {s(S_OUT,2)}")
        if k == 3: I(f"global_store_dwordx4 {v(vOA)}, {v(BB+4,4)}, {s(S_OUT,2)} offset:16")
    if k1b.STAMP:
        stamp(A, 4)
        I("s_add_u32 s2, s2, 256")
        stamp_out(A, 5)
    A.label("K2_exit")
    I("s_endpgm")
    return A
```

```python
import sys
from asmlib import *
from k1b import *
import importlib

HEADER = open("gated_mix__linear_attn_block__ssm_conv_s4d__prompt.s.ref").read().split("; Override launch")[0]

def kernel_desc(name, vgpr, sgpr=100, accum=None):
    accum = accum or ((vgpr + 3)//4*4)
    return f""".p2align 6
.amdhsa_kernel {name}
  .amdhsa_next_free_vgpr {vgpr}
  .amdhsa_next_free_sgpr {sgpr}
  .amdhsa_accum_offset {accum}
  .amdhsa_group_segment_fixed_size 0
  .amdhsa_kernarg_size 112
  .amdhsa_user_sgpr_count 2
  .amdhsa_user_sgpr_kernarg_segment_ptr 1
  .amdhsa_system_sgpr_workgroup_id_x 1
.end_amdhsa_kernel
"""

def k1(parts=("A","B")):
    A = Asm(); I = A.I
    A.raw(".globl k1_kernel\n.p2align 10\n.type k1_kernel,@function\nk1_kernel:")
    I("s_cmp_ge_u32 s2, 256")
    I("s_cbranch_scc1 K1_exit")
    import k1b
    if k1b.STAMP:
        I("s_memtime s[72:73]")
        I("s_memrealtime s[92:93]")
    I("s_load_dwordx16 s[16:31], s[0:1], 0")
    I("s_load_dwordx8 s[32:39], s[0:1], 64")
    I("s_load_dwordx4 s[40:43], s[0:1], 96")
    I("v_lshrrev_b32 v1, 6, v0")
    I(f"s_and_b32 {s(S_XCD)}, s2, 7")
    I(f"s_lshr_b32 {s(S_J)}, s2, 3")
    I(f"v_readfirstlane_b32 {s(S_WV)}, v1")
    I(f"s_cmp_lt_u32 {s(S_J)}, 16")
    A.branch("s_cbranch_scc1 K1_B")
    import k1a
    k1a.gen_A(A)
    A.label("K1_B")
    gen_B(A)
    A.label("K1_exit")
    I("s_endpgm")
    return A

def build(parts=("A","B"), with_k2=True, path="gated_mix__linear_attn_block__ssm_conv_s4d__prompt.s"):
    out = HEADER
    out += "; @launch kernel=k1_kernel grid=(256,1,1) block=(512,1,1) lds=163840\n"
    if with_k2:
        import k2
        out += k2.LAUNCH
    out += '.amdgcn_target "amdgcn-amd-amdhsa--gfx950"\n.text\n'
    a1 = k1(parts)
    out += a1.text()
    print("k1 instrs", a1.count, "nops", a1.nops)
    if with_k2:
        a2 = k2.gen()
        out += a2.text()
        print("k2 instrs", a2.count, "nops", a2.nops)
    out += ".p2align 10\nCODE_END:\n"
    out += '.section .rodata,"a"\n'
    out += kernel_desc("k1_kernel", 256)
    if with_k2: out += kernel_desc("k2_kernel", k2.VGPRS)
    open(path, "w").write(out)

if __name__ == "__main__":
    if "stamp" in sys.argv:
        import k1b; k1b.STAMP = True
    if len(sys.argv) > 1 and sys.argv[1] == "B":
        build(("B",), False, "kB.s")
    elif len(sys.argv) > 1 and sys.argv[1] == "AB":
        build(("A","B"), False, "kAB.s")
    elif "stamp" in sys.argv:
        build(path="kS.s")
    else:
        build()
```

```python
from asmlib import *
from k1b import *
import k1b

RG = 16384
XREG = [0,1,2,3,4,5,6,8]
WREG = [7,8,9,7,8,9,7,9]
QOFF = [7*RG, 7*RG+8192, 9*RG, 9*RG+8192, 7*RG, 7*RG+8192, 1*RG, 1*RG+8192]
RED = 0
REDSZ = 4352
import os
B9POS, B10POS, B11I = eval(os.environ.get('BPOS', '30, 90, 22'))

def phi_list(acc, out, tmp, sL, sEPS):
    L = []
    for p in range(8): L.append(f"v_pk_mul_f32 {v(tmp+2*p,2)}, {v(acc+2*p,2)}, {s(sL,2)}")
    for r in range(16):
        L.append(f"v_exp_f32 {v(tmp+r)}, {v(tmp+r)} clamp")
        L.append(f"v_max_f32 {v(acc+r)}, {s(sEPS)}, {v(acc+r)}")
    for p in range(8): L.append(f"v_pk_add_f32 {v(acc+2*p,2)}, {v(acc+2*p,2)}, {v(tmp+2*p,2)}")
    for p in range(8): L.append(f"v_cvt_pk_bf16_f32 {v(out+p)}, {v(acc+2*p)}, {v(acc+2*p+1)}")
    return L

def gen_A(A):
    I = A.I
    sRB, sHQ, sROT, sT, sT2, sLW = 44, 45, 46, 47, 48, 49
    sRH, sHP = 50, 51
    sSRX, sSRW, sSRA = 52, 56, 60
    sL, sEPS = 64, 66
    sCX, sCW = 8, 9
    sPQ = 70
    sMX, sMW = 15, 7
    sA, sB = 10, 11
    vX0, vX1, vW = 2, 3, 9
    vT = 10
    vXA = 16
    vWA = 28
    I(f"s_sub_u32 {s(sT)}, {s(S_J)}, 16")
    I(f"s_lshr_b32 {s(sRB)}, {s(sT)}, 2")
    I(f"s_and_b32 {s(sHQ)}, {s(sT)}, 3")
    I(f"s_add_u32 {s(sROT)}, {s(sRB)}, {s(sHQ)}")
    I(f"s_and_b32 {s(sROT)}, {s(sROT)}, 3")
    I(f"s_lshl_b32 {s(sROT)}, {s(sROT)}, 1")
    I(f"s_lshr_b32 {s(sT)}, {s(S_XCD)}, 1")
    I(f"s_lshl_b32 {s(sT)}, {s(sT)}, 2")
    I(f"s_add_u32 {s(sRB)}, {s(sRB)}, {s(sT)}")
    I(f"s_and_b32 {s(sT)}, {s(S_XCD)}, 1")
    I(f"s_lshl_b32 {s(sT)}, {s(sT)}, 2")
    I(f"s_add_u32 {s(sHQ)}, {s(sHQ)}, {s(sT)}")
    I("v_and_b32 v1, 63, v0")
    I(f"s_and_b32 {s(sLW)}, {s(S_WV)}, 3")
    I(f"v_lshrrev_b32 {v(vT)}, 3, v1")
    I(f"v_and_b32 {v(vT+1)}, 7, v1")
    I(f"v_lshrrev_b32 {v(vT+2)}, 4, v1")
    I(f"v_xor_b32 {v(vT+3)}, {v(vT+1)}, {v(vT+2)}")
    I(f"v_lshlrev_b32 {v(vT+3)}, 4, {v(vT+3)}")
    I(f"v_lshl_add_u32 {v(vX0)}, {v(vT)}, 10, {v(vT+3)}")
    I(f"v_xor_b32 {v(vX1)}, 64, {v(vX0)}")
    I(f"v_and_b32 {v(vT+2)}, 1, {v(vT+2)}")
    I(f"v_lshlrev_b32 {v(vT+2)}, 2, {v(vT+2)}")
    I(f"v_xor_b32 {v(vT+3)}, {v(vT+1)}, {v(vT+2)}")
    I(f"v_lshlrev_b32 {v(vT+3)}, 4, {v(vT+3)}")
    I(f"v_mul_u32_u24 {v(vW)}, 3072, {v(vT)}")
    I(f"v_add_u32 {v(vW)}, {v(vW)}, {v(vT+3)}")
    I(f"s_lshl_b32 {s(sCX)}, {s(sRB)}, 17")
    I(f"s_lshl_b32 {s(sT)}, {s(sLW)}, 15")
    I(f"s_add_u32 {s(sCX)}, {s(sCX)}, {s(sT)}")
    I(f"s_mul_i32 {s(sCW)}, {s(sLW)}, {16*3072}")
    I(f"s_lshl_b32 {s(sT)}, {s(sHQ)}, 7")
    I(f"s_add_u32 {s(sCW)}, {s(sCW)}, {s(sT)}")
    I(f"s_lshl_b32 {s(sMX)}, {s(sLW)}, 12")
    I(f"s_lshl_b32 {s(sMW)}, {s(sLW)}, 11")
    I(f"s_mov_b32 {s(sSRX+2)}, 0x200000")
    I(f"s_mov_b32 {s(sSRX+3)}, 0x00020000")
    I(f"s_mov_b32 {s(sSRW+2)}, 0x180000")
    I(f"s_mov_b32 {s(sSRW+3)}, 0x00020000")
    I(f"s_cmp_lt_u32 {s(S_WV)}, 4")
    A.branch("s_cbranch_scc1 A_setA")

    def srds():
        I(f"s_mov_b32 {s(sSRX)}, {s(S_X)}")
        I(f"s_mov_b32 {s(sSRX+1)}, {s(S_X+1)}")
        I(f"s_mov_b32 {s(sSRW)}, {s(S_WQKV)}")
        I(f"s_mov_b32 {s(sSRW+1)}, {s(S_WQKV+1)}")
    def chunk(n):
        I(f"s_add_u32 s12, {s(sROT)}, {n}")
        I(f"s_and_b32 s12, s12, 7")
    def issue_x(n):
        I(f"s_lshl_b32 {s(sA)}, s12, 7")
        I(f"s_add_u32 m0, {s(sMX)}, {XREG[n]*RG}")
        I(f"s_add_u32 {s(sA)}, {s(sA)}, {s(sCX)}")
        for i in range(4):
            if i:
                I(f"s_add_u32 m0, m0, 1024"); I(f"s_add_u32 {s(sA)}, {s(sA)}, 8192")
            I(f"buffer_load_dwordx4 {v(vX1 if i & 1 else vX0)}, {s(sSRX,4)}, {s(sA)} offen lds")
    def issue_w(parts):
        I(f"s_mul_i32 {s(sB)}, s12, {64*3072}")
        I(f"s_add_u32 {s(sB)}, {s(sB)}, {s(sCW)}")
        for col, lds in parts:
            for h in range(2):
                I(f"s_add_u32 m0, {s(sMW)}, {lds + 1024*h}")
                I(f"s_add_u32 {s(sA)}, {s(sB)}, {col + h*8*3072}")
                I(f"buffer_load_dwordx4 {v(vW)}, {s(sSRW,4)}, {s(sA)} offen lds")
    def kvparts(n): return [(1024, WREG[n]*RG), (2048, WREG[n]*RG + 8192)]
    def frag_addrs():
        I(f"s_lshr_b32 {s(sRH)}, {s(sLW)}, 1")
        I(f"s_and_b32 {s(sHP)}, {s(sLW)}, 1")
        I(f"v_and_b32 {v(vT)}, 31, v1")
        I(f"v_lshrrev_b32 {v(vT+1)}, 5, v1")
        I(f"v_bfe_u32 {v(vT+2)}, {v(vT)}, 1, 3")
        I(f"v_xor_b32 {v(vT+2)}, {v(vT+2)}, {v(vT+1)}")
        I(f"s_lshl_b32 {s(sT)}, {s(sRH)}, 13")
        I(f"v_lshl_add_u32 {v(vT+3)}, {v(vT)}, 7, {s(sT)}")
        for ks in range(4):
            I(f"v_xor_b32 {v(vT+4)}, {2*ks}, {v(vT+2)}")
            I(f"v_lshl_add_u32 {v(vXA+ks)}, {v(vT+4)}, 4, {v(vT+3)}")
            I(f"v_add_u32 {v(vXA+4+ks)}, 0x10000, {v(vXA+ks)}")
            I(f"v_add_u32 {v(vXA+8+ks)}, 0x20000, {v(vXA+ks)}")
        I(f"v_bfe_u32 {v(vT)}, v1, 2, 2")
        I(f"v_lshl_add_u32 {v(vT+2)}, {v(vT+1)}, 3, {v(vT)}")
        I(f"v_lshlrev_b32 {v(vT+2)}, 7, {v(vT+2)}")
        I(f"v_bfe_u32 {v(vT+3)}, v1, 4, 1")
        I(f"v_bfe_u32 {v(vT+4)}, v1, 1, 1")
        I(f"v_lshl_add_u32 {v(vT+3)}, {v(vT+3)}, 1, {v(vT+4)}")
        I(f"v_bfe_u32 {v(vT+4)}, v1, 3, 1")
        I(f"v_xor_b32 {v(vT+4)}, {s(sHP)}, {v(vT+4)}")
        I(f"v_lshl_add_u32 {v(vT+3)}, {v(vT+4)}, 2, {v(vT+3)}")
        I(f"v_lshl_add_u32 {v(vT+2)}, {v(vT+3)}, 4, {v(vT+2)}")
        I(f"v_and_b32 {v(vT+4)}, 1, v1")
        I(f"v_lshl_add_u32 {v(vWA)}, {v(vT+4)}, 3, {v(vT+2)}")
        I(f"v_add_u32 {v(vWA+1)}, {7*RG}, {v(vWA)}")
        I(f"s_mov_b32 {s(sL)}, 0x{f32bits(LOG2E):08x}")
        I(f"s_mov_b32 {s(sL+1)}, 0x{f32bits(LOG2E):08x}")
        I(f"s_mov_b32 {s(sEPS)}, 0x{f32bits(1e-6):08x}")
    def xrd(dst, n, ks, rt):
        off = XREG[n]*RG + 4096*rt
        return f"ds_read_b128 {v(dst,4)}, {v(vXA + 4*(off >> 16) + ks)} offset:{off & 0xffff}"
    def wrd(dst, base, ks, h):
        off = base + 2048*ks + 512*h
        if off >= 7*RG: return f"ds_read_b64_tr_b16 {v(dst,2)}, {v(vWA+1)} offset:{off - 7*RG}"
        return f"ds_read_b64_tr_b16 {v(dst,2)}, {v(vWA)} offset:{off}"

    I("s_waitcnt lgkmcnt(0)")
    stamp(A, 1)
    srds()
    for n in range(2):
        chunk(n); issue_w(kvparts(n)); issue_x(n)
    frag_addrs()
    vGA, vG16 = 30, 33
    GWF, GXF, GACC = 128, 160, 164
    QACC = 64
    I(f"v_and_b32 {v(vT)}, 15, v1")
    I(f"s_lshl_b32 {s(sT)}, {s(sHQ)}, 4")
    I(f"v_add_u32 {v(vT)}, {s(sT)}, {v(vT)}")
    I(f"v_lshrrev_b32 {v(vT+1)}, 4, v1")
    I(f"v_bfe_u32 {v(vT+2)}, {v(vT)}, 1, 3")
    I(f"v_xor_b32 {v(vT+2)}, {v(vT+2)}, {v(vT+1)}")
    I(f"v_lshlrev_b32 {v(vT+2)}, 4, {v(vT+2)}")
    I(f"v_lshl_add_u32 {v(vGA)}, {v(vT)}, 7, {v(vT+2)}")
    I(f"s_lshl_b32 {s(sT)}, {s(sHP)}, 6")
    I(f"v_xor_b32 {v(vGA)}, {s(sT)}, {v(vGA)}")
    I(f"v_add_u32 {v(vGA+1)}, 0x10000, {v(vGA)}")
    I(f"v_add_u32 {v(vGA+2)}, 0x20000, {v(vGA)}")
    I(f"v_lshlrev_b32 {v(vG16)}, 4, {v(vT+1)}")
    I(f"v_add_u32 {v(vT+3)}, {s(sT)}, {v(vG16)}")
    for r in range(32): I(f"v_mov_b32 {v(QACC+r)}, {s(sEPS)}")
    nv = 16
    land = {0: 8, 1: 16}
    def gwload(n):
        I(f"s_lshl_b32 {s(sA)}, s12, 7")
        I(f"v_add_u32 {v(vT)}, {s(sA)}, {v(vT+3)}")
        I(f"global_load_dwordx4 {v(GWF+4*n,4)}, {v(vT)}, {s(S_GW,2)}")
    gl = {}
    for n in range(8):
        I(f"s_waitcnt vmcnt({nv - land[n]})")
        I("s_barrier")
        if n == 0:
            for m in range(2):
                chunk(m); gwload(m); nv += 1; gl[m] = nv
        if n + 2 <= 6:
            chunk(n+2); issue_w(kvparts(n+2)); issue_x(n+2); nv += 8; land[n+2] = nv
            gwload(n+2); nv += 1; gl[n+2] = nv
        elif n == 5:
            chunk(7); issue_x(7); nv += 4
            gwload(7); nv += 1; gl[7] = nv
        elif n == 6:
            chunk(7); issue_w(kvparts(7)); nv += 4; land[7] = nv
        elif n == 7:
            for m in range(2):
                chunk(m); issue_w([(0, QOFF[m])]); nv += 2
        if n in (5, 6, 7):
            ms = {5: (0, 1), 6: (2, 3, 4), 7: (5, 6)}[n]
            for k, m in enumerate(ms):
                off = XREG[m]*RG
                I(f"ds_read_b128 {v(216+4*k,4)}, {v(vGA + (off >> 16))} offset:{off & 0xffff}")
            I(f"s_waitcnt vmcnt({nv - gl[ms[-1]]}) lgkmcnt(0)")
            for k, m in enumerate(ms):
                I(f"v_mfma_f32_16x16x32_bf16 {v(GACC,4)}, {v(216+4*k,4)}, {v(GWF+4*m,4)}, {'0' if m == 0 else v(GACC,4)}")
    off = XREG[7]*RG
    I(f"ds_read_b128 {v(GXF,4)}, {v(vGA + (off >> 16))} offset:{off & 0xffff}")
    I(f"s_lshl_b32 {s(sT)}, {s(sRB)}, 2")
    I(f"s_lshl_b32 {s(sT2)}, {s(sRH)}, 1")
    I(f"s_add_u32 {s(sT)}, {s(sT)}, {s(sT2)}")
    I(f"s_lshl_b32 {s(sT)}, {s(sT)}, 5")
    I(f"s_lshl_b32 {s(sT2)}, {s(sHQ)}, 2")
    I(f"s_add_u32 {s(sT)}, {s(sT)}, {s(sT2)}")
    I(f"s_lshl_b32 {s(sT2)}, {s(sHP)}, 1")
    I(f"s_add_u32 {s(sT)}, {s(sT)}, {s(sT2)}")
    I(f"s_lshl_b32 {s(sT)}, {s(sT)}, 10")
    I(f"s_add_u32 {s(sPQ)}, {s(S_WS)}, {s(sT)}")
    I(f"s_addc_u32 {s(sPQ+1)}, {s(S_WS+1)}, 0")
    I(f"v_lshlrev_b32 v2, 4, v1")
    I(f"v_add_u32 v3, 0x8000, v2")
    I("s_waitcnt lgkmcnt(0)")
    I(f"v_mfma_f32_16x16x32_bf16 {v(GACC,4)}, {v(GXF,4)}, {v(GWF+28,4)}, {v(GACC,4)}")
    q = LQ(A)
    NS = 4
    QX = lambda i: 168 + 12*(i % NS)
    def qx(i, rt): q.issue(xrd(QX(i)+4*rt, i//4, i % 4, rt), ("x", i, rt))
    def qw(i, h): q.issue(wrd(QX(i)+8+2*h, QOFF[i//4], i % 4, h), ("w", i))
    for i in range(3):
        qx(i, 0); qx(i, 1)
    I("s_waitcnt vmcnt(0)")
    I("s_barrier")
    stamp(A, 3)
    if k1b.STAMP: q.reset()
    wnext = 0
    def wlimit(i):
        return state["lim"]
    state = {"lim": 8}
    for i in range(3):
        qw(i, 0); qw(i, 1)
    wnext = 3
    for i in range(32):
        for rt in range(2):
            q.need(("w", i), ("x", i, rt))
            I(f"v_mfma_f32_32x32x16_bf16 {v(QACC+16*rt,16)}, {v(QX(i)+8,4)}, {v(QX(i)+4*rt,4)}, {v(QACC+16*rt,16)}")
            if i == 5 and rt == 0:
                q.need(("w", 7), ("x", 7, 1))
                I("s_barrier"); state["lim"] = 16
                q.issue(f"ds_write_b128 {v(vT+3)}, {v(GACC,4)} offset:{RED+2*REDSZ}", "gl")
            if i == 13 and rt == 0:
                q.need("gl")
                I("s_barrier"); state["lim"] = 32
            if i == B11I and rt == 0:
                I("s_barrier")
            j = i + 3
            if j < 32:
                qx(j, rt)
                assert j < state["lim"], (i, rt)
                qw(j, rt)
    stamp(A, 4)
    for x in phi_list(QACC, 32, 96, sL, sEPS): I(x)
    I(f"global_store_dwordx4 v2, v[32:35], {s(sPQ,2)} sc0 sc1")
    I(f"global_store_dwordx4 v2, v[36:39], {s(sPQ,2)} offset:1024 sc0 sc1")
    for x in phi_list(QACC+16, 40, 96, sL, sEPS): I(x)
    I(f"global_store_dwordx4 v3, v[40:43], {s(sPQ,2)} sc0 sc1")
    I(f"global_store_dwordx4 v3, v[44:47], {s(sPQ,2)} offset:1024 sc0 sc1")
    stamp(A, 5)
    stamp_out(A, 9)
    I("s_endpgm")

    A.label("A_setA")
    frag_addrs()
    ACC = 64
    K = lambda rt: ACC + 16*rt
    V = lambda rt: ACC + 32 + 16*rt
    FR = lambda i: 128 + 16*(i % 4)
    I("s_waitcnt lgkmcnt(0)")
    stamp(A, 1)
    srds()
    I(f"s_mul_i32 {s(sT)}, {s(sHQ)}, {REDSZ}")
    I(f"s_add_u32 {s(sT)}, {s(sT)}, {WS_ACC}")
    I(f"s_add_u32 {s(sSRA)}, {s(S_WS)}, {s(sT)}")
    I(f"s_addc_u32 {s(sSRA+1)}, {s(S_WS+1)}, 0")
    I(f"s_mov_b32 {s(sSRA+2)}, {REDSZ}")
    I(f"s_mov_b32 {s(sSRA+3)}, 0x00020000")
    I(f"s_lshl_b32 {s(sT)}, {s(sHQ)}, 2")
    I(f"v_mov_b32 v5, {s(sT)}")
    I(f"s_or_b32 {s(sT)}, {s(sRB)}, {s(S_WV)}")
    I(f"s_cmp_eq_u32 {s(sT)}, 0")
    A.branch("s_cbranch_scc0 A_nozero")
    for r in range(4): I(f"v_mov_b32 {v(32+r)}, 0")
    I(f"v_lshlrev_b32 {v(vT)}, 4, v1")
    for k in range(4):
        I(f"buffer_store_dwordx4 v[32:35], {v(vT)}, {s(sSRA,4)}, 0 offen offset:{1024*k} sc0 sc1")
    I(f"v_add_u32 {v(vT+1)}, 4096, {v(vT)}")
    I(f"buffer_store_dwordx4 v[32:35], {v(vT+1)}, {s(sSRA,4)}, 0 offen sc0 sc1")
    I("s_waitcnt vmcnt(0)")
    I(f"v_mov_b32 {v(vT+1)}, 1")
    I(f"global_store_dword v5, {v(vT+1)}, {s(S_DBG,2)} sc0 sc1")
    A.label("A_nozero")
    for r in range(32): I(f"v_mov_b32 {v(ACC+r)}, {s(sEPS)}")
    vRK, vRZ, vAT = 30, 31, 6
    I(f"v_bfe_u32 {v(vT)}, v1, 4, 1")
    I(f"v_cmp_eq_u32 s[68:69], 1, {v(vT)}")
    I(f"v_lshrrev_b32 {v(vT+1)}, 5, v1")
    I(f"v_lshl_add_u32 {v(vT+1)}, {v(vT)}, 1, {v(vT+1)}")
    I(f"s_lshl_b32 {s(sT)}, {s(sHP)}, 2")
    I(f"v_add_u32 {v(vT+1)}, {s(sT)}, {v(vT+1)}")
    I(f"v_and_b32 {v(vT+2)}, 15, v1")
    I(f"v_lshl_add_u32 {v(vT+3)}, {v(vT+1)}, 5, {v(vT+2)}")
    I(f"s_mul_i32 {s(sT)}, {s(sRH)}, {REDSZ}")
    I(f"v_lshl_add_u32 {v(vRK)}, {v(vT+3)}, 4, {s(sT)}")
    I(f"v_lshl_add_u32 {v(vRZ)}, {v(vT+1)}, 5, {s(sT)}")
    I(f"v_lshlrev_b32 {v(vAT)}, 2, v0")
    I(f"v_add_u32 {v(vAT+1)}, 4096, {v(vAT)}")
    I("v_mov_b32 v4, 1")
    vONE = 248
    q = LQ(A)
    def rl(i):
        n, ks = i // 4, i % 4; f = FR(i); b = WREG[n]*RG
        return [(xrd(f, n, ks, 0), ("a", i)), (wrd(f+8, b, ks, 0), None), (wrd(f+10, b, ks, 1), ("a", i)),
                (wrd(f+12, b+8192, ks, 0), None), (wrd(f+14, b+8192, ks, 1), ("b", i)), (xrd(f+4, n, ks, 1), ("c", i))]
    I("s_barrier")
    stamp(A, 2)
    pend = []
    for i in range(32): pend += [(i,) + x for x in rl(i)]
    lim = 4
    def pop(k, cur):
        for _ in range(k):
            if pend and pend[0][0] < lim and pend[0][0] <= cur + 3:
                i, t, tag = pend.pop(0); q.issue(t, tag)
    pop(12, 0)
    for i in range(32):
        f = FR(i); X = lambda rt: v(f+4*rt,4)
        seq = [(K(0), X(0), v(f+8,4), "a"), (V(0), X(0), v(f+12,4), "b"), (K(1), X(1), v(f+8,4), "c"), (V(1), X(1), v(f+12,4), "c")]
        for m, (d, a_, b_, tg) in enumerate(seq):
            q.need((tg, i))
            c = "0" if (i == 0 and m in (1, 3)) else v(d,16)
            I(f"v_mfma_f32_32x32x16_bf16 {v(d,16)}, {a_}, {b_}, {c}")
            if i % 4 == 2 and m == 1:
                q.need(("c", i+1))
                I("s_barrier")
                lim += 4
                if i == 30:
                    for mm in (2, 3):
                        chunk(mm); issue_w([(0, QOFF[mm])])
                    I(f"s_cmp_eq_u32 {s(sLW)}, 1")
                    I("s_cbranch_scc0 A_nf")
                    I(f"global_load_dword v4, v5, {s(S_DBG,2)} sc0 sc1")
                    A.raw("A_nf:")
            pop(2 if m % 2 == 0 else 1, i - 1 if m < 3 else i)
            if i % 4 >= 2: pop(1, i - 1 if m < 3 else i)
    assert not pend
    stamp(A, 3)
    PKK, PVV, TMP = 32, 48, 128
    D, Z = 144, 160
    for r in range(4): I(f"v_mov_b32 {v(vONE+r)}, 0x3f803f80")
    L = []
    for rt in range(2):
        L += phi_list(K(rt), PKK+8*rt, TMP, sL, sEPS)
        for p in range(8):
            L.append(f"v_cvt_pk_bf16_f32 {v(PVV+8*rt+p)}, {v(V(rt)+2*p)}, {v(V(rt)+2*p+1)}")
        for n in (2*rt, 2*rt+1):
            L.append(f"v_mfma_f32_32x32x16_bf16 {v(D,16)}, {v(PKK+4*n,4)}, {v(PVV+4*n,4)}, {'0' if n == 0 else v(D,16)}")
            L.append(f"v_mfma_f32_32x32x16_bf16 {v(Z,16)}, {v(PKK+4*n,4)}, {v(vONE,4)}, {'0' if n == 0 else v(Z,16)}")
    for n, x in enumerate(L):
        if n == B9POS:
            I("s_waitcnt vmcnt(0)")
            I("s_barrier")
            stamp(A, 4)
            for mm in range(4, 8):
                chunk(mm); issue_w([(0, QOFF[mm])])
        if n == B10POS:
            I("s_waitcnt vmcnt(0)")
            I("s_barrier")
            stamp(A, 5)
        I(x)
    A.label("A_poll", flush=False)
    I("v_readfirstlane_b32 s12, v4")
    I("s_cmp_lg_u32 s12, 0")
    A.branch("s_cbranch_scc1 A_polled")
    I("s_sleep 2")
    I(f"global_load_dword v4, v5, {s(S_DBG,2)} sc0 sc1")
    I("s_waitcnt vmcnt(0)")
    I("s_branch A_poll")
    A.label("A_polled")
    SEL = 64
    for i in range(8): I(f"v_cndmask_b32 {v(SEL+i)}, {v(D+i)}, {v(D+8+i)}, s[68:69]")
    I(f"ds_write_b128 {v(vRK)}, {v(SEL,4)} offset:{RED}")
    I(f"ds_write_b128 {v(vRK)}, {v(SEL+4,4)} offset:{RED+256}")
    for i in range(8): I(f"v_cndmask_b32 {v(SEL+8+i)}, {v(Z+i)}, {v(Z+8+i)}, s[68:69]")
    I("s_mov_b32 exec_lo, 0x00010001"); I("s_mov_b32 exec_hi, 0x00010001")
    I(f"ds_write_b128 {v(vRZ)}, {v(SEL+8,4)} offset:{RED+4096}")
    I(f"ds_write_b128 {v(vRZ)}, {v(SEL+12,4)} offset:{RED+4112}")
    I("s_mov_b64 exec, -1")
    I("s_waitcnt lgkmcnt(0)")
    stamp(A, 6)
    I("s_barrier")
    stamp(A, 7)
    for k in range(5):
        I(f"ds_read_b32 {v(32+2*k)}, {v(vAT)} offset:{RED+1024*k}")
        I(f"ds_read_b32 {v(33+2*k)}, {v(vAT)} offset:{RED+1024*k+REDSZ}")
    for k in range(5):
        I(f"s_waitcnt lgkmcnt({8-2*k})")
        I(f"v_add_f32 {v(32+2*k)}, {v(32+2*k)}, {v(33+2*k)}")
        if k < 4: I(f"buffer_atomic_add_f32 {v(32+2*k)}, {v(vAT)}, {s(sSRA,4)}, 0 offen offset:{1024*k}")
        else: I(f"buffer_atomic_add_f32 {v(32+2*k)}, {v(vAT+1)}, {s(sSRA,4)}, 0 offen")
    I(f"s_cmp_eq_u32 {s(sLW)}, 0")
    A.branch("s_cbranch_scc0 A_gdone")
    G, G2 = 48, 52
    I(f"v_lshrrev_b32 {v(vT)}, 4, v1")
    I(f"v_lshlrev_b32 {v(vT)}, 4, {v(vT)}")
    I(f"ds_read_b128 {v(G,4)}, {v(vT)} offset:{RED+2*REDSZ}")
    I(f"ds_read_b128 {v(G2,4)}, {v(vT)} offset:{RED+2*REDSZ+64}")
    I("s_waitcnt lgkmcnt(0)")
    for r in range(4): I(f"v_add_f32 {v(G+r)}, {v(G+r)}, {v(G2+r)}")
    def rb4():
        I(f"v_cvt_pk_bf16_f32 {v(G2)}, {v(G)}, {v(G+1)}")
        I(f"v_cvt_pk_bf16_f32 {v(G2+1)}, {v(G+2)}, {v(G+3)}")
        I(f"v_lshlrev_b32 {v(G)}, 16, {v(G2)}")
        I(f"v_and_b32 {v(G+1)}, 0xffff0000, {v(G2)}")
        I(f"v_lshlrev_b32 {v(G+2)}, 16, {v(G2+1)}")
        I(f"v_and_b32 {v(G+3)}, 0xffff0000, {v(G2+1)}")
    rb4()
    for r in range(4): I(f"v_mul_f32 {v(G+r)}, 0x{f32bits(-LOG2E):08x}, {v(G+r)}")
    for r in range(4): I(f"v_exp_f32 {v(G+r)}, {v(G+r)}")
    for r in range(4): I(f"v_add_f32 {v(G+r)}, 1.0, {v(G+r)}")
    for r in range(4): I(f"v_rcp_f32 {v(G+r)}, {v(G+r)}")
    rb4()
    I(f"s_lshl_b32 {s(sT)}, {s(sRB)}, 9")
    I(f"s_lshl_b32 {s(sT2)}, {s(sHQ)}, 6")
    I(f"s_add_u32 {s(sT)}, {s(sT)}, {s(sT2)}")
    I(f"s_add_u32 {s(sT)}, {s(sT)}, {WS_G}")
    I(f"v_add_u32 {v(vT)}, {s(sT)}, {v(vT)}")
    I(f"global_store_dwordx4 {v(vT)}, {v(G,4)}, {s(S_WS,2)} sc0 sc1")
    A.label("A_gdone")
    stamp_out(A, 9)
    I("s_endpgm")
```

```python
from asmlib import *
import struct
def f32bits(x): return struct.unpack("<I", struct.pack("<f", x))[0]
LOG2E = 1.4426950408889634
LOG2E_HI = struct.unpack("<f", struct.pack("<f", LOG2E))[0]
LOG2E_LO = LOG2E - LOG2E_HI
LN2 = 0.6931471805599453
INV2PI = 0.15915494309189535

WS_PQ = 0x000000
WS_BT = 0x200000
WS_ACC = 0x400000
WS_G = 0x410000

S_X, S_WQKV, S_WO, S_U, S_LAR, S_AIM, S_CR, S_CI = 16, 18, 20, 22, 24, 26, 28, 30
S_LDT, S_DSK, S_GW, S_OUT, S_DBG, S_WS = 32, 34, 36, 38, 40, 42
S_XCD, S_J, S_WV = 3, 4, 5

RS = 2064
NROW = 56
ONEROW = NROW * RS
U0 = ONEROW + 512
USZ = 4608
K0 = U0 + 4 * USZ
KSZ = 3200
R1OFF = 1216
X3OFF = 2336
X4OFF = 2848
PT0 = K0 + 4 * KSZ
PTSZ = 2 * R1OFF
B_LDS_END = PT0 + PTSZ
CEN, CEN4, LO5 = 33, 32, 33
assert B_LDS_END <= 163840

def nib(tab):
    x = 0
    for r, t in enumerate(tab): x |= t << (4 * r)
    return x & 0xffffffff, x >> 32
T0 = list(range(16))
T1 = [0,0,1,2,2,2,3,4,4,4,5,6,6,6,7,8]
T2 = [0,0,0,1,1,1,2,2,2,2,2,3,3,3,4,4]
T3 = [0]*5 + [1]*7 + [2]*4

def cmul(A, d, x, y):
    A.I(f"v_pk_mul_f32 {v(d,2)}, {v(x,2)}, {v(y,2)} op_sel_hi:[1,0]")
    A.I(f"v_pk_fma_f32 {v(d,2)}, {v(x,2)}, {v(y,2)}, {v(d,2)} op_sel:[1,1,0] op_sel_hi:[0,1,1] neg_lo:[1,0,0]")

def exp_rbf(A, dst, src, t0, t1, sc):
    A.I(f"v_mul_f32 {v(t0)}, {s(sc)}, {v(src)}")
    A.I(f"v_fma_f32 {v(t1)}, {v(src)}, {s(sc)}, -{v(t0)}")
    A.I(f"v_fma_f32 {v(t1)}, {v(src)}, {s(sc+1)}, {v(t1)}")
    A.I(f"v_exp_f32 {v(t0)}, {v(t0)}")
    A.I(f"v_mul_f32 {v(t1)}, {s(sc+2)}, {v(t1)}")
    A.I(f"v_fma_f32 {v(t0)}, {v(t0)}, {v(t1)}, {v(t0)}")
    A.I(f"v_cvt_pk_bf16_f32 {v(t0)}, {v(t0)}, {v(t0)}")
    A.I(f"v_lshlrev_b32 {v(dst)}, 16, {v(t0)}")

STAMP = False
import os
PRIOB = int(os.environ.get('PRIOB', 4))
WS_STAMP = 0x500000
def stamp(A, k):
    if not STAMP: return
    A.I("s_waitcnt lgkmcnt(0)")
    A.I(f"s_memtime {s(72+2*k,2)}")
    A.I("s_waitcnt lgkmcnt(0)")
def stamp_out(A, n, vr=246):
    if not STAMP: return
    I = A.I
    I("s_waitcnt lgkmcnt(0) vmcnt(0)")
    I(f"s_memtime {s(72+2*n,2)}")
    I("s_memrealtime s[94:95]")
    I("s_waitcnt lgkmcnt(0)")
    I(f"s_lshl_b32 s6, s2, 3")
    I(f"s_add_u32 s6, s6, {s(S_WV)}")
    I(f"s_lshl_b32 s6, s6, 6")
    I(f"s_add_u32 s6, s6, {WS_STAMP}")
    I(f"v_mov_b32 {v(vr)}, s6")
    for k in range(n+1):
        I(f"v_mov_b32 {v(vr+1)}, {s(72+2*k)}")
        I(f"global_store_dword {v(vr)}, {v(vr+1)}, {s(S_WS,2)} offset:{4*k}")
    I(f"v_mov_b32 {v(vr+1)}, s94")
    I(f"global_store_dword {v(vr)}, {v(vr+1)}, {s(S_WS,2)} offset:60")
    I(f"v_mov_b32 {v(vr+1)}, s92")
    I(f"global_store_dword {v(vr)}, {v(vr+1)}, {s(S_WS,2)} offset:56")
    I("s_getreg_b32 s6, hwreg(HW_REG_HW_ID)")
    I(f"v_mov_b32 {v(vr+1)}, s6")
    I(f"global_store_dword {v(vr)}, {v(vr+1)}, {s(S_WS,2)} offset:52")

def gen_B(A):
    I = A.I
    sCH, sHF, sD0, sD, sT, sUC, sKC, sROT = 44, 45, 46, 47, 48, 49, 50, 51
    sC = 52
    sM = 56
    sTB = 58
    sBT = 68
    vLANE, vB, vG = 1, 2, 3
    vROW = 4
    vGA = 8
    vLAR, vAIM, vCR, vCI, vLDT, vDSK = 16, 17, 18, 19, 20, 21
    vT = 22
    W = lambda r: 32 + 2 * (r - 1)
    G = lambda p: 64 + 2 * (p - 1)
    F = lambda f: 80 + 2 * f
    H = lambda k: 112 + 2 * (k - 1)
    vP = 118
    vPK = 126
    vFA, vE0, vE1 = 130, 131, 132
    vY = 204
    I(f"s_and_b32 {s(sCH)}, {s(S_WV)}, 3")
    I(f"s_lshr_b32 {s(sHF)}, {s(S_WV)}, 2")
    I(f"s_lshl_b32 {s(sD0)}, {s(S_XCD)}, 6")
    I(f"s_lshl_b32 {s(sT)}, {s(S_J)}, 2")
    I(f"s_add_u32 {s(sD0)}, {s(sD0)}, {s(sT)}")
    I(f"s_add_u32 {s(sD)}, {s(sD0)}, {s(sCH)}")
    I(f"v_and_b32 {v(vLANE)}, 63, v0")
    I(f"s_lshl_b32 {s(sT)}, {s(sD)}, 8")
    I(f"s_lshl_b32 {s(sROT)}, {s(sHF)}, 7")
    I(f"s_add_u32 {s(sT)}, {s(sT)}, {s(sROT)}")
    I(f"v_lshl_add_u32 {v(vT)}, {v(vLANE)}, 1, {s(sT)}")
    I(f"s_lshl_b32 {s(sT)}, {s(sD)}, 1")
    I(f"v_mov_b32 {v(vT+1)}, {s(sT)}")
    I(f"s_lshl_b32 {s(sROT)}, {s(S_J)}, 5")
    I(f"v_add_u32 {v(vT+2)}, {s(sROT)}, v0")
    I(f"v_and_b32 {v(vT+2)}, 0x1ff, {v(vT+2)}")
    I("s_waitcnt lgkmcnt(0)")
    stamp(A, 1)
    I(f"global_load_ushort {v(vLDT)}, {v(vT+1)}, {s(S_LDT,2)}")
    I(f"global_load_ushort {v(vLAR)}, {v(vT)}, {s(S_LAR,2)}")
    I(f"global_load_ushort {v(vAIM)}, {v(vT)}, {s(S_AIM,2)}")
    I(f"global_load_ushort {v(vCR)}, {v(vT)}, {s(S_CR,2)}")
    I(f"global_load_ushort {v(vCI)}, {v(vT)}, {s(S_CI,2)}")
    I(f"global_load_ushort {v(vDSK)}, {v(vT+1)}, {s(S_DSK,2)}")
    I(f"s_lshl_b32 {s(sT)}, {s(sD0)}, 1")
    vGA = 140
    vUW, vGAD, vSEL = 148, 150, 154
    I(f"v_add_u32 {v(vT+3)}, {s(S_J)}, v0")
    I(f"v_and_b32 {v(vT+3)}, 3, {v(vT+3)}")
    I(f"v_lshl_add_u32 {v(vT+4)}, {v(vT+2)}, 2, {v(vT+3)}")
    I(f"v_lshl_add_u32 {v(vGAD)}, {v(vT+4)}, 10, {s(sT)}")
    for i in range(1, 4): I(f"v_xor_b32 {v(vGAD+i)}, {1024*i}, {v(vGAD)}")
    I("s_barrier")
    def gather(i): I(f"global_load_dwordx2 {v(vGA+2*i,2)}, {v(vGAD+i)}, {s(S_X,2)}")
    gather(0); gather(1)
    I(f"v_and_b32 {v(vT+4)}, -2, {v(vT+4)}")
    I(f"v_lshlrev_b32 {v(vUW)}, 1, {v(vT+4)}")
    I(f"v_add_u32 {v(vUW)}, {U0+512}, {v(vUW)}")
    I(f"v_xor_b32 {v(vUW+1)}, 4, {v(vUW)}")
    I(f"v_and_b32 {v(vT+3)}, 1, {v(vT+3)}")
    I(f"v_mul_u32_u24 {v(vT+3)}, 0x040404, {v(vT+3)}")
    I(f"v_lshl_or_b32 {v(vT+3)}, {v(vT+3)}, 8, {v(vT+3)}")
    I(f"v_xor_b32 {v(vSEL)}, 0x05040100, {v(vT+3)}")
    I(f"v_xor_b32 {v(vSEL+1)}, 0x07060302, {v(vT+3)}")
    I(f"v_and_b32 {v(vB)}, 15, {v(vLANE)}")
    I(f"v_lshrrev_b32 {v(vG)}, 4, {v(vLANE)}")
    I(f"s_mul_i32 {s(sUC)}, {s(sCH)}, {USZ}")
    I(f"s_add_u32 {s(sUC)}, {s(sUC)}, {U0}")
    I(f"s_mul_i32 {s(sKC)}, {s(sCH)}, {KSZ}")
    I(f"s_add_u32 {s(sKC)}, {s(sKC)}, {K0}")
    I(f"s_mov_b32 {s(sC)}, 0x{f32bits(LOG2E_HI):08x}")
    I(f"s_mov_b32 {s(sC+1)}, 0x{f32bits(LOG2E_LO):08x}")
    I(f"s_mov_b32 {s(sC+2)}, 0x{f32bits(LN2):08x}")
    for r in range(4): I(f"v_mov_b32 {v(24+r)}, 0")
    I(f"v_lshrrev_b32 {v(vT)}, 7, v0")
    I(f"v_mul_u32_u24 {v(vT)}, {USZ}, {v(vT)}")
    I(f"v_and_b32 {v(vT+1)}, 127, v0")
    I(f"v_lshl_add_u32 {v(vT)}, {v(vT+1)}, 2, {v(vT)}")
    I(f"v_add_u32 {v(vT)}, {U0}, {v(vT)}")
    I(f"ds_write_b32 {v(vT)}, v24")
    I(f"v_lshlrev_b32 {v(vT)}, 4, v0")
    I(f"v_add_u32 {v(vT)}, {K0}, {v(vT)}")
    I(f"ds_write_b128 {v(vT)}, v[24:27]")
    I(f"v_min_u32 {v(vT)}, {K0 + 4*KSZ - 16 - 8192}, {v(vT)}")
    I(f"ds_write_b128 {v(vT)}, v[24:27] offset:8192")
    I(f"v_lshlrev_b32 {v(vT+1)}, 2, {v(vT+1)}")
    I(f"v_add_u32 {v(vT+1)}, {ONEROW}, {v(vT+1)}")
    I(f"v_mov_b32 v28, 0x3f80")
    I(f"ds_write_b32 {v(vT+1)}, v28")
    lo_t = [4, 3, 2, 1, 3, 5, 0, 0]
    ln_t = [3, 5, 7, 9, 3, 2, 0, 0]
    lo_c = sum(t << (4*i) for i, t in enumerate(lo_t)); ln_c = sum(t << (4*i) for i, t in enumerate(ln_t))
    I(f"v_lshrrev_b32 {v(vT)}, 6, v0")
    I(f"v_lshlrev_b32 {v(vT+1)}, 2, {v(vT)}")
    I(f"s_mov_b32 {s(sT)}, 0x{lo_c:08x}")
    I(f"v_bfe_u32 v28, {s(sT)}, {v(vT+1)}, 4")
    I(f"s_mov_b32 {s(sT)}, 0x{ln_c:08x}")
    I(f"v_bfe_u32 v29, {s(sT)}, {v(vT+1)}, 4")
    I(f"v_subrev_u32 v30, 28, {v(vLANE)}")
    I(f"v_sub_u32 v30, v30, v28")
    I(f"v_mov_b32 v28, 0x3f80")
    I(f"v_mov_b32 v31, 0xffff")
    I(f"v_cmp_lt_u32 vcc, 3, {v(vT)}")
    I(f"v_cndmask_b32 v28, v28, v31, vcc")
    I(f"v_cmp_lt_u32 vcc, v30, v29")
    I(f"v_cndmask_b32 v28, 0, v28, vcc")
    I(f"v_lshlrev_b32 {v(vT)}, 1, v0")
    I(f"v_add_u32 {v(vT)}, {PT0}, {v(vT)}")
    I(f"ds_write_b16 {v(vT)}, v28")
    I(f"ds_write_b16 {v(vT)}, v28 offset:{R1OFF-2}")
    I(f"s_lshl_b32 {s(sM)}, {s(sCH)}, 9")
    I(f"s_lshl_b32 {s(sT)}, {s(sHF)}, 8")
    I(f"s_add_u32 {s(sM)}, {s(sM)}, {s(sT)}")
    I(f"s_add_u32 {s(sM+1)}, {s(sM)}, {28*RS}")
    I(f"v_lshrrev_b32 {v(vT)}, 1, {v(vG)}")
    I(f"v_lshlrev_b32 {v(vT)}, 7, {v(vT)}")
    I(f"v_and_b32 {v(vT+1)}, 1, {v(vG)}")
    I(f"v_lshl_add_u32 {v(vT)}, {v(vT+1)}, 8, {v(vT)}")
    I(f"s_lshl_b32 {s(sT)}, {s(sCH)}, 9")
    I(f"v_add_u32 {v(vT+1)}, {s(sT)}, {v(vT)}")
    I(f"v_mul_u32_u24 {v(vT+2)}, {RS}, {v(vB)}")
    I(f"v_add_u32 {v(vFA)}, {v(vT+1)}, {v(vT+2)}")
    I(f"s_cmp_eq_u32 {s(sHF)}, 0")
    I(f"s_cselect_b32 {s(sT)}, {40*RS}, {s(sT)}")
    I(f"s_mov_b32 s6, {15*RS}")
    I(f"s_cselect_b32 {s(sT)}, {s(sT)}, s6")
    I(f"v_add_u32 {v(vE0)}, {s(sT)}, {v(vFA)}")
    I(f"v_add_u32 {v(vT+3)}, {ONEROW}, {v(vT)}")
    I(f"v_sub_u32 {v(vT+4)}, {v(vB)}, {s(sHF)}")
    I(f"v_cmp_eq_u32 vcc, -1, {v(vT+4)}")
    I(f"v_cndmask_b32 {v(vE0)}, {v(vE0)}, {v(vT+3)}, vcc")
    lo, hi = nib(T1)
    I(f"s_mov_b32 {s(sTB)}, 0x{lo:08x}")
    I(f"s_mov_b32 {s(sTB+1)}, 0x{hi:08x}")
    I(f"v_lshlrev_b32 {v(vT+3)}, 2, {v(vB)}")
    I(f"v_lshrrev_b64 {v(vT+4,2)}, {v(vT+3)}, {s(sTB,2)}")
    I(f"v_and_b32 {v(vT+4)}, 15, {v(vT+4)}")
    I(f"v_add_u32 {v(vT+4)}, 31, {v(vT+4)}")
    I(f"v_mul_u32_u24 {v(vT+4)}, {RS}, {v(vT+4)}")
    I(f"v_add_u32 {v(vE1)}, {v(vT+1)}, {v(vT+4)}")
    I("s_waitcnt vmcnt(2)")
    stamp(A, 2)
    for r in (vLDT, vLAR, vAIM, vCR, vCI, vDSK):
        I(f"v_lshlrev_b32 {v(r)}, 16, {v(r)}")
    vDT = vLDT
    exp_rbf(A, vDT, vLDT, vT, vT+1, sC)
    exp_rbf(A, vLAR, vLAR, vT+2, vT+3, sC)
    vLR, vFI = vLAR, vAIM
    I(f"v_mul_f32 {v(vLR)}, {v(vLAR)}, {v(vDT)}")
    I(f"v_mul_f32 {v(vFI)}, {v(vAIM)}, {v(vDT)}")
    I(f"v_mul_f32 {v(vLR)}, 0x{f32bits(-LOG2E):08x}, {v(vLR)}")
    I(f"v_mul_f32 {v(vFI)}, 0x{f32bits(INV2PI):08x}, {v(vFI)}")
    I(f"v_add_f32 {v(vDT)}, {v(vDT)}, {v(vDT)}")
    I(f"v_mul_f32 {v(F(0))}, {v(vCR)}, {v(vDT)}")
    I(f"v_mul_f32 {v(F(0)+1)}, {v(vCI)}, {v(vDT)}")
    def anchor(dst, t, tmp):
        tb = f"0x{f32bits(float(t)):08x}"
        if t == 1:
            I(f"v_exp_f32 {v(tmp)}, {v(vLR)}")
            I(f"v_fract_f32 {v(tmp+1)}, {v(vFI)}")
        else:
            I(f"v_mul_f32 {v(tmp)}, {tb}, {v(vLR)}")
            I(f"v_mul_f32 {v(tmp+1)}, {tb}, {v(vFI)}")
            I(f"v_exp_f32 {v(tmp)}, {v(tmp)}")
            I(f"v_fract_f32 {v(tmp+1)}, {v(tmp+1)}")
        I(f"v_cos_f32 {v(dst)}, {v(tmp+1)}")
        I(f"v_sin_f32 {v(dst+1)}, {v(tmp+1)}")
        I(f"v_pk_mul_f32 {v(dst,2)}, {v(dst,2)}, {v(tmp,2)} op_sel_hi:[1,0]")
    anchor(W(1), 1, vT)
    anchor(W(16), 16, vT+2)
    anchor(G(1), 256, vT+4)
    anchor(G(4), 1024, vT+6)
    gather(2)
    st = {"pk": 0, "m0": None}
    def emit(row, reg, neg=False):
        t = vPK + (st["pk"] & 3); st["pk"] += 1
        grp = row // 28
        if st["m0"] != grp:
            I(f"s_mov_b32 m0, {s(sM+grp)}"); st["m0"] = grp
        I(f"v_cvt_pk_bf16_f32 {v(t)}, {v(reg)}, {'-' if neg else ''}{v(reg+1)}")
        I(f"ds_write_addtid_b32 {v(t)} offset:{(row % 28)*RS}")
    EW = lambda r: 15 + r
    cmul(A, W(2), W(1), W(1)); emit(EW(1), W(1))
    cmul(A, H(1), W(16), W(16)); emit(0, F(0), True)
    cmul(A, F(1), F(0), W(16))
    cmul(A, G(2), G(1), G(1))
    cmul(A, W(3), W(2), W(1)); emit(EW(2), W(2))
    cmul(A, W(4), W(2), W(2)); emit(1, F(1), True)
    cmul(A, H(2), H(1), H(1))
    cmul(A, F(2), F(0), H(1)); emit(EW(3), W(3))
    cmul(A, F(3), F(1), H(1)); emit(EW(4), W(4))
    cmul(A, G(3), G(2), G(1))
    cmul(A, W(8), W(4), W(4)); emit(2, F(2), True)
    cmul(A, H(3), H(2), H(2)); emit(3, F(3), True)
    for r in (5, 6, 7): cmul(A, W(r), W(4), W(r-4))
    emit(EW(8), W(8))
    gather(3)
    for f in range(4):
        cmul(A, F(4+f), F(f), H(2))
        if f < 3: emit(EW(5+f), W(5+f))
    for p in (5, 6, 7):
        cmul(A, G(p), G(4), G(p-4)); emit(4+p-5, F(4+p-5), True)
    emit(7, F(7), True)
    for f in range(8):
        cmul(A, F(8+f), F(f), H(3))
        if f > 0: emit(8+f-1, F(8+f-1), True)
    for r in range(9, 16):
        cmul(A, W(r), W(8), W(r-8))
        if r == 9: emit(15, F(15), True)
        else: emit(EW(r-1), W(r-1))
    emit(EW(15), W(15)); emit(31, G(1))
    prods = []
    for i in range(1, 9): prods.append((31+i, 1, 2*i))
    for p in (2, 3):
        for i in range(1, 5): prods.append((40 + 4*(p-2) + i-1, p, 4*i))
    for p in range(4, 8):
        for i in (1, 2): prods.append((48 + 2*(p-4) + i-1, p, 8*i))
    pend = []
    for n, (row, p, r) in enumerate(prods):
        t = vP + 2*(n & 3)
        cmul(A, t, G(p), W(r))
        pend.append((row, t))
        if len(pend) > 1:
            rw, tt = pend.pop(0); emit(rw, tt)
    for rw, tt in pend: emit(rw, tt)
    stamp(A, 3)
    def ustage():
        I("s_waitcnt vmcnt(0)")
        stamp(A, 4)
        for c in range(4):
            sel = v(vSEL + (c % 2))
            o = c // 2
            t = 156 + 2*c
            I(f"v_perm_b32 {v(t)}, {v(vGA+2+o)}, {v(vGA+o)}, {sel}")
            I(f"v_perm_b32 {v(t+1)}, {v(vGA+6+o)}, {v(vGA+4+o)}, {sel}")
            I(f"ds_write_b32 {v(vUW)}, {v(t)} offset:{c*USZ}")
            I(f"ds_write_b32 {v(vUW+1)}, {v(t+1)} offset:{c*USZ}")
    def wopf():
        I(f"s_lshl_b32 {s(sT)}, {s(S_J)}, 15")
        I(f"v_lshl_add_u32 {v(vUW)}, v0, 4, {s(sT)}")
        for i in range(8):
            if i: I(f"v_add_u32 {v(vUW)}, 4096, {v(vUW)}")
            I(f"global_load_dwordx4 v[236:239], {v(vUW)}, {s(S_WO,2)}")
    vOFF, vKW, vLT, vLB = 4, 5, 6, 7
    I(f"v_lshlrev_b32 {v(vT)}, 5, {v(vB)}")
    I(f"v_lshl_add_u32 {v(vOFF)}, {v(vG)}, 3, {v(vT)}")
    I(f"v_lshl_add_u32 {v(vT)}, {v(vG)}, 4, {v(vT)}")
    I(f"v_add_u32 {v(vLB)}, {s(sUC)}, {v(vT)}")
    I(f"v_and_b32 {v(vT)}, 1, {v(vB)}")
    I(f"v_xor_b32 {v(vT)}, 1, {v(vT)}")
    I(f"v_mul_u32_u24 {v(vT+1)}, {R1OFF-2}, {v(vT)}")
    I(f"v_lshl_add_u32 {v(vT+1)}, {v(vG)}, 4, {v(vT+1)}")
    I(f"v_lshlrev_b32 {v(vT+2)}, 1, {v(vB)}")
    I(f"v_sub_u32 {v(vLT)}, {v(vT+1)}, {v(vT+2)}")
    I(f"s_lshl_b32 {s(sT)}, {s(sHF)}, 9")
    I(f"s_add_u32 {s(sT)}, {s(sT)}, {s(sKC)}")
    I(f"s_add_u32 {s(sT)}, {s(sT)}, {2*540 - 512}")
    I(f"v_sub_u32 {v(vKW)}, {s(sT)}, {v(vOFF)}")
    I(f"v_cmp_eq_u32 vcc, 0, {v(vLANE)}")
    for r in range(1, 4): I(f"v_mov_b32 {v(248+r)}, 0")
    I(f"v_cndmask_b32 v248, 0, {v(vDSK)}, vcc")
    I("s_waitcnt lgkmcnt(0)")
    I("s_barrier")
    stamp(A, 5)
    vFF = 32; vEF = 64; vK = 248
    def ktile_write(k, t):
        I(f"v_cvt_pk_bf16_f32 {v(t)}, {v(k+3)}, {v(k+2)}")
        I(f"v_cvt_pk_bf16_f32 {v(t+1)}, {v(k+1)}, {v(k)}")
        I(f"v_cvt_pk_bf16_f32 {v(t+2)}, {v(k+2)}, {v(k+1)}")
        I(f"ds_write_b64 {v(vKW)}, {v(t,2)}")
        I(f"ds_write_b32 {v(vKW)}, {v(t+2)} offset:{R1OFF}")
        I(f"ds_write_b16 {v(vKW)}, {v(t)} offset:{R1OFF-2}")
        I(f"ds_write_b16_d16_hi {v(vKW)}, {v(t+1)} offset:{R1OFF+4}")
    def kphase(ntile):
        loads = []
        for ks in range(8):
            loads.append(f"ds_read_b128 {v(vFF+4*ks,4)}, {v(vFA)} offset:{16*ks}")
            for i in range(ntile):
                loads.append(f"ds_read_b128 {v(vEF+32*i+4*ks,4)}, {v(vE0+i)} offset:{16*ks}")
        per = 1 + ntile
        issued = min(len(loads), 12)
        for x in loads[:issued]: I(x)
        for ks in range(8):
            for i in range(ntile):
                idx = ks*per + 1 + i
                I(f"s_waitcnt lgkmcnt({issued-1-idx})")
                c = "0" if (ks == 0 and ntile == 2) else v(vK+4*i,4)
                I(f"v_mfma_f32_16x16x32_bf16 {v(vK+4*i,4)}, {v(vEF+32*i+4*ks,4)}, {v(vFF+4*ks,4)}, {c}")
                while issued < len(loads) and issued - idx <= 12:
                    I(loads[issued]); issued += 1
    touched = set()
    yx = [0]
    def mf(t, a_, b_):
        y = vY + 4*(t ^ yx[0])
        c = v(y,4) if t in touched else "0"
        touched.add(t)
        I(f"v_mfma_f32_16x16x32_bf16 {v(y,4)}, {v(a_,4)}, {v(b_,4)}, {c}")
    def toep(dst, base, s0):
        o = (s0 - 1)//2
        assert 0 <= o and o+3 <= 255, o
        return [f"ds_read2_b32 {v(dst,2)}, {v(base)} offset0:{o} offset1:{o+1}",
                f"ds_read2_b32 {v(dst+2,2)}, {v(base)} offset0:{o+2} offset1:{o+3}"]
    I(f"s_cmp_eq_u32 {s(sHF)}, 0")
    A.branch("s_cbranch_scc0 B_waveB")
    kphase(2)
    vLO, vHI, vKT, vPT, vV3, vV4 = 16, 17, 10, 11, 12, 13
    I(f"v_lshlrev_b32 {v(vT)}, 7, {v(vG)}")
    I(f"v_lshl_add_u32 {v(vT+1)}, {v(vB)}, 3, {v(vT)}")
    I(f"v_sub_u32 {v(vT+1)}, {X3OFF + 2*188}, {v(vT+1)}")
    I(f"v_add_u32 {v(vT+2)}, 4, {v(vT+1)}")
    I(f"v_lshl_add_u32 {v(vT+3)}, {v(vB)}, 2, {v(vT)}")
    I(f"v_sub_u32 {v(vT+3)}, {X4OFF + 2*126 + 256}, {v(vT+3)}")
    I(f"v_subrev_u32 {v(vT+4)}, 64, {v(vT+3)}")
    I(f"v_cmp_gt_u32 vcc, 2, {v(vG)}")
    I(f"v_cndmask_b32 {v(vLO)}, {v(vT+3)}, {v(vT+2)}, vcc")
    I(f"v_cndmask_b32 {v(vHI)}, {v(vT+4)}, {v(vT+1)}, vcc")
    I(f"v_add_u32 {v(vLO)}, {s(sKC)}, {v(vLO)}")
    I(f"v_add_u32 {v(vHI)}, {s(sKC)}, {v(vHI)}")
    I(f"v_cvt_pk_bf16_f32 {v(vT)}, {v(vK+1)}, {v(vK)}")
    I(f"v_cvt_pk_bf16_f32 {v(vT+1)}, {v(vK+3)}, {v(vK+2)}")
    I(f"ds_write_b32 {v(vLO)}, {v(vT)}")
    I(f"ds_write_b32 {v(vHI)}, {v(vT+1)}")
    ktile_write(vK+4, vT+2)
    stamp(A, 8)
    ustage()
    wopf()
    UA, UC, BX, MK, TP, TM, SS, VV = 32, 64, 72, 96, 104, 116, 140, 164
    I(f"s_add_u32 {s(sT)}, {s(sKC)}, 2")
    I(f"v_add_u32 {v(vKT)}, {s(sT)}, {v(vLT)}")
    I(f"v_add_u32 {v(vPT)}, {PT0+2}, {v(vLT)}")
    I(f"v_lshlrev_b32 {v(vT)}, 5, {v(vG)}")
    I(f"v_lshlrev_b32 {v(vT+1)}, 3, {v(vB)}")
    I(f"v_sub_u32 {v(vT)}, {v(vT)}, {v(vT+1)}")
    I(f"s_add_u32 {s(sT)}, {s(sKC)}, {X3OFF + 120}")
    I(f"v_add_u32 {v(vV3)}, {s(sT)}, {v(vT)}")
    I(f"v_ashrrev_i32 {v(vT)}, 1, {v(vT)}")
    I(f"s_add_u32 {s(sT)}, {s(sKC)}, {X4OFF + 60}")
    I(f"v_add_u32 {v(vV4)}, {s(sT)}, {v(vT)}")
    boxes = [(0, 12), (1, 8), (0, 4), (1, 8), (2, 8), (3, 8)]
    I("s_waitcnt lgkmcnt(4)")
    for n, (run, ctr) in enumerate(boxes):
        for x in toep(BX+4*n, vPT, 64*run + CEN - ctr): I(x)
        if n == 3: I("s_waitcnt lgkmcnt(4)")
    for x in toep(MK, vPT, 64*4 + CEN4 - 15): I(x)
    for x in toep(MK+4, vPT, 64*5 + LO5 - 12): I(x)
    I("s_waitcnt lgkmcnt(0)")
    I("s_barrier")
    stamp(A, 6)
    I(f"ds_read_b128 {v(UA,4)}, {v(vLB)} offset:{480}")
    I(f"ds_read_b128 {v(UC,4)}, {v(vLB)} offset:{480-16}")
    for k in range(1, 8):
        I(f"ds_read_b128 {v(UA+4*k,4)}, {v(vLB)} offset:{480 + 512*k}")
    I("s_waitcnt lgkmcnt(7)")
    ld = []
    I(f"v_add_u32 {v(vLO)}, 512, {v(vKT)}")
    ld += toep(TP, vLO, 543-16-256)
    ld += toep(TP+4, vKT, 543-16-256)
    ld += toep(TP+8, vKT, 543-16-512)
    I(f"v_mov_b32 {v(vT)}, {s(sKC)}")
    ld.append(f"ds_read_u16 {v(vT+2)}, {v(vT)} offset:{2*32}")
    ld.append(f"ds_read_u16 {v(vT+3)}, {v(vT)} offset:{X3OFF + 2*64}")
    for Dl in (2, 3, 4):
        for ph in range(2):
            d = VV + 4*(2*(Dl-2)+ph)
            o = 128*(4-Dl) + 16*ph
            ld.append(f"ds_read_b64 {v(d,2)}, {v(vV3)} offset:{o}")
            ld.append(f"ds_read_b64 {v(d+2,2)}, {v(vV3)} offset:{o+8}")
    for Dl in (4, 5, 6, 7):
        d = VV + 24 + 4*(Dl-4)
        o = 16*(7-Dl)
        ld.append(f"ds_read2_b32 {v(d,2)}, {v(vV4)} offset0:{o} offset1:{o+1}")
        ld.append(f"ds_read2_b32 {v(d+2,2)}, {v(vV4)} offset0:{o+2} offset1:{o+3}")
    def box(k):
        uc = UC + 4*(k & 1)
        n = 6 if k < 4 else 4
        for t in range(n):
            u = uc if t in (3, 5) else UA+4*k
            I(f"v_mfma_f32_16x16x32_bf16 {v(TM+4*t,4)}, {v(u,4)}, {v(BX+4*t,4)}, 0")
            for _ in range(3):
                if ld: I(ld.pop(0))
    def cvt(k):
        sb = SS + 12*(k & 1)
        S4, S8, S12, S16, Q8, Q16 = (TM+4*t for t in range(6))
        for ph in range(2):
            for cc in range(2):
                r = 2*ph + cc
                I(f"v_cvt_pk_bf16_f32 {v(sb+4*ph+2*cc)}, {v(S16+r)}, {v(S12+r)}")
                I(f"v_cvt_pk_bf16_f32 {v(sb+4*ph+2*cc+1)}, {v(S8+r)}, {v(S4+r)}")
        if k < 4:
            for r in range(4):
                I(f"v_cvt_pk_bf16_f32 {v(sb+8+r)}, {v(Q16+r)}, {v(Q8+r)}")
    def far(k):
        sb = SS + 12*(k & 1)
        for Dl in (2, 3, 4):
            if k + Dl < 8:
                for ph in range(2): mf(k+Dl, sb+4*ph, VV + 4*(2*(Dl-2)+ph))
        if k < 4:
            for Dl in (4, 5, 6, 7):
                if k + Dl < 8: mf(k+Dl, sb+8, VV+24+4*(Dl-4))
    box(0)
    while ld: I(ld.pop(0))
    I(f"ds_read_b128 {v(UC+4,4)}, {v(vLB)} offset:{480-16+512}")
    I("s_waitcnt lgkmcnt(15)")
    I("s_waitcnt lgkmcnt(0)")
    for t in range(8): mf(t, TP, UA+4*t)
    cvt(0)
    I(f"v_lshl_or_b32 {v(vT+2)}, {v(vT+2)}, 16, {v(vT+2)}")
    I(f"v_lshl_or_b32 {v(vT+3)}, {v(vT+3)}, 16, {v(vT+3)}")
    for r in range(4):
        I(f"v_and_or_b32 {v(TP+8+r)}, {v(MK+r)}, {v(vT+2)}, {v(TP+8+r)}")
        I(f"v_and_b32 {v(MK+4+r)}, {v(MK+4+r)}, {v(vT+3)}")
    fill = [(t+1, TP+4, UA+4*t) for t in range(7)] + [(t+2, TP+8, UA+4*t) for t in range(6)] + [(t+4, MK+4, UA+4*t) for t in range(4)]
    for k in range(1, 6):
        I("s_waitcnt lgkmcnt(0)")
        box(k)
        if k < 5: I(f"ds_read_b128 {v(UC+4*((k+1)&1),4)}, {v(vLB)} offset:{480-16+512*(k+1)}")
        far(k-1)
        for _ in range(3):
            if fill: mf(*fill.pop(0))
        cvt(k)
    while fill: mf(*fill.pop(0))
    far(5)
    A.branch("s_branch B_epi")
    A.label("B_waveB")
    touched.clear(); yx[0] = 4
    kphase(1)
    ktile_write(vK, vT)
    stamp(A, 8)
    ustage()
    vKA0 = 8
    I(f"s_add_u32 {s(sT)}, {s(sKC)}, 2")
    I(f"v_add_u32 {v(vKA0)}, {s(sT)}, {v(vLT)}")
    NB = 3
    bufB = lambda q: 32 + 40*(q % NB)
    bufA = lambda q: 32 + 40*(q % NB) + 32
    def ldB(q): return [f"ds_read_b128 {v(bufB(q)+4*t,4)}, {v(vLB)} offset:{480 + 512*t - 64*q}" for t in range(8)]
    def ldA(q): return toep(bufA(q), vKA0, 543-16-32*q) + toep(bufA(q)+4, vKA0, 543-16-256-32*q)
    I("s_waitcnt lgkmcnt(0)")
    I("s_barrier")
    stamp(A, 6)
    if PRIOB: I("s_setprio 1")
    stream = []
    for q in range(1, 8): stream += [(q, x) for x in ldA(q) + ldB(q)]
    issued = 0
    def last_idx(q): return max(i for i, (qq, _) in enumerate(stream) if qq == q)
    while issued < 14: I(stream[issued][1]); issued += 1
    for q in range(1, 8):
        if PRIOB and q == PRIOB: I("s_setprio 0")
        I(f"s_waitcnt lgkmcnt({min(15, issued-1-last_idx(q))})")
        seq = [(t, bufA(q), bufB(q)+4*t) for t in range(8)] + [(t+1, bufA(q)+4, bufB(q)+4*t) for t in range(7)]
        for m in seq:
            mf(*m)
            if issued < len(stream) and stream[issued][0] <= q + NB - 1 and issued - last_idx(q) <= 14:
                I(stream[issued][1]); issued += 1
        while q < 7 and issued <= last_idx(q+1):
            I(stream[issued][1]); issued += 1
    A.label("B_epi")
    stamp(A, 7)
    vXA = 6
    I(f"s_lshl_b32 {s(sROT)}, {s(sCH)}, 13")
    I(f"s_lshl_b32 {s(sT)}, {s(sHF)}, 12")
    I(f"s_add_u32 s6, {s(sROT)}, {s(sT)}")
    I(f"v_lshl_add_u32 {v(vXA)}, {v(vLANE)}, 4, s6")
    for i in range(4):
        I(f"ds_write_b128 {v(vXA)}, {v(vY+16+4*i,4)} offset:{1024*i}")
    I(f"v_xor_b32 {v(vXA)}, 4096, {v(vXA)}")
    I(f"s_lshl_b32 {s(sT)}, {s(sHF)}, 11")
    I(f"s_lshl_b32 {s(sROT)}, {s(sD)}, 12")
    I(f"s_add_u32 {s(sROT)}, {s(sROT)}, {s(sT)}")
    I(f"s_add_u32 {s(sROT)}, {s(sROT)}, {WS_BT}")
    I(f"s_add_u32 {s(sBT)}, {s(S_WS)}, {s(sROT)}")
    I(f"s_addc_u32 {s(sBT+1)}, {s(S_WS+1)}, 0")
    I("s_waitcnt lgkmcnt(0)")
    I("s_barrier")
    vX = 48
    for i in range(4):
        I(f"ds_read_b128 {v(vX+4*i,4)}, {v(vXA)} offset:{1024*i}")
    I(f"v_and_b32 {v(vT)}, 1, {v(vG)}")
    I(f"v_mul_u32_u24 {v(vT)}, 504, {v(vT)}")
    I(f"v_add_u32 {v(vT)}, {v(vT)}, {v(vOFF)}")
    for p in range(2):
        o = 64 + 4*p
        for i in (2*p, 2*p+1):
            I(f"s_waitcnt lgkmcnt({3-i})")
            y = vY + 4*i; x = vX + 4*i
            I(f"v_pk_add_f32 {v(y,2)}, {v(y,2)}, {v(x,2)}")
            I(f"v_pk_add_f32 {v(y+2,2)}, {v(y+2,2)}, {v(x+2,2)}")
            I(f"v_cvt_pk_bf16_f32 {v(o+2*(i&1))}, {v(y)}, {v(y+1)}")
            I(f"v_cvt_pk_bf16_f32 {v(o+2*(i&1)+1)}, {v(y+2)}, {v(y+3)}")
        I(f"v_permlane16_swap_b32 {v(o)}, {v(o+2)}")
        I(f"v_permlane16_swap_b32 {v(o+1)}, {v(o+3)}")
        I(f"global_store_dwordx4 {v(vT)}, {v(o,4)}, {s(sBT,2)} offset:{1024*p} sc0 sc1")
    stamp_out(A, 9)
    I("s_endpgm")
```

```python
from asmlib import *
from k1b import *
import k1b

BTOFF = 65536
RBUF = BTOFF + 8192
ZL = RBUF + 4*3*4096
LDS = ZL + 1024
LAUNCH = f"; @launch kernel=k2_kernel grid=(256,1,1) block=(256,1,1) lds={LDS}\n"
VGPRS = 256
DBGSTAMP = True
LA = 3

def gen():
    A = Asm(); I = A.I
    A.raw(".globl k2_kernel\n.p2align 8\n.type k2_kernel,@function\nk2_kernel:")
    I("s_cmp_ge_u32 s2, 256")
    I("s_cbranch_scc1 K2_exit")
    if k1b.STAMP:
        I("s_memtime s[72:73]")
        I("s_memrealtime s[92:93]")
    I(f"s_load_dwordx2 {s(S_WO,2)}, s[0:1], 16")
    I(f"s_load_dwordx2 {s(S_OUT,2)}, s[0:1], 88")
    I(f"s_load_dwordx2 {s(S_WS,2)}, s[0:1], 104")
    sRB, sCB, sT, sT2, sST, sNT, sWO = 44, 45, 46, 47, 48, 49, 50
    sSRO, sSRB = 52, 56
    sPQ, sAC = 60, 62
    sEPS = 64
    I("v_lshrrev_b32 v1, 6, v0")
    I(f"s_and_b32 {s(sT)}, s2, 7")
    I(f"v_readfirstlane_b32 {s(S_WV)}, v1")
    I(f"s_lshl_b32 {s(sRB)}, {s(sT)}, 2")
    I(f"s_bfe_u32 {s(sT)}, s2, 0x20003")
    I(f"s_add_u32 {s(sRB)}, {s(sRB)}, {s(sT)}")
    I(f"s_lshr_b32 {s(sCB)}, s2, 5")
    I("v_and_b32 v1, 63, v0")
    I(f"s_lshr_b32 {s(sST)}, {s(S_WV)}, 1")
    I(f"s_and_b32 {s(sNT)}, {s(S_WV)}, 1")
    vT = 2
    vOM, vTR1, vGG, vL16, vKA, vWOA, vTR, vBTA, vKS = 7, 8, 9, 10, 11, 12, 13, 14, 15
    vP0, vP1 = 248, 249
    I(f"v_lshlrev_b32 {v(vL16)}, 4, v1")
    I(f"v_lshrrev_b32 {v(vT+1)}, 5, v1")
    I(f"v_mul_u32_u24 {v(vT+2)}, 4352, {v(vT+1)}")
    I(f"v_and_b32 {v(vT)}, 31, v1")
    I(f"v_lshl_add_u32 {v(vKS)}, {v(vT)}, 3, {v(vT+2)}")
    I(f"v_add_u32 {v(vKS)}, 4096, {v(vKS)}")
    I(f"v_add_u32 {v(vKA)}, 4352, {v(vL16)}")
    I(f"v_lshrrev_b32 {v(vT)}, 3, v1")
    I(f"v_and_b32 {v(vT+2)}, 7, v1")
    I(f"v_bfe_u32 {v(vT+3)}, v1, 4, 1")
    I(f"v_lshlrev_b32 {v(vT+3)}, 2, {v(vT+3)}")
    I(f"v_xor_b32 {v(vT+2)}, {v(vT+2)}, {v(vT+3)}")
    I(f"v_lshlrev_b32 {v(vT+2)}, 4, {v(vT+2)}")
    I(f"v_lshl_add_u32 {v(vWOA)}, {v(vT)}, 10, {v(vT+2)}")
    I(f"s_lshl_b32 {s(sT)}, {s(sST)}, 15")
    I(f"v_add_u32 {v(vP0)}, {s(sT)}, {v(vL16)}")
    I(f"v_xor_b32 {v(vP1)}, 0x8000, {v(vP0)}")
    I(f"s_mul_i32 {s(sAC)}, {s(S_WV)}, {2*4352}")
    I(f"s_add_u32 {s(sAC)}, {s(sAC)}, {WS_ACC}")
    I(f"s_lshl_b32 {s(sPQ)}, {s(sRB)}, 16")
    I(f"s_lshl_b32 {s(sT2)}, {s(S_WV)}, 13")
    I(f"s_add_u32 {s(sPQ)}, {s(sPQ)}, {s(sT2)}")
    I(f"s_lshl_b32 {s(sWO)}, {s(S_WV)}, 17")
    I(f"s_lshl_b32 {s(sT2)}, {s(sCB)}, 7")
    I(f"s_add_u32 {s(sWO)}, {s(sWO)}, {s(sT2)}")
    I(f"s_lshl_b32 m0, {s(S_WV)}, 14")
    I(f"s_mov_b32 {s(sSRO+2)}, 0x80000")
    I(f"s_mov_b32 {s(sSRO+3)}, 0x00020000")
    I("s_waitcnt lgkmcnt(0)")
    stamp(A, 1)
    I(f"s_add_u32 {s(sAC)}, {s(S_WS)}, {s(sAC)}")
    I(f"s_addc_u32 {s(sAC+1)}, {s(S_WS+1)}, 0")
    I(f"s_add_u32 {s(sPQ)}, {s(S_WS)}, {s(sPQ)}")
    I(f"s_addc_u32 {s(sPQ+1)}, {s(S_WS+1)}, 0")
    I(f"s_mov_b32 {s(sSRO)}, {s(S_WO)}")
    I(f"s_mov_b32 {s(sSRO+1)}, {s(S_WO+1)}")
    KV = 16
    PQ = 80
    ACC = 144
    NUM = [208, 224]
    WF = 240
    nvm = [0]
    def loads(h):
        L = []
        if h == 4:
            L.append(f"v_add_u32 {v(vP0)}, 4096, {v(vP0)}")
            L.append(f"v_add_u32 {v(vP1)}, 4096, {v(vP1)}")
        L.append(f"global_load_dwordx4 {v(PQ+8*h,4)}, {v(vP0)}, {s(sPQ,2)} offset:{1024*(h&3)}")
        L.append(f"global_load_dwordx4 {v(PQ+8*h+4,4)}, {v(vP1)}, {s(sPQ,2)} offset:{1024*(h&3)}")
        for k in range(2):
            L.append(f"buffer_load_dwordx4 {v(vWOA)}, {s(sSRO,4)}, {s(sWO)} offen lds")
            L.append(f"s_add_u32 m0, m0, 1024")
            L.append(f"s_add_u32 {s(sWO)}, {s(sWO)}, 8192")
        return L
    I(f"global_load_dwordx2 v[250:251], {v(vKS)}, {s(sAC,2)}")
    for h in range(8):
        I(f"global_load_dwordx4 {v(KV+8*h,4)}, {v(vL16 if h < 4 else vKA)}, {s(sAC,2)} offset:{1024*(h&3)}")
    for h in range(LA):
        for x in loads(h): I(x)
    vZW, vZR = 252, 253
    I(f"s_lshl_b32 {s(sT)}, {s(S_WV)}, 8")
    I(f"s_add_u32 {s(sT)}, {s(sT)}, {ZL}")
    I(f"v_lshl_add_u32 {v(vZW)}, v1, 2, {s(sT)}")
    I(f"v_lshrrev_b32 {v(vZR)}, 4, v1")
    I(f"v_lshl_add_u32 {v(vZR)}, {v(vZR)}, 3, {s(sT)}")
    I(f"v_bfe_u32 {v(vT)}, v1, 2, 2")
    I(f"v_lshrrev_b32 {v(vT+1)}, 5, v1")
    I(f"v_lshl_add_u32 {v(vT)}, {v(vT+1)}, 2, {v(vT)}")
    I(f"v_lshlrev_b32 {v(vT)}, 7, {v(vT)}")
    I(f"v_and_b32 {v(vT+1)}, 1, v1")
    I(f"v_bfe_u32 {v(vT+2)}, v1, 4, 1")
    I(f"v_lshl_add_u32 {v(vT+1)}, {v(vT+1)}, 1, {v(vT+2)}")
    I(f"v_bfe_u32 {v(vT+2)}, v1, 3, 1")
    I(f"v_xor_b32 {v(vT+2)}, {s(sNT)}, {v(vT+2)}")
    I(f"v_lshl_add_u32 {v(vT+1)}, {v(vT+2)}, 2, {v(vT+1)}")
    I(f"v_lshl_add_u32 {v(vT)}, {v(vT+1)}, 4, {v(vT)}")
    I(f"v_bfe_u32 {v(vT+2)}, v1, 1, 1")
    I(f"v_lshl_add_u32 {v(vT)}, {v(vT+2)}, 3, {v(vT)}")
    I(f"s_lshl_b32 {s(sT)}, {s(S_WV)}, 14")
    I(f"v_add_u32 {v(vTR)}, {s(sT)}, {v(vT)}")
    I(f"v_xor_b32 {v(vTR1)}, 64, {v(vTR)}")
    I(f"s_mov_b32 {s(sEPS)}, 0x{f32bits(1e-6):08x}")
    I(f"v_lshrrev_b32 {v(vT)}, 2, v1")
    I(f"v_and_b32 {v(vT+2)}, 3, v1")
    I(f"v_lshlrev_b32 {v(vT+2)}, 4, {v(vT+2)}")
    I(f"v_lshl_add_u32 {v(vBTA)}, {v(vT)}, 12, {v(vT+2)}")
    I(f"s_add_u32 {s(sSRB)}, {s(S_WS)}, {WS_BT}")
    I(f"s_addc_u32 {s(sSRB+1)}, {s(S_WS+1)}, 0")
    I(f"s_mov_b32 {s(sSRB+2)}, 0x200000")
    I(f"s_mov_b32 {s(sSRB+3)}, 0x00020000")
    sBO, sGO = 66, 67
    I(f"s_lshl_b32 {s(sBO)}, {s(sCB)}, 18")
    I(f"s_lshl_b32 {s(sT2)}, {s(sNT)}, 17")
    I(f"s_add_u32 {s(sBO)}, {s(sBO)}, {s(sT2)}")
    I(f"s_lshl_b32 {s(sT2)}, {s(sRB)}, 7")
    I(f"s_add_u32 {s(sBO)}, {s(sBO)}, {s(sT2)}")
    I(f"s_lshl_b32 {s(sT2)}, {s(sST)}, 6")
    I(f"s_add_u32 {s(sBO)}, {s(sBO)}, {s(sT2)}")
    I(f"s_lshl_b32 {s(sGO)}, {s(sRB)}, 8")
    I(f"s_lshl_b32 {s(sT2)}, {s(sST)}, 7")
    I(f"s_add_u32 {s(sGO)}, {s(sGO)}, {s(sT2)}")
    I(f"s_add_u32 {s(sGO)}, {s(sGO)}, {WS_G}")
    I(f"v_and_b32 {v(vGG)}, 31, v1")
    I(f"v_lshl_add_u32 {v(vGG)}, {v(vGG)}, 2, {s(sGO)}")
    def extra_loads():
        L = []
        L.append(f"s_lshl_b32 {s(sT2)}, {s(S_WV)}, 11")
        L.append(f"s_add_u32 m0, {s(sT2)}, {BTOFF}")
        L.append(f"s_add_u32 s6, {s(sBO)}, 0x10000")
        L.append(f"buffer_load_dwordx4 {v(vBTA)}, {s(sSRB,4)}, {s(sBO)} offen lds")
        L.append(f"s_add_u32 m0, m0, 1024")
        L.append(f"global_load_dword {v(vGG)}, {v(vGG)}, {s(S_WS,2)}")
        L.append(f"buffer_load_dwordx4 {v(vBTA)}, {s(sSRB,4)}, s6 offen lds")
        return L
    def norm_list(h, st):
        n = NUM[st]; o = PQ + 8*h + 4*st
        L = [f"v_add_f32 {v(n+8)}, {s(sEPS)}, {v(n+8)}", f"v_rcp_f32 {v(n+8)}, {v(n+8)}"]
        for p in range(4): L.append(f"v_pk_mul_f32 {v(n+2*p,2)}, {v(n+2*p,2)}, {v(n+8,2)} op_sel_hi:[1,0]")
        for p in range(4): L.append(f"v_cvt_pk_bf16_f32 {v(o+p)}, {v(n+2*p)}, {v(n+2*p+1)}")
        return L
    def proj(h, st, nt):
        o = PQ + 8*h + 4*st
        w = KV+8*h+4 if nt == 0 else WF + 4*(h & 1)
        d = ACC + 16*(2*st+nt)
        return f"v_mfma_f32_32x32x16_bf16 {v(d,16)}, {v(w,4)}, {v(o,4)}, {'0' if h == 0 else v(d,16)}"
    for t in range(1, 4):
        I(f"s_xor_b32 {s(sT)}, {s(S_WV)}, {t}")
        I(f"s_mul_i32 {s(sT)}, {s(sT)}, {3*4096}")
        I(f"s_add_u32 {s(sT)}, {s(sT)}, {RBUF}")
        I(f"v_add_u32 {v(vT+t)}, {s(sT)}, {v(vL16)}")
    I(f"v_bfe_u32 {v(vT)}, v1, 2, 2")
    I(f"v_lshrrev_b32 {v(vKA)}, 5, v1")
    I(f"v_lshl_add_u32 {v(vT)}, {v(vKA)}, 4, {v(vT)}")
    I(f"v_lshlrev_b32 {v(vT)}, 6, {v(vT)}")
    I(f"v_bfe_u32 v6, v1, 4, 1")
    I(f"v_lshl_add_u32 {v(vT)}, v6, 5, {v(vT)}")
    I(f"v_and_b32 v6, 3, v1")
    I(f"v_lshl_add_u32 {v(vT)}, v6, 3, {v(vT)}")
    I(f"s_lshl_b32 {s(sT)}, {s(S_WV)}, 11")
    I(f"s_add_u32 {s(sT)}, {s(sT)}, {BTOFF}")
    I(f"v_add_u32 {v(vT)}, {s(sT)}, {v(vT)}")
    I(f"s_mul_i32 {s(sT)}, {s(S_WV)}, {3*4096}")
    I(f"s_add_u32 {s(sT)}, {s(sT)}, {RBUF}")
    I(f"v_add_u32 v6, {s(sT)}, {v(vL16)}")
    vOA = vKS
    I(f"v_and_b32 {v(vOA)}, 31, v1")
    I(f"v_lshlrev_b32 {v(vKA)}, 5, {v(vKA)}")
    I(f"v_lshl_add_u32 {v(vOA)}, {v(vOA)}, 10, {v(vKA)}")
    I(f"s_lshl_b32 {s(sT)}, {s(sRB)}, 16")
    I(f"s_lshl_b32 {s(sT2)}, {s(sST)}, 15")
    I(f"s_add_u32 {s(sT)}, {s(sT)}, {s(sT2)}")
    I(f"s_lshl_b32 {s(sT2)}, {s(sCB)}, 7")
    I(f"s_add_u32 {s(sT)}, {s(sT)}, {s(sT2)}")
    I(f"s_lshl_b32 {s(sT2)}, {s(sNT)}, 6")
    I(f"s_add_u32 {s(sT)}, {s(sT)}, {s(sT2)}")
    I(f"v_add_u32 {v(vOA)}, {s(sT)}, {v(vOA)}")
    NL = 4
    st_ = {"issued": LA*NL}
    I(f"s_waitcnt vmcnt({LA*NL+8})")
    I("v_cvt_pk_bf16_f32 v250, v250, v251")
    I(f"ds_write_b32 {v(vZW)}, v250")
    q = LQ(A); q.n = 1
    ZT = [250, 254]
    def zread(h): q.issue(f"ds_read_b64 {v(ZT[h & 1],2)}, {v(vZR)} offset:{32*h}", ("z", h))
    def prep(h):
        f = KV + 8*h; w1 = WF + 4*(h & 1); zt = ZT[h & 1]
        L = []
        L.append(lambda: I(f"s_waitcnt vmcnt({st_['issued'] - NL*(h+1)})"))
        L.append(lambda: I(f"v_cvt_pk_bf16_f32 {v(f)}, {v(f)}, {v(f+1)}"))
        L.append(lambda: I(f"v_cvt_pk_bf16_f32 {v(f+1)}, {v(f+2)}, {v(f+3)}"))
        L.append(lambda: (q.need(("z", h)), I(f"v_mov_b32 {v(f+2)}, {v(zt)}")))
        L.append(lambda: I(f"v_mov_b32 {v(f+3)}, {v(zt+1)}"))
        L.append(lambda: q.issue(f"ds_read_b64_tr_b16 {v(f+4,2)}, {v(vTR)} offset:{2048*h}"))
        L.append(lambda: q.issue(f"ds_read_b64_tr_b16 {v(f+6,2)}, {v(vTR)} offset:{2048*h+1024}", ("w0", h)))
        L.append(lambda: I(f"v_permlane16_swap_b32 {v(f)}, {v(f+2)}"))
        L.append(lambda: I(f"v_permlane16_swap_b32 {v(f+1)}, {v(f+3)}"))
        if h + 1 < 8: L.append(lambda: zread(h+1))
        return L
    def w1read(h):
        w1 = WF + 4*(h & 1)
        return [lambda: q.issue(f"ds_read_b64_tr_b16 {v(w1,2)}, {v(vTR1)} offset:{2048*h}"),
                lambda: q.issue(f"ds_read_b64_tr_b16 {v(w1+2,2)}, {v(vTR1)} offset:{2048*h+1024}", ("w1", h))]
    def run(L):
        for x in L:
            if isinstance(x, str):
                I(x)
                if x.startswith(("global_load", "buffer_load")): st_["issued"] += 1
            else: x()
    zread(0)
    run(prep(0))
    stamp(A, 2)
    if k1b.STAMP: q.reset()
    for h in range(8):
        ld = loads(h+LA) if h + LA < 8 else (extra_loads() if h + LA == 8 else [])
        n0, n1 = norm_list(h, 0), norm_list(h, 1)
        pr = prep(h+1) if h < 7 else []
        hl = (len(ld)+1)//2
        I(f"v_mfma_f32_32x32x16_bf16 {v(NUM[0],16)}, {v(KV+8*h,4)}, {v(PQ+8*h,4)}, 0")
        run(ld[:hl])
        I(f"v_mfma_f32_32x32x16_bf16 {v(NUM[1],16)}, {v(KV+8*h,4)}, {v(PQ+8*h+4,4)}, 0")
        run(ld[hl:] + w1read(h))
        if h > 0:
            q.need(("w0", h-1)); I(proj(h-1, 0, 0))
            run(n0[:6])
            q.need(("w1", h-1)); I(proj(h-1, 0, 1))
            run(n0[6:] + n1[:2])
            I(proj(h-1, 1, 0))
            run(n1[2:8])
            I(proj(h-1, 1, 1))
            run(n1[8:] + pr)
        else:
            run(n0 + n1 + pr)
    q.drain()
    I("s_waitcnt vmcnt(0)")
    BB = 16; BF = 32
    for j in range(4):
        I(f"ds_read_b64_tr_b16 {v(BB+2*j,2)}, {v(vT)} offset:{256*j}")
    I(proj(7, 0, 1))
    I(f"v_sub_f32 {v(vOM)}, 1.0, {v(vGG)}")
    I(f"v_cvt_pk_bf16_f32 {v(vOM)}, {v(vOM)}, {v(vOM)}")
    I(f"v_lshlrev_b32 {v(vOM+1)}, 16, {v(vOM)}")
    I(proj(7, 1, 0))
    I("s_waitcnt lgkmcnt(0)")
    ub = []
    for p in range(8):
        ub += [f"v_lshlrev_b32 {v(BF+2*p)}, 16, {v(BB+p)}", f"v_and_b32 {v(BF+2*p+1)}, 0xffff0000, {v(BB+p)}"]
    for x in ub[:5]: I(x)
    I(proj(7, 1, 1))
    for x in ub[5:10]: I(x)
    I(proj(7, 0, 0))
    stamp(A, 3)
    rest = ub[10:] + [f"v_pk_mul_f32 {v(BF+2*p,2)}, {v(BF+2*p,2)}, {v(vOM+1,2)} op_sel_hi:[1,0]" for p in range(8)]
    for t in range(1, 4):
        for k in range(4):
            I(f"ds_write_b128 {v(vT+t)}, {v(ACC+16*t+4*k,4)} offset:{4096*(t-1)+1024*k}")
            if rest: I(rest.pop(0))
    for x in rest: I(x)
    I("s_waitcnt lgkmcnt(0)")
    I("s_barrier")
    R = 80
    for k in range(4):
        for w in range(3):
            I(f"ds_read_b128 {v(R+16*w+4*k,4)}, v6 offset:{4096*w+1024*k}")
    for k in range(4):
        I(f"s_waitcnt lgkmcnt({9-3*k})")
        for hh in range(2):
            r = 4*k + 2*hh
            I(f"v_pk_add_f32 {v(ACC+r,2)}, {v(ACC+r,2)}, {v(R+r,2)}")
            I(f"v_pk_add_f32 {v(R+16+r,2)}, {v(R+16+r,2)}, {v(R+32+r,2)}")
        for hh in range(2):
            r = 4*k + 2*hh
            I(f"v_pk_add_f32 {v(ACC+r,2)}, {v(ACC+r,2)}, {v(R+16+r,2)}")
        for hh in range(2):
            r = 4*k + 2*hh
            I(f"v_pk_fma_f32 {v(ACC+r,2)}, {v(ACC+r,2)}, {v(vOM+1,2)}, {v(BF+r,2)} op_sel:[0,1,0] op_sel_hi:[1,1,1]")
        for hh in range(2):
            r = 4*k + 2*hh
            I(f"v_cvt_pk_bf16_f32 {v(BB+r//2)}, {v(ACC+r)}, {v(ACC+r+1)}")
        if k == 1: I(f"global_store_dwordx4 {v(vOA)}, {v(BB,4)}, {s(S_OUT,2)}")
        if k == 3: I(f"global_store_dwordx4 {v(vOA)}, {v(BB+4,4)}, {s(S_OUT,2)} offset:16")
    if k1b.STAMP:
        stamp(A, 4)
        I("s_add_u32 s2, s2, 256")
        stamp_out(A, 5, 250)
    A.label("K2_exit")
    I("s_endpgm")
    return A
```

```python
import sys
from asmlib import *
from k1b import *
import importlib

HEADER = open("gated_mix__linear_attn_block__ssm_conv_s4d__prompt.s.ref").read().split("; Override launch")[0]

def kernel_desc(name, vgpr, sgpr=100, accum=None):
    accum = accum or ((vgpr + 3)//4*4)
    return f""".p2align 6
.amdhsa_kernel {name}
  .amdhsa_next_free_vgpr {vgpr}
  .amdhsa_next_free_sgpr {sgpr}
  .amdhsa_accum_offset {accum}
  .amdhsa_group_segment_fixed_size 0
  .amdhsa_kernarg_size 112
  .amdhsa_user_sgpr_count 2
  .amdhsa_user_sgpr_kernarg_segment_ptr 1
  .amdhsa_system_sgpr_workgroup_id_x 1
.end_amdhsa_kernel
"""

def k1(parts=("A","B")):
    A = Asm(); I = A.I
    A.raw(".globl k1_kernel\n.p2align 10\n.type k1_kernel,@function\nk1_kernel:")
    I("s_cmp_ge_u32 s2, 256")
    I("s_cbranch_scc1 K1_exit")
    import k1b
    if k1b.STAMP:
        I("s_memtime s[72:73]")
        I("s_memrealtime s[92:93]")
    I("s_load_dwordx16 s[16:31], s[0:1], 0")
    I("s_load_dwordx8 s[32:39], s[0:1], 64")
    I("s_load_dwordx4 s[40:43], s[0:1], 96")
    I("s_getpc_b64 s[12:13]")
    A.raw("K1_pc:")
    I("s_bfe_u32 s14, s2, 0x20003")
    I("s_lshl_b32 s14, s14, 13")
    I("v_lshl_add_u32 v2, v0, 4, s14")
    I("s_sub_u32 s12, s12, K1_pc-k1_kernel")
    I("s_subb_u32 s13, s13, 0")
    I("v_min_u32 v2, CODE_END-k1_kernel-16, v2")
    I("global_load_dwordx4 v[252:255], v2, s[12:13]")
    I("v_lshrrev_b32 v1, 6, v0")
    I(f"s_and_b32 {s(S_XCD)}, s2, 7")
    I(f"s_lshr_b32 {s(S_J)}, s2, 3")
    import os
    if os.environ.get("AFIRST"): I(f"s_xor_b32 {s(S_J)}, {s(S_J)}, 16")
    I(f"v_readfirstlane_b32 {s(S_WV)}, v1")
    I(f"s_cmp_lt_u32 {s(S_J)}, 16")
    A.branch("s_cbranch_scc1 K1_B")
    import k1a
    k1a.gen_A(A)
    A.label("K1_B")
    gen_B(A)
    A.label("K1_exit")
    I("s_endpgm")
    return A

def build(parts=("A","B"), with_k2=True, path="gated_mix__linear_attn_block__ssm_conv_s4d__prompt.s"):
    out = HEADER
    out += "; @launch kernel=k1_kernel grid=(256,1,1) block=(512,1,1) lds=163840\n"
    if with_k2:
        import k2
        out += k2.LAUNCH
    out += '.amdgcn_target "amdgcn-amd-amdhsa--gfx950"\n.text\n'
    a1 = k1(parts)
    out += a1.text()
    print("k1 instrs", a1.count, "nops", a1.nops)
    if with_k2:
        a2 = k2.gen()
        out += a2.text()
        print("k2 instrs", a2.count, "nops", a2.nops)
    out += ".p2align 10\nCODE_END:\n"
    out += '.section .rodata,"a"\n'
    out += kernel_desc("k1_kernel", 256)
    if with_k2: out += kernel_desc("k2_kernel", k2.VGPRS)
    open(path, "w").write(out)

if __name__ == "__main__":
    if "stamp" in sys.argv:
        import k1b; k1b.STAMP = True
    if len(sys.argv) > 1 and sys.argv[1] == "B":
        build(("B",), False, "kB.s")
    elif len(sys.argv) > 1 and sys.argv[1] == "AB":
        build(("A","B"), False, "kAB.s")
    elif "out" in sys.argv:
        build(path=sys.argv[sys.argv.index("out")+1])
    elif "stamp" in sys.argv:
        build(path="kS.s")
    else:
        build()
```

```python
from asmlib import *
import struct
def f32bits(x): return struct.unpack("<I", struct.pack("<f", x))[0]
LOG2E = 1.4426950408889634
LOG2E_HI = struct.unpack("<f", struct.pack("<f", LOG2E))[0]
LOG2E_LO = LOG2E - LOG2E_HI
LN2 = 0.6931471805599453
INV2PI = 0.15915494309189535

WS_PQ = 0x000000
WS_BT = 0x200000
WS_ACC = 0x400000
WS_G = 0x410000

S_X, S_WQKV, S_WO, S_U, S_LAR, S_AIM, S_CR, S_CI = 16, 18, 20, 22, 24, 26, 28, 30
S_LDT, S_DSK, S_GW, S_OUT, S_DBG, S_WS = 32, 34, 36, 38, 40, 42
S_XCD, S_J, S_WV = 3, 4, 5

RS = 2064
NROW = 56
ONEROW = NROW * RS
U0 = ONEROW + 512
USZ = 4608
K0 = U0 + 4 * USZ
KSZ = 3200
R1OFF = 1216
X3OFF = 2336
X4OFF = 2848
PT0 = K0 + 4 * KSZ
PTSZ = 2 * R1OFF
B_LDS_END = PT0 + PTSZ
CEN, CEN4, LO5 = 33, 32, 33
assert B_LDS_END <= 163840

def nib(tab):
    x = 0
    for r, t in enumerate(tab): x |= t << (4 * r)
    return x & 0xffffffff, x >> 32
T0 = list(range(16))
T1 = [0,0,1,2,2,2,3,4,4,4,5,6,6,6,7,8]
T2 = [0,0,0,1,1,1,2,2,2,2,2,3,3,3,4,4]
T3 = [0]*5 + [1]*7 + [2]*4

def cmul(A, d, x, y):
    A.I(f"v_pk_mul_f32 {v(d,2)}, {v(x,2)}, {v(y,2)} op_sel_hi:[1,0]")
    A.I(f"v_pk_fma_f32 {v(d,2)}, {v(x,2)}, {v(y,2)}, {v(d,2)} op_sel:[1,1,0] op_sel_hi:[0,1,1] neg_lo:[1,0,0]")

def exp_rbf(A, dst, src, t0, t1, sc):
    A.I(f"v_mul_f32 {v(t0)}, {s(sc)}, {v(src)}")
    A.I(f"v_fma_f32 {v(t1)}, {v(src)}, {s(sc)}, -{v(t0)}")
    A.I(f"v_fma_f32 {v(t1)}, {v(src)}, {s(sc+1)}, {v(t1)}")
    A.I(f"v_exp_f32 {v(t0)}, {v(t0)}")
    A.I(f"v_mul_f32 {v(t1)}, {s(sc+2)}, {v(t1)}")
    A.I(f"v_fma_f32 {v(t0)}, {v(t0)}, {v(t1)}, {v(t0)}")
    A.I(f"v_cvt_pk_bf16_f32 {v(t0)}, {v(t0)}, {v(t0)}")
    A.I(f"v_lshlrev_b32 {v(dst)}, 16, {v(t0)}")

STAMP = False
import os
PRIOB = int(os.environ.get('PRIOB', 4))
WS_STAMP = 0x500000
def stamp(A, k):
    if not STAMP: return
    A.I("s_waitcnt lgkmcnt(0)")
    A.I(f"s_memtime {s(72+2*k,2)}")
    A.I("s_waitcnt lgkmcnt(0)")
def stamp_out(A, n, vr=246):
    if not STAMP: return
    I = A.I
    I("s_waitcnt lgkmcnt(0) vmcnt(0)")
    I(f"s_memtime {s(72+2*n,2)}")
    I("s_memrealtime s[94:95]")
    I("s_waitcnt lgkmcnt(0)")
    I(f"s_lshl_b32 s6, s2, 3")
    I(f"s_add_u32 s6, s6, {s(S_WV)}")
    I(f"s_lshl_b32 s6, s6, 6")
    I(f"s_add_u32 s6, s6, {WS_STAMP}")
    I(f"v_mov_b32 {v(vr)}, s6")
    for k in range(n+1):
        I(f"v_mov_b32 {v(vr+1)}, {s(72+2*k)}")
        I(f"global_store_dword {v(vr)}, {v(vr+1)}, {s(S_WS,2)} offset:{4*k}")
    I(f"v_mov_b32 {v(vr+1)}, s94")
    I(f"global_store_dword {v(vr)}, {v(vr+1)}, {s(S_WS,2)} offset:60")
    I(f"v_mov_b32 {v(vr+1)}, s92")
    I(f"global_store_dword {v(vr)}, {v(vr+1)}, {s(S_WS,2)} offset:56")
    I("s_getreg_b32 s6, hwreg(HW_REG_HW_ID)")
    I(f"v_mov_b32 {v(vr+1)}, s6")
    I(f"global_store_dword {v(vr)}, {v(vr+1)}, {s(S_WS,2)} offset:52")

def gen_B(A):
    I = A.I
    sCH, sHF, sD0, sD, sT, sUC, sKC, sROT = 44, 45, 46, 47, 48, 49, 50, 51
    sC = 52
    sM = 56
    sTB = 58
    sBT = 68
    vLANE, vB, vG = 1, 2, 3
    vROW = 4
    vGA = 8
    vLAR, vAIM, vCR, vCI, vLDT, vDSK = 16, 17, 18, 19, 20, 21
    vT = 22
    W = lambda r: 32 + 2 * (r - 1)
    G = lambda p: 64 + 2 * (p - 1)
    F = lambda f: 80 + 2 * f
    H = lambda k: 112 + 2 * (k - 1)
    vP = 118
    vPK = 126
    vFA, vE0, vE1 = 130, 131, 132
    vY = 204
    I(f"s_and_b32 {s(sCH)}, {s(S_WV)}, 3")
    I(f"s_lshr_b32 {s(sHF)}, {s(S_WV)}, 2")
    I(f"s_lshl_b32 {s(sD0)}, {s(S_XCD)}, 6")
    I(f"s_lshl_b32 {s(sT)}, {s(S_J)}, 2")
    I(f"s_add_u32 {s(sD0)}, {s(sD0)}, {s(sT)}")
    I(f"s_add_u32 {s(sD)}, {s(sD0)}, {s(sCH)}")
    I(f"v_and_b32 {v(vLANE)}, 63, v0")
    I(f"s_lshl_b32 {s(sT)}, {s(sD)}, 8")
    I(f"s_lshl_b32 {s(sROT)}, {s(sHF)}, 7")
    I(f"s_add_u32 {s(sT)}, {s(sT)}, {s(sROT)}")
    I(f"v_lshl_add_u32 {v(vT)}, {v(vLANE)}, 1, {s(sT)}")
    I(f"s_lshl_b32 {s(sT)}, {s(sD)}, 1")
    I(f"v_mov_b32 {v(vT+1)}, {s(sT)}")
    I(f"s_lshl_b32 {s(sROT)}, {s(S_J)}, 5")
    I(f"v_add_u32 {v(vT+2)}, {s(sROT)}, v0")
    I(f"v_and_b32 {v(vT+2)}, 0x1ff, {v(vT+2)}")
    I("s_waitcnt lgkmcnt(0)")
    stamp(A, 1)
    I(f"global_load_ushort {v(vLDT)}, {v(vT+1)}, {s(S_LDT,2)}")
    I(f"global_load_ushort {v(vLAR)}, {v(vT)}, {s(S_LAR,2)}")
    I(f"global_load_ushort {v(vAIM)}, {v(vT)}, {s(S_AIM,2)}")
    I(f"global_load_ushort {v(vCR)}, {v(vT)}, {s(S_CR,2)}")
    I(f"global_load_ushort {v(vCI)}, {v(vT)}, {s(S_CI,2)}")
    I(f"global_load_ushort {v(vDSK)}, {v(vT+1)}, {s(S_DSK,2)}")
    I(f"s_lshl_b32 {s(sT)}, {s(sD0)}, 1")
    vGA = 140
    vUW, vGAD, vSEL = 148, 150, 154
    I(f"v_add_u32 {v(vT+3)}, {s(S_J)}, v0")
    I(f"v_and_b32 {v(vT+3)}, 3, {v(vT+3)}")
    I(f"v_lshl_add_u32 {v(vT+4)}, {v(vT+2)}, 2, {v(vT+3)}")
    I(f"v_lshl_add_u32 {v(vGAD)}, {v(vT+4)}, 10, {s(sT)}")
    for i in range(1, 4): I(f"v_xor_b32 {v(vGAD+i)}, {1024*i}, {v(vGAD)}")
    I("s_barrier")
    def gather(i): I(f"global_load_dwordx2 {v(vGA+2*i,2)}, {v(vGAD+i)}, {s(S_X,2)}")
    gather(0); gather(1)
    I(f"v_and_b32 {v(vT+4)}, -2, {v(vT+4)}")
    I(f"v_lshlrev_b32 {v(vUW)}, 1, {v(vT+4)}")
    I(f"v_add_u32 {v(vUW)}, {U0+512}, {v(vUW)}")
    I(f"v_xor_b32 {v(vUW+1)}, 4, {v(vUW)}")
    I(f"v_and_b32 {v(vT+3)}, 1, {v(vT+3)}")
    I(f"v_mul_u32_u24 {v(vT+3)}, 0x040404, {v(vT+3)}")
    I(f"v_lshl_or_b32 {v(vT+3)}, {v(vT+3)}, 8, {v(vT+3)}")
    I(f"v_xor_b32 {v(vSEL)}, 0x05040100, {v(vT+3)}")
    I(f"v_xor_b32 {v(vSEL+1)}, 0x07060302, {v(vT+3)}")
    I(f"v_and_b32 {v(vB)}, 15, {v(vLANE)}")
    I(f"v_lshrrev_b32 {v(vG)}, 4, {v(vLANE)}")
    I(f"s_mul_i32 {s(sUC)}, {s(sCH)}, {USZ}")
    I(f"s_add_u32 {s(sUC)}, {s(sUC)}, {U0}")
    I(f"s_mul_i32 {s(sKC)}, {s(sCH)}, {KSZ}")
    I(f"s_add_u32 {s(sKC)}, {s(sKC)}, {K0}")
    I(f"s_mov_b32 {s(sC)}, 0x{f32bits(LOG2E_HI):08x}")
    I(f"s_mov_b32 {s(sC+1)}, 0x{f32bits(LOG2E_LO):08x}")
    I(f"s_mov_b32 {s(sC+2)}, 0x{f32bits(LN2):08x}")
    for r in range(4): I(f"v_mov_b32 {v(24+r)}, 0")
    I(f"v_lshrrev_b32 {v(vT)}, 7, v0")
    I(f"v_mul_u32_u24 {v(vT)}, {USZ}, {v(vT)}")
    I(f"v_and_b32 {v(vT+1)}, 127, v0")
    I(f"v_lshl_add_u32 {v(vT)}, {v(vT+1)}, 2, {v(vT)}")
    I(f"v_add_u32 {v(vT)}, {U0}, {v(vT)}")
    I(f"ds_write_b32 {v(vT)}, v24")
    I(f"v_lshlrev_b32 {v(vT)}, 4, v0")
    I(f"v_add_u32 {v(vT)}, {K0}, {v(vT)}")
    I(f"ds_write_b128 {v(vT)}, v[24:27]")
    I(f"v_min_u32 {v(vT)}, {K0 + 4*KSZ - 16 - 8192}, {v(vT)}")
    I(f"ds_write_b128 {v(vT)}, v[24:27] offset:8192")
    I(f"v_lshlrev_b32 {v(vT+1)}, 2, {v(vT+1)}")
    I(f"v_add_u32 {v(vT+1)}, {ONEROW}, {v(vT+1)}")
    I(f"v_mov_b32 v28, 0x3f80")
    I(f"ds_write_b32 {v(vT+1)}, v28")
    lo_t = [4, 3, 2, 1, 3, 5, 0, 0]
    ln_t = [3, 5, 7, 9, 3, 2, 0, 0]
    lo_c = sum(t << (4*i) for i, t in enumerate(lo_t)); ln_c = sum(t << (4*i) for i, t in enumerate(ln_t))
    I(f"v_lshrrev_b32 {v(vT)}, 6, v0")
    I(f"v_lshlrev_b32 {v(vT+1)}, 2, {v(vT)}")
    I(f"s_mov_b32 {s(sT)}, 0x{lo_c:08x}")
    I(f"v_bfe_u32 v28, {s(sT)}, {v(vT+1)}, 4")
    I(f"s_mov_b32 {s(sT)}, 0x{ln_c:08x}")
    I(f"v_bfe_u32 v29, {s(sT)}, {v(vT+1)}, 4")
    I(f"v_subrev_u32 v30, 28, {v(vLANE)}")
    I(f"v_sub_u32 v30, v30, v28")
    I(f"v_mov_b32 v28, 0x3f80")
    I(f"v_mov_b32 v31, 0xffff")
    I(f"v_cmp_lt_u32 vcc, 3, {v(vT)}")
    I(f"v_cndmask_b32 v28, v28, v31, vcc")
    I(f"v_cmp_lt_u32 vcc, v30, v29")
    I(f"v_cndmask_b32 v28, 0, v28, vcc")
    I(f"v_lshlrev_b32 {v(vT)}, 1, v0")
    I(f"v_add_u32 {v(vT)}, {PT0}, {v(vT)}")
    I(f"ds_write_b16 {v(vT)}, v28")
    I(f"ds_write_b16 {v(vT)}, v28 offset:{R1OFF-2}")
    I(f"s_lshl_b32 {s(sM)}, {s(sCH)}, 9")
    I(f"s_lshl_b32 {s(sT)}, {s(sHF)}, 8")
    I(f"s_add_u32 {s(sM)}, {s(sM)}, {s(sT)}")
    I(f"s_add_u32 {s(sM+1)}, {s(sM)}, {28*RS}")
    I(f"v_lshrrev_b32 {v(vT)}, 1, {v(vG)}")
    I(f"v_lshlrev_b32 {v(vT)}, 7, {v(vT)}")
    I(f"v_and_b32 {v(vT+1)}, 1, {v(vG)}")
    I(f"v_lshl_add_u32 {v(vT)}, {v(vT+1)}, 8, {v(vT)}")
    I(f"s_lshl_b32 {s(sT)}, {s(sCH)}, 9")
    I(f"v_add_u32 {v(vT+1)}, {s(sT)}, {v(vT)}")
    I(f"v_mul_u32_u24 {v(vT+2)}, {RS}, {v(vB)}")
    I(f"v_add_u32 {v(vFA)}, {v(vT+1)}, {v(vT+2)}")
    I(f"s_cmp_eq_u32 {s(sHF)}, 0")
    I(f"s_cselect_b32 {s(sT)}, {40*RS}, {s(sT)}")
    I(f"s_mov_b32 s6, {15*RS}")
    I(f"s_cselect_b32 {s(sT)}, {s(sT)}, s6")
    I(f"v_add_u32 {v(vE0)}, {s(sT)}, {v(vFA)}")
    I(f"v_add_u32 {v(vT+3)}, {ONEROW}, {v(vT)}")
    I(f"v_sub_u32 {v(vT+4)}, {v(vB)}, {s(sHF)}")
    I(f"v_cmp_eq_u32 vcc, -1, {v(vT+4)}")
    I(f"v_cndmask_b32 {v(vE0)}, {v(vE0)}, {v(vT+3)}, vcc")
    lo, hi = nib(T1)
    I(f"s_mov_b32 {s(sTB)}, 0x{lo:08x}")
    I(f"s_mov_b32 {s(sTB+1)}, 0x{hi:08x}")
    I(f"v_lshlrev_b32 {v(vT+3)}, 2, {v(vB)}")
    I(f"v_lshrrev_b64 {v(vT+4,2)}, {v(vT+3)}, {s(sTB,2)}")
    I(f"v_and_b32 {v(vT+4)}, 15, {v(vT+4)}")
    I(f"v_add_u32 {v(vT+4)}, 31, {v(vT+4)}")
    I(f"v_mul_u32_u24 {v(vT+4)}, {RS}, {v(vT+4)}")
    I(f"v_add_u32 {v(vE1)}, {v(vT+1)}, {v(vT+4)}")
    vOFF, vKW, vLT, vLB = 4, 5, 6, 7
    UA, UC, VV, TP, TM, SS, BX, MK = 32, 64, 72, 112, 124, 148, 172, 196
    I(f"v_and_b32 {v(vT)}, 1, {v(vB)}")
    I(f"v_xor_b32 {v(vT)}, 1, {v(vT)}")
    I(f"v_mul_u32_u24 {v(vT+1)}, {R1OFF-2}, {v(vT)}")
    I(f"v_lshl_add_u32 {v(vT+1)}, {v(vG)}, 4, {v(vT+1)}")
    I(f"v_lshlrev_b32 {v(vT+2)}, 1, {v(vB)}")
    I(f"v_sub_u32 {v(vLT)}, {v(vT+1)}, {v(vT+2)}")
    def toep(dst, base, s0):
        o = (s0 - 1)//2
        assert 0 <= o and o+3 <= 255, o
        return [f"ds_read2_b32 {v(dst,2)}, {v(base)} offset0:{o} offset1:{o+1}",
                f"ds_read2_b32 {v(dst+2,2)}, {v(base)} offset0:{o+2} offset1:{o+3}"]
    I(f"v_add_u32 v11, {PT0+2}, {v(vLT)}")
    I("s_waitcnt lgkmcnt(0)")
    I("s_barrier")
    I(f"s_cmp_eq_u32 {s(sHF)}, 0")
    I("s_cbranch_scc0 B_nopat")
    boxes = [(0, 12), (1, 8), (0, 4), (1, 8), (2, 8), (3, 8)]
    for n, (run, ctr) in enumerate(boxes):
        for x in toep(BX+4*n, 11, 64*run + CEN - ctr): I(x)
        if n == 3: I("s_waitcnt lgkmcnt(4)")
    for x in toep(MK, 11, 64*4 + CEN4 - 15): I(x)
    for x in toep(MK+4, 11, 64*5 + LO5 - 12): I(x)
    I("s_waitcnt lgkmcnt(0)")
    A.label("B_nopat")
    I("s_waitcnt vmcnt(2)")
    stamp(A, 2)
    for r in (vLDT, vLAR, vAIM, vCR, vCI, vDSK):
        I(f"v_lshlrev_b32 {v(r)}, 16, {v(r)}")
    vDT = vLDT
    exp_rbf(A, vDT, vLDT, vT, vT+1, sC)
    exp_rbf(A, vLAR, vLAR, vT+2, vT+3, sC)
    vLR, vFI = vLAR, vAIM
    I(f"v_mul_f32 {v(vLR)}, {v(vLAR)}, {v(vDT)}")
    I(f"v_mul_f32 {v(vFI)}, {v(vAIM)}, {v(vDT)}")
    I(f"v_mul_f32 {v(vLR)}, 0x{f32bits(-LOG2E):08x}, {v(vLR)}")
    I(f"v_mul_f32 {v(vFI)}, 0x{f32bits(INV2PI):08x}, {v(vFI)}")
    I(f"v_add_f32 {v(vDT)}, {v(vDT)}, {v(vDT)}")
    I(f"v_mul_f32 {v(F(0))}, {v(vCR)}, {v(vDT)}")
    I(f"v_mul_f32 {v(F(0)+1)}, {v(vCI)}, {v(vDT)}")
    def anchor(dst, t, tmp):
        tb = f"0x{f32bits(float(t)):08x}"
        if t == 1:
            I(f"v_exp_f32 {v(tmp)}, {v(vLR)}")
            I(f"v_fract_f32 {v(tmp+1)}, {v(vFI)}")
        else:
            I(f"v_mul_f32 {v(tmp)}, {tb}, {v(vLR)}")
            I(f"v_mul_f32 {v(tmp+1)}, {tb}, {v(vFI)}")
            I(f"v_exp_f32 {v(tmp)}, {v(tmp)}")
            I(f"v_fract_f32 {v(tmp+1)}, {v(tmp+1)}")
        I(f"v_cos_f32 {v(dst)}, {v(tmp+1)}")
        I(f"v_sin_f32 {v(dst+1)}, {v(tmp+1)}")
        I(f"v_pk_mul_f32 {v(dst,2)}, {v(dst,2)}, {v(tmp,2)} op_sel_hi:[1,0]")
    anchor(W(1), 1, vT)
    anchor(W(16), 16, vT+2)
    anchor(G(1), 256, vT+4)
    anchor(G(4), 1024, vT+6)
    gather(2)
    st = {"pk": 0, "m0": None}
    def emit(row, reg, neg=False):
        t = vPK + (st["pk"] & 3); st["pk"] += 1
        grp = row // 28
        if st["m0"] != grp:
            I(f"s_mov_b32 m0, {s(sM+grp)}"); st["m0"] = grp
        I(f"v_cvt_pk_bf16_f32 {v(t)}, {v(reg)}, {'-' if neg else ''}{v(reg+1)}")
        I(f"ds_write_addtid_b32 {v(t)} offset:{(row % 28)*RS}")
    EW = lambda r: 15 + r
    cmul(A, W(2), W(1), W(1)); emit(EW(1), W(1))
    cmul(A, H(1), W(16), W(16)); emit(0, F(0), True)
    cmul(A, F(1), F(0), W(16))
    cmul(A, G(2), G(1), G(1))
    cmul(A, W(3), W(2), W(1)); emit(EW(2), W(2))
    cmul(A, W(4), W(2), W(2)); emit(1, F(1), True)
    cmul(A, H(2), H(1), H(1))
    cmul(A, F(2), F(0), H(1)); emit(EW(3), W(3))
    cmul(A, F(3), F(1), H(1)); emit(EW(4), W(4))
    cmul(A, G(3), G(2), G(1))
    cmul(A, W(8), W(4), W(4)); emit(2, F(2), True)
    cmul(A, H(3), H(2), H(2)); emit(3, F(3), True)
    for r in (5, 6, 7): cmul(A, W(r), W(4), W(r-4))
    emit(EW(8), W(8))
    gather(3)
    for f in range(4):
        cmul(A, F(4+f), F(f), H(2))
        if f < 3: emit(EW(5+f), W(5+f))
    for p in (5, 6, 7):
        cmul(A, G(p), G(4), G(p-4)); emit(4+p-5, F(4+p-5), True)
    emit(7, F(7), True)
    for f in range(8):
        cmul(A, F(8+f), F(f), H(3))
        if f > 0: emit(8+f-1, F(8+f-1), True)
    for r in range(9, 16):
        cmul(A, W(r), W(8), W(r-8))
        if r == 9: emit(15, F(15), True)
        else: emit(EW(r-1), W(r-1))
    emit(EW(15), W(15)); emit(31, G(1))
    prods = []
    for i in range(1, 9): prods.append((31+i, 1, 2*i))
    for p in (2, 3):
        for i in range(1, 5): prods.append((40 + 4*(p-2) + i-1, p, 4*i))
    for p in range(4, 8):
        for i in (1, 2): prods.append((48 + 2*(p-4) + i-1, p, 8*i))
    pend = []
    for n, (row, p, r) in enumerate(prods):
        t = vP + 2*(n & 3)
        cmul(A, t, G(p), W(r))
        pend.append((row, t))
        if len(pend) > 1:
            rw, tt = pend.pop(0); emit(rw, tt)
    for rw, tt in pend: emit(rw, tt)
    stamp(A, 3)
    def ustage():
        I("s_waitcnt vmcnt(0)")
        stamp(A, 4)
        for c in range(4):
            sel = v(vSEL + (c % 2))
            o = c // 2
            t = 156 + 2*c
            I(f"v_perm_b32 {v(t)}, {v(vGA+2+o)}, {v(vGA+o)}, {sel}")
            I(f"v_perm_b32 {v(t+1)}, {v(vGA+6+o)}, {v(vGA+4+o)}, {sel}")
            I(f"ds_write_b32 {v(vUW)}, {v(t)} offset:{c*USZ}")
            I(f"ds_write_b32 {v(vUW+1)}, {v(t+1)} offset:{c*USZ}")
    def wopf(i):
        if i == 0:
            I(f"s_lshl_b32 {s(sT)}, {s(S_J)}, 15")
            I(f"v_lshl_add_u32 v14, v0, 4, {s(sT)}")
        else: I(f"v_add_u32 v14, 4096, v14")
        I(f"global_load_dwordx4 v[236:239], v14, {s(S_WO,2)}")
    I(f"v_lshlrev_b32 {v(vT)}, 5, {v(vB)}")
    I(f"v_lshl_add_u32 {v(vOFF)}, {v(vG)}, 3, {v(vT)}")
    I(f"v_lshl_add_u32 {v(vT)}, {v(vG)}, 4, {v(vT)}")
    I(f"v_add_u32 {v(vLB)}, {s(sUC)}, {v(vT)}")
    I(f"s_lshl_b32 {s(sT)}, {s(sHF)}, 9")
    I(f"s_add_u32 {s(sT)}, {s(sT)}, {s(sKC)}")
    I(f"s_add_u32 {s(sT)}, {s(sT)}, {2*540 - 512}")
    I(f"v_sub_u32 {v(vKW)}, {s(sT)}, {v(vOFF)}")
    I(f"v_cmp_eq_u32 vcc, 0, {v(vLANE)}")
    for r in range(1, 4): I(f"v_mov_b32 {v(248+r)}, 0")
    I(f"v_cndmask_b32 v248, 0, {v(vDSK)}, vcc")
    I("s_waitcnt lgkmcnt(0)")
    I("s_barrier")
    stamp(A, 5)
    vFF = 32; vEF = 64; vK = 248
    def ktile_write(k, t):
        I(f"v_cvt_pk_bf16_f32 {v(t)}, {v(k+3)}, {v(k+2)}")
        I(f"v_cvt_pk_bf16_f32 {v(t+1)}, {v(k+1)}, {v(k)}")
        I(f"v_cvt_pk_bf16_f32 {v(t+2)}, {v(k+2)}, {v(k+1)}")
        I(f"ds_write_b64 {v(vKW)}, {v(t,2)}")
        I(f"ds_write_b32 {v(vKW)}, {v(t+2)} offset:{R1OFF}")
        I(f"ds_write_b16 {v(vKW)}, {v(t)} offset:{R1OFF-2}")
        I(f"ds_write_b16_d16_hi {v(vKW)}, {v(t+1)} offset:{R1OFF+4}")
    def kphase(ntile):
        loads = []
        for ks in range(8):
            loads.append(f"ds_read_b128 {v(vFF+4*ks,4)}, {v(vFA)} offset:{16*ks}")
            for i in range(ntile):
                loads.append(f"ds_read_b128 {v(vEF+32*i+4*ks,4)}, {v(vE0+i)} offset:{16*ks}")
        per = 1 + ntile
        issued = min(len(loads), 12)
        for x in loads[:issued]: I(x)
        for ks in range(8):
            for i in range(ntile):
                idx = ks*per + 1 + i
                I(f"s_waitcnt lgkmcnt({issued-1-idx})")
                c = "0" if (ks == 0 and ntile == 2) else v(vK+4*i,4)
                I(f"v_mfma_f32_16x16x32_bf16 {v(vK+4*i,4)}, {v(vEF+32*i+4*ks,4)}, {v(vFF+4*ks,4)}, {c}")
                while issued < len(loads) and issued - idx <= 12:
                    I(loads[issued]); issued += 1
    touched = set()
    yx = [0]
    def mf(t, a_, b_):
        y = vY + 4*(t ^ yx[0])
        c = v(y,4) if t in touched else "0"
        touched.add(t)
        I(f"v_mfma_f32_16x16x32_bf16 {v(y,4)}, {v(a_,4)}, {v(b_,4)}, {c}")
    I(f"s_cmp_eq_u32 {s(sHF)}, 0")
    A.branch("s_cbranch_scc0 B_waveB")
    kphase(2)
    vLO, vHI, vKT, vPT, vV3, vV4 = 16, 17, 10, 11, 12, 13
    I(f"v_lshlrev_b32 {v(vT)}, 7, {v(vG)}")
    I(f"v_lshl_add_u32 {v(vT+1)}, {v(vB)}, 3, {v(vT)}")
    I(f"v_sub_u32 {v(vT+1)}, {X3OFF + 2*188}, {v(vT+1)}")
    I(f"v_add_u32 {v(vT+2)}, 4, {v(vT+1)}")
    I(f"v_lshl_add_u32 {v(vT+3)}, {v(vB)}, 2, {v(vT)}")
    I(f"v_sub_u32 {v(vT+3)}, {X4OFF + 2*126 + 256}, {v(vT+3)}")
    I(f"v_subrev_u32 {v(vT+4)}, 64, {v(vT+3)}")
    I(f"v_cmp_gt_u32 vcc, 2, {v(vG)}")
    I(f"v_cndmask_b32 {v(vLO)}, {v(vT+3)}, {v(vT+2)}, vcc")
    I(f"v_cndmask_b32 {v(vHI)}, {v(vT+4)}, {v(vT+1)}, vcc")
    I(f"v_add_u32 {v(vLO)}, {s(sKC)}, {v(vLO)}")
    I(f"v_add_u32 {v(vHI)}, {s(sKC)}, {v(vHI)}")
    I(f"v_cvt_pk_bf16_f32 {v(vT)}, {v(vK+1)}, {v(vK)}")
    I(f"v_cvt_pk_bf16_f32 {v(vT+1)}, {v(vK+3)}, {v(vK+2)}")
    I(f"ds_write_b32 {v(vLO)}, {v(vT)}")
    I(f"ds_write_b32 {v(vHI)}, {v(vT+1)}")
    ktile_write(vK+4, vT+2)
    stamp(A, 8)
    ustage()
    I(f"s_add_u32 {s(sT)}, {s(sKC)}, 2")
    I(f"v_add_u32 {v(vKT)}, {s(sT)}, {v(vLT)}")
    I(f"v_lshlrev_b32 {v(vT)}, 5, {v(vG)}")
    I(f"v_lshlrev_b32 {v(vT+1)}, 3, {v(vB)}")
    I(f"v_sub_u32 {v(vT)}, {v(vT)}, {v(vT+1)}")
    I(f"s_add_u32 {s(sT)}, {s(sKC)}, {X3OFF + 120}")
    I(f"v_add_u32 {v(vV3)}, {s(sT)}, {v(vT)}")
    I(f"v_ashrrev_i32 {v(vT)}, 1, {v(vT)}")
    I(f"s_add_u32 {s(sT)}, {s(sKC)}, {X4OFF + 60}")
    I(f"v_add_u32 {v(vV4)}, {s(sT)}, {v(vT)}")
    I("s_waitcnt lgkmcnt(0)")
    I("s_barrier")
    stamp(A, 6)
    I(f"ds_read_b128 {v(UA,4)}, {v(vLB)} offset:{480}")
    I(f"ds_read_b128 {v(UC,4)}, {v(vLB)} offset:{480-16}")
    for k in range(1, 8):
        I(f"ds_read_b128 {v(UA+4*k,4)}, {v(vLB)} offset:{480 + 512*k}")
    I("s_waitcnt lgkmcnt(7)")
    ld = []
    I(f"v_add_u32 {v(vLO)}, 512, {v(vKT)}")
    ld += toep(TP, vLO, 543-16-256)
    ld += toep(TP+4, vKT, 543-16-256)
    ld += toep(TP+8, vKT, 543-16-512)
    I(f"v_mov_b32 {v(vT)}, {s(sKC)}")
    ld.append(f"ds_read_u16 {v(vT+2)}, {v(vT)} offset:{2*32}")
    ld.append(f"ds_read_u16 {v(vT+3)}, {v(vT)} offset:{X3OFF + 2*64}")
    for Dl in (2, 3, 4):
        for ph in range(2):
            d = VV + 4*(2*(Dl-2)+ph)
            o = 128*(4-Dl) + 16*ph
            ld.append(f"ds_read_b64 {v(d,2)}, {v(vV3)} offset:{o}")
            ld.append(f"ds_read_b64 {v(d+2,2)}, {v(vV3)} offset:{o+8}")
    for Dl in (4, 5, 6, 7):
        d = VV + 24 + 4*(Dl-4)
        o = 16*(7-Dl)
        ld.append(f"ds_read2_b32 {v(d,2)}, {v(vV4)} offset0:{o} offset1:{o+1}")
        ld.append(f"ds_read2_b32 {v(d+2,2)}, {v(vV4)} offset0:{o+2} offset1:{o+3}")
    def box(k):
        uc = UC + 4*(k & 1)
        n = 6 if k < 4 else 4
        for t in range(n):
            u = uc if t in (3, 5) else UA+4*k
            I(f"v_mfma_f32_16x16x32_bf16 {v(TM+4*t,4)}, {v(u,4)}, {v(BX+4*t,4)}, 0")
            for _ in range(3):
                if ld: I(ld.pop(0))
    def cvt(k):
        sb = SS + 12*(k & 1)
        S4, S8, S12, S16, Q8, Q16 = (TM+4*t for t in range(6))
        for ph in range(2):
            for cc in range(2):
                r = 2*ph + cc
                I(f"v_cvt_pk_bf16_f32 {v(sb+4*ph+2*cc)}, {v(S16+r)}, {v(S12+r)}")
                I(f"v_cvt_pk_bf16_f32 {v(sb+4*ph+2*cc+1)}, {v(S8+r)}, {v(S4+r)}")
        if k < 4:
            for r in range(4):
                I(f"v_cvt_pk_bf16_f32 {v(sb+8+r)}, {v(Q16+r)}, {v(Q8+r)}")
    def far(k):
        sb = SS + 12*(k & 1)
        for Dl in (2, 3, 4):
            if k + Dl < 8:
                for ph in range(2): mf(k+Dl, sb+4*ph, VV + 4*(2*(Dl-2)+ph))
        if k < 4:
            for Dl in (4, 5, 6, 7):
                if k + Dl < 8: mf(k+Dl, sb+8, VV+24+4*(Dl-4))
    box(0)
    while ld: I(ld.pop(0))
    I(f"ds_read_b128 {v(UC+4,4)}, {v(vLB)} offset:{480-16+512}")
    I("s_waitcnt lgkmcnt(15)")
    I("s_waitcnt lgkmcnt(0)")
    for t in range(8): mf(t, TP, UA+4*t)
    cvt(0)
    I(f"v_lshl_or_b32 {v(vT+2)}, {v(vT+2)}, 16, {v(vT+2)}")
    I(f"v_lshl_or_b32 {v(vT+3)}, {v(vT+3)}, 16, {v(vT+3)}")
    for r in range(4):
        I(f"v_and_or_b32 {v(TP+8+r)}, {v(MK+r)}, {v(vT+2)}, {v(TP+8+r)}")
        I(f"v_and_b32 {v(MK+4+r)}, {v(MK+4+r)}, {v(vT+3)}")
    fill = [(t+1, TP+4, UA+4*t) for t in range(7)] + [(t+2, TP+8, UA+4*t) for t in range(6)] + [(t+4, MK+4, UA+4*t) for t in range(4)]
    for k in range(1, 6):
        I("s_waitcnt lgkmcnt(0)")
        box(k)
        if k < 5: I(f"ds_read_b128 {v(UC+4*((k+1)&1),4)}, {v(vLB)} offset:{480-16+512*(k+1)}")
        far(k-1)
        if k <= 4: wopf(2*k-2); wopf(2*k-1)
        for _ in range(3):
            if fill: mf(*fill.pop(0))
        cvt(k)
    while fill: mf(*fill.pop(0))
    far(5)
    A.branch("s_branch B_epi")
    A.label("B_waveB")
    touched.clear(); yx[0] = 4
    kphase(1)
    ktile_write(vK, vT)
    stamp(A, 8)
    ustage()
    vKA0 = 8
    I(f"s_add_u32 {s(sT)}, {s(sKC)}, 2")
    I(f"v_add_u32 {v(vKA0)}, {s(sT)}, {v(vLT)}")
    NB = 3
    bufB = lambda q: 32 + 40*(q % NB)
    bufA = lambda q: 32 + 40*(q % NB) + 32
    def ldB(q): return [f"ds_read_b128 {v(bufB(q)+4*t,4)}, {v(vLB)} offset:{480 + 512*t - 64*q}" for t in range(8)]
    def ldA(q): return toep(bufA(q), vKA0, 543-16-32*q) + toep(bufA(q)+4, vKA0, 543-16-256-32*q)
    I("s_waitcnt lgkmcnt(0)")
    I("s_barrier")
    stamp(A, 6)
    if PRIOB: I("s_setprio 1")
    stream = []
    for q in range(1, 8): stream += [(q, x) for x in ldA(q) + ldB(q)]
    issued = 0
    def last_idx(q): return max(i for i, (qq, _) in enumerate(stream) if qq == q)
    while issued < 14: I(stream[issued][1]); issued += 1
    for q in range(1, 8):
        if PRIOB and q == PRIOB: I("s_setprio 0")
        I(f"s_waitcnt lgkmcnt({min(15, issued-1-last_idx(q))})")
        seq = [(t, bufA(q), bufB(q)+4*t) for t in range(8)] + [(t+1, bufA(q)+4, bufB(q)+4*t) for t in range(7)]
        for m in seq:
            mf(*m)
            if issued < len(stream) and stream[issued][0] <= q + NB - 1 and issued - last_idx(q) <= 14:
                I(stream[issued][1]); issued += 1
        while q < 7 and issued <= last_idx(q+1):
            I(stream[issued][1]); issued += 1
    A.label("B_epi")
    stamp(A, 7)
    vXA = 6
    I(f"s_lshl_b32 {s(sROT)}, {s(sCH)}, 13")
    I(f"s_lshl_b32 {s(sT)}, {s(sHF)}, 12")
    I(f"s_add_u32 s6, {s(sROT)}, {s(sT)}")
    I(f"v_lshl_add_u32 {v(vXA)}, {v(vLANE)}, 4, s6")
    for i in range(4):
        I(f"ds_write_b128 {v(vXA)}, {v(vY+16+4*i,4)} offset:{1024*i}")
    I(f"v_xor_b32 {v(vXA)}, 4096, {v(vXA)}")
    I(f"s_lshl_b32 {s(sT)}, {s(sHF)}, 11")
    I(f"s_lshl_b32 {s(sROT)}, {s(sD)}, 12")
    I(f"s_add_u32 {s(sROT)}, {s(sROT)}, {s(sT)}")
    I(f"s_add_u32 {s(sROT)}, {s(sROT)}, {WS_BT}")
    I(f"s_add_u32 {s(sBT)}, {s(S_WS)}, {s(sROT)}")
    I(f"s_addc_u32 {s(sBT+1)}, {s(S_WS+1)}, 0")
    I("s_waitcnt lgkmcnt(0)")
    I("s_barrier")
    vX = 48
    for i in range(4):
        I(f"ds_read_b128 {v(vX+4*i,4)}, {v(vXA)} offset:{1024*i}")
    I(f"v_and_b32 {v(vT)}, 1, {v(vG)}")
    I(f"v_mul_u32_u24 {v(vT)}, 504, {v(vT)}")
    I(f"v_add_u32 {v(vT)}, {v(vT)}, {v(vOFF)}")
    for p in range(2):
        o = 64 + 4*p
        for i in (2*p, 2*p+1):
            I(f"s_waitcnt lgkmcnt({3-i})")
            y = vY + 4*i; x = vX + 4*i
            I(f"v_pk_add_f32 {v(y,2)}, {v(y,2)}, {v(x,2)}")
            I(f"v_pk_add_f32 {v(y+2,2)}, {v(y+2,2)}, {v(x+2,2)}")
            I(f"v_cvt_pk_bf16_f32 {v(o+2*(i&1))}, {v(y)}, {v(y+1)}")
            I(f"v_cvt_pk_bf16_f32 {v(o+2*(i&1)+1)}, {v(y+2)}, {v(y+3)}")
        I(f"v_permlane16_swap_b32 {v(o)}, {v(o+2)}")
        I(f"v_permlane16_swap_b32 {v(o+1)}, {v(o+3)}")
        I(f"global_store_dwordx4 {v(vT)}, {v(o,4)}, {s(sBT,2)} offset:{1024*p} sc0 sc1")
    stamp_out(A, 9)
    I("s_endpgm")
```

```python
from asmlib import *
import struct
def f32bits(x): return struct.unpack("<I", struct.pack("<f", x))[0]
LOG2E = 1.4426950408889634
LOG2E_HI = struct.unpack("<f", struct.pack("<f", LOG2E))[0]
LOG2E_LO = LOG2E - LOG2E_HI
LN2 = 0.6931471805599453
INV2PI = 0.15915494309189535

WS_PQ = 0x000000
WS_BT = 0x200000
WS_ACC = 0x400000
WS_G = 0x410000

S_X, S_WQKV, S_WO, S_U, S_LAR, S_AIM, S_CR, S_CI = 16, 18, 20, 22, 24, 26, 28, 30
S_LDT, S_DSK, S_GW, S_OUT, S_DBG, S_WS = 32, 34, 36, 38, 40, 42
S_XCD, S_J, S_WV = 3, 4, 5

RS = 2064
NROW = 56
ONEROW = NROW * RS
U0 = ONEROW + 512
USZ = 4608
K0 = U0 + 4 * USZ
KSZ = 3200
R1OFF = 1216
X3OFF = 2336
X4OFF = 2848
PT0 = K0 + 4 * KSZ
PTSZ = 2 * R1OFF
B_LDS_END = PT0 + PTSZ
CEN, CEN4, LO5 = 33, 32, 33
assert B_LDS_END <= 163840

def nib(tab):
    x = 0
    for r, t in enumerate(tab): x |= t << (4 * r)
    return x & 0xffffffff, x >> 32
T0 = list(range(16))
T1 = [0,0,1,2,2,2,3,4,4,4,5,6,6,6,7,8]
T2 = [0,0,0,1,1,1,2,2,2,2,2,3,3,3,4,4]
T3 = [0]*5 + [1]*7 + [2]*4

def cmul(A, d, x, y):
    A.I(f"v_pk_mul_f32 {v(d,2)}, {v(x,2)}, {v(y,2)} op_sel_hi:[1,0]")
    A.I(f"v_pk_fma_f32 {v(d,2)}, {v(x,2)}, {v(y,2)}, {v(d,2)} op_sel:[1,1,0] op_sel_hi:[0,1,1] neg_lo:[1,0,0]")

def exp_rbf(A, dst, src, t0, t1, sc):
    A.I(f"v_mul_f32 {v(t0)}, {s(sc)}, {v(src)}")
    A.I(f"v_fma_f32 {v(t1)}, {v(src)}, {s(sc)}, -{v(t0)}")
    A.I(f"v_fma_f32 {v(t1)}, {v(src)}, {s(sc+1)}, {v(t1)}")
    A.I(f"v_exp_f32 {v(t0)}, {v(t0)}")
    A.I(f"v_mul_f32 {v(t1)}, {s(sc+2)}, {v(t1)}")
    A.I(f"v_fma_f32 {v(t0)}, {v(t0)}, {v(t1)}, {v(t0)}")
    A.I(f"v_cvt_pk_bf16_f32 {v(t0)}, {v(t0)}, {v(t0)}")
    A.I(f"v_lshlrev_b32 {v(dst)}, 16, {v(t0)}")

STAMP = False
import os
PRIOB = int(os.environ.get('PRIOB', 4))
WS_STAMP = 0x500000
def stamp(A, k):
    if not STAMP: return
    A.I("s_waitcnt lgkmcnt(0)")
    A.I(f"s_memtime {s(72+2*k,2)}")
    A.I("s_waitcnt lgkmcnt(0)")
def stamp_out(A, n, vr=246):
    if not STAMP: return
    I = A.I
    I("s_waitcnt lgkmcnt(0) vmcnt(0)")
    I(f"s_memtime {s(72+2*n,2)}")
    I("s_memrealtime s[94:95]")
    I("s_waitcnt lgkmcnt(0)")
    I(f"s_lshl_b32 s6, s2, 3")
    I(f"s_add_u32 s6, s6, {s(S_WV)}")
    I(f"s_lshl_b32 s6, s6, 6")
    I(f"s_add_u32 s6, s6, {WS_STAMP}")
    I(f"v_mov_b32 {v(vr)}, s6")
    for k in range(n+1):
        I(f"v_mov_b32 {v(vr+1)}, {s(72+2*k)}")
        I(f"global_store_dword {v(vr)}, {v(vr+1)}, {s(S_WS,2)} offset:{4*k}")
    I(f"v_mov_b32 {v(vr+1)}, s94")
    I(f"global_store_dword {v(vr)}, {v(vr+1)}, {s(S_WS,2)} offset:60")
    I(f"v_mov_b32 {v(vr+1)}, s92")
    I(f"global_store_dword {v(vr)}, {v(vr+1)}, {s(S_WS,2)} offset:56")
    I("s_getreg_b32 s6, hwreg(HW_REG_HW_ID)")
    I(f"v_mov_b32 {v(vr+1)}, s6")
    I(f"global_store_dword {v(vr)}, {v(vr+1)}, {s(S_WS,2)} offset:52")

def gen_B(A):
    I = A.I
    sCH, sHF, sD0, sD, sT, sUC, sKC, sROT = 44, 45, 46, 47, 48, 49, 50, 51
    sC = 52
    sM = 56
    sTB = 58
    sBT = 68
    vLANE, vB, vG = 1, 2, 3
    vROW = 4
    vGA = 8
    vLAR, vAIM, vCR, vCI, vLDT, vDSK = 16, 17, 18, 19, 20, 21
    vT = 22
    W = lambda r: 32 + 2 * (r - 1)
    G = lambda p: 64 + 2 * (p - 1)
    F = lambda f: 80 + 2 * f
    H = lambda k: 112 + 2 * (k - 1)
    vP = 118
    vPK = 126
    vFA, vE0, vE1 = 130, 131, 132
    vY = 204
    I(f"s_and_b32 {s(sCH)}, {s(S_WV)}, 3")
    I(f"s_lshr_b32 {s(sHF)}, {s(S_WV)}, 2")
    I(f"s_lshl_b32 {s(sD0)}, {s(S_XCD)}, 6")
    I(f"s_lshl_b32 {s(sT)}, {s(S_J)}, 2")
    I(f"s_add_u32 {s(sD0)}, {s(sD0)}, {s(sT)}")
    I(f"s_add_u32 {s(sD)}, {s(sD0)}, {s(sCH)}")
    I(f"v_and_b32 {v(vLANE)}, 63, v0")
    I(f"s_lshl_b32 {s(sT)}, {s(sD)}, 8")
    I(f"s_lshl_b32 {s(sROT)}, {s(sHF)}, 7")
    I(f"s_add_u32 {s(sT)}, {s(sT)}, {s(sROT)}")
    I(f"v_lshl_add_u32 {v(vT)}, {v(vLANE)}, 1, {s(sT)}")
    I(f"s_lshl_b32 {s(sT)}, {s(sD)}, 1")
    I(f"v_mov_b32 {v(vT+1)}, {s(sT)}")
    I(f"s_lshl_b32 {s(sROT)}, {s(S_J)}, 5")
    I(f"v_add_u32 {v(vT+2)}, {s(sROT)}, v0")
    I(f"v_and_b32 {v(vT+2)}, 0x1ff, {v(vT+2)}")
    I("s_waitcnt lgkmcnt(0)")
    stamp(A, 1)
    I(f"global_load_ushort {v(vLDT)}, {v(vT+1)}, {s(S_LDT,2)}")
    I(f"global_load_ushort {v(vLAR)}, {v(vT)}, {s(S_LAR,2)}")
    I(f"global_load_ushort {v(vAIM)}, {v(vT)}, {s(S_AIM,2)}")
    I(f"global_load_ushort {v(vCR)}, {v(vT)}, {s(S_CR,2)}")
    I(f"global_load_ushort {v(vCI)}, {v(vT)}, {s(S_CI,2)}")
    I(f"global_load_ushort {v(vDSK)}, {v(vT+1)}, {s(S_DSK,2)}")
    I(f"s_lshl_b32 {s(sT)}, {s(sD0)}, 1")
    vGA = 140
    vUW, vGAD, vSEL = 148, 150, 154
    I(f"v_add_u32 {v(vT+3)}, {s(S_J)}, v0")
    I(f"v_and_b32 {v(vT+3)}, 3, {v(vT+3)}")
    I(f"v_lshl_add_u32 {v(vT+4)}, {v(vT+2)}, 2, {v(vT+3)}")
    I(f"v_lshl_add_u32 {v(vGAD)}, {v(vT+4)}, 10, {s(sT)}")
    for i in range(1, 4): I(f"v_xor_b32 {v(vGAD+i)}, {1024*i}, {v(vGAD)}")
    I("s_barrier")
    def gather(i): I(f"global_load_dwordx2 {v(vGA+2*i,2)}, {v(vGAD+i)}, {s(S_X,2)}")
    gather(0); gather(1)
    I(f"v_and_b32 {v(vT+4)}, -2, {v(vT+4)}")
    I(f"v_lshlrev_b32 {v(vUW)}, 1, {v(vT+4)}")
    I(f"v_add_u32 {v(vUW)}, {U0+512}, {v(vUW)}")
    I(f"v_xor_b32 {v(vUW+1)}, 4, {v(vUW)}")
    I(f"v_and_b32 {v(vT+3)}, 1, {v(vT+3)}")
    I(f"v_mul_u32_u24 {v(vT+3)}, 0x040404, {v(vT+3)}")
    I(f"v_lshl_or_b32 {v(vT+3)}, {v(vT+3)}, 8, {v(vT+3)}")
    I(f"v_xor_b32 {v(vSEL)}, 0x05040100, {v(vT+3)}")
    I(f"v_xor_b32 {v(vSEL+1)}, 0x07060302, {v(vT+3)}")
    I(f"v_and_b32 {v(vB)}, 15, {v(vLANE)}")
    I(f"v_lshrrev_b32 {v(vG)}, 4, {v(vLANE)}")
    I(f"s_mul_i32 {s(sUC)}, {s(sCH)}, {USZ}")
    I(f"s_add_u32 {s(sUC)}, {s(sUC)}, {U0}")
    I(f"s_mul_i32 {s(sKC)}, {s(sCH)}, {KSZ}")
    I(f"s_add_u32 {s(sKC)}, {s(sKC)}, {K0}")
    I(f"s_mov_b32 {s(sC)}, 0x{f32bits(LOG2E_HI):08x}")
    I(f"s_mov_b32 {s(sC+1)}, 0x{f32bits(LOG2E_LO):08x}")
    I(f"s_mov_b32 {s(sC+2)}, 0x{f32bits(LN2):08x}")
    for r in range(4): I(f"v_mov_b32 {v(24+r)}, 0")
    I(f"v_lshrrev_b32 {v(vT)}, 7, v0")
    I(f"v_mul_u32_u24 {v(vT)}, {USZ}, {v(vT)}")
    I(f"v_and_b32 {v(vT+1)}, 127, v0")
    I(f"v_lshl_add_u32 {v(vT)}, {v(vT+1)}, 2, {v(vT)}")
    I(f"v_add_u32 {v(vT)}, {U0}, {v(vT)}")
    I(f"ds_write_b32 {v(vT)}, v24")
    I(f"v_lshlrev_b32 {v(vT)}, 4, v0")
    I(f"v_add_u32 {v(vT)}, {K0}, {v(vT)}")
    I(f"ds_write_b128 {v(vT)}, v[24:27]")
    I(f"v_min_u32 {v(vT)}, {K0 + 4*KSZ - 16 - 8192}, {v(vT)}")
    I(f"ds_write_b128 {v(vT)}, v[24:27] offset:8192")
    I(f"v_lshlrev_b32 {v(vT+1)}, 2, {v(vT+1)}")
    I(f"v_add_u32 {v(vT+1)}, {ONEROW}, {v(vT+1)}")
    I(f"v_mov_b32 v28, 0x3f80")
    I(f"ds_write_b32 {v(vT+1)}, v28")
    lo_t = [4, 3, 2, 1, 3, 5, 0, 0]
    ln_t = [3, 5, 7, 9, 3, 2, 0, 0]
    lo_c = sum(t << (4*i) for i, t in enumerate(lo_t)); ln_c = sum(t << (4*i) for i, t in enumerate(ln_t))
    I(f"v_lshrrev_b32 {v(vT)}, 6, v0")
    I(f"v_lshlrev_b32 {v(vT+1)}, 2, {v(vT)}")
    I(f"s_mov_b32 {s(sT)}, 0x{lo_c:08x}")
    I(f"v_bfe_u32 v28, {s(sT)}, {v(vT+1)}, 4")
    I(f"s_mov_b32 {s(sT)}, 0x{ln_c:08x}")
    I(f"v_bfe_u32 v29, {s(sT)}, {v(vT+1)}, 4")
    I(f"v_subrev_u32 v30, 28, {v(vLANE)}")
    I(f"v_sub_u32 v30, v30, v28")
    I(f"v_mov_b32 v28, 0x3f80")
    I(f"v_mov_b32 v31, 0xffff")
    I(f"v_cmp_lt_u32 vcc, 3, {v(vT)}")
    I(f"v_cndmask_b32 v28, v28, v31, vcc")
    I(f"v_cmp_lt_u32 vcc, v30, v29")
    I(f"v_cndmask_b32 v28, 0, v28, vcc")
    I(f"v_lshlrev_b32 {v(vT)}, 1, v0")
    I(f"v_add_u32 {v(vT)}, {PT0}, {v(vT)}")
    I(f"ds_write_b16 {v(vT)}, v28")
    I(f"ds_write_b16 {v(vT)}, v28 offset:{R1OFF-2}")
    I(f"s_lshl_b32 {s(sM)}, {s(sCH)}, 9")
    I(f"s_lshl_b32 {s(sT)}, {s(sHF)}, 8")
    I(f"s_add_u32 {s(sM)}, {s(sM)}, {s(sT)}")
    I(f"s_add_u32 {s(sM+1)}, {s(sM)}, {28*RS}")
    I(f"v_lshrrev_b32 {v(vT)}, 1, {v(vG)}")
    I(f"v_lshlrev_b32 {v(vT)}, 7, {v(vT)}")
    I(f"v_and_b32 {v(vT+1)}, 1, {v(vG)}")
    I(f"v_lshl_add_u32 {v(vT)}, {v(vT+1)}, 8, {v(vT)}")
    I(f"s_lshl_b32 {s(sT)}, {s(sCH)}, 9")
    I(f"v_add_u32 {v(vT+1)}, {s(sT)}, {v(vT)}")
    I(f"v_mul_u32_u24 {v(vT+2)}, {RS}, {v(vB)}")
    I(f"v_add_u32 {v(vFA)}, {v(vT+1)}, {v(vT+2)}")
    I(f"s_cmp_eq_u32 {s(sHF)}, 0")
    I(f"s_cselect_b32 {s(sT)}, {40*RS}, {s(sT)}")
    I(f"s_mov_b32 s6, {15*RS}")
    I(f"s_cselect_b32 {s(sT)}, {s(sT)}, s6")
    I(f"v_add_u32 {v(vE0)}, {s(sT)}, {v(vFA)}")
    I(f"v_add_u32 {v(vT+3)}, {ONEROW}, {v(vT)}")
    I(f"v_sub_u32 {v(vT+4)}, {v(vB)}, {s(sHF)}")
    I(f"v_cmp_eq_u32 vcc, -1, {v(vT+4)}")
    I(f"v_cndmask_b32 {v(vE0)}, {v(vE0)}, {v(vT+3)}, vcc")
    lo, hi = nib(T1)
    I(f"s_mov_b32 {s(sTB)}, 0x{lo:08x}")
    I(f"s_mov_b32 {s(sTB+1)}, 0x{hi:08x}")
    I(f"v_lshlrev_b32 {v(vT+3)}, 2, {v(vB)}")
    I(f"v_lshrrev_b64 {v(vT+4,2)}, {v(vT+3)}, {s(sTB,2)}")
    I(f"v_and_b32 {v(vT+4)}, 15, {v(vT+4)}")
    I(f"v_add_u32 {v(vT+4)}, 31, {v(vT+4)}")
    I(f"v_mul_u32_u24 {v(vT+4)}, {RS}, {v(vT+4)}")
    I(f"v_add_u32 {v(vE1)}, {v(vT+1)}, {v(vT+4)}")
    vOFF, vKW, vLT, vLB = 4, 5, 6, 7
    UA, UC, VV, TP, TM, SS, BX, MK = 32, 64, 72, 112, 124, 148, 172, 196
    I(f"v_and_b32 {v(vT)}, 1, {v(vB)}")
    I(f"v_xor_b32 {v(vT)}, 1, {v(vT)}")
    I(f"v_mul_u32_u24 {v(vT+1)}, {R1OFF-2}, {v(vT)}")
    I(f"v_lshl_add_u32 {v(vT+1)}, {v(vG)}, 4, {v(vT+1)}")
    I(f"v_lshlrev_b32 {v(vT+2)}, 1, {v(vB)}")
    I(f"v_sub_u32 {v(vLT)}, {v(vT+1)}, {v(vT+2)}")
    def toep(dst, base, s0):
        o = (s0 - 1)//2
        assert 0 <= o and o+3 <= 255, o
        return [f"ds_read2_b32 {v(dst,2)}, {v(base)} offset0:{o} offset1:{o+1}",
                f"ds_read2_b32 {v(dst+2,2)}, {v(base)} offset0:{o+2} offset1:{o+3}"]
    I(f"v_add_u32 v11, {PT0+2}, {v(vLT)}")
    I("s_waitcnt lgkmcnt(0)")
    I("s_barrier")
    I(f"s_cmp_eq_u32 {s(sHF)}, 0")
    I("s_cbranch_scc0 B_nopat")
    boxes = [(0, 12), (1, 8), (0, 4), (1, 8), (2, 8), (3, 8)]
    for n, (run, ctr) in enumerate(boxes):
        for x in toep(BX+4*n, 11, 64*run + CEN - ctr): I(x)
        if n == 3: I("s_waitcnt lgkmcnt(4)")
    for x in toep(MK, 11, 64*4 + CEN4 - 15): I(x)
    for x in toep(MK+4, 11, 64*5 + LO5 - 12): I(x)
    I("s_waitcnt lgkmcnt(0)")
    A.label("B_nopat")
    I("s_waitcnt vmcnt(2)")
    stamp(A, 2)
    for r in (vLDT, vLAR, vAIM, vCR, vCI, vDSK):
        I(f"v_lshlrev_b32 {v(r)}, 16, {v(r)}")
    vDT = vLDT
    exp_rbf(A, vDT, vLDT, vT, vT+1, sC)
    exp_rbf(A, vLAR, vLAR, vT+2, vT+3, sC)
    vLR, vFI = vLAR, vAIM
    I(f"v_mul_f32 {v(vLR)}, {v(vLAR)}, {v(vDT)}")
    I(f"v_mul_f32 {v(vFI)}, {v(vAIM)}, {v(vDT)}")
    I(f"v_mul_f32 {v(vLR)}, 0x{f32bits(-LOG2E):08x}, {v(vLR)}")
    I(f"v_mul_f32 {v(vFI)}, 0x{f32bits(INV2PI):08x}, {v(vFI)}")
    I(f"v_add_f32 {v(vDT)}, {v(vDT)}, {v(vDT)}")
    I(f"v_mul_f32 {v(F(0))}, {v(vCR)}, {v(vDT)}")
    I(f"v_mul_f32 {v(F(0)+1)}, {v(vCI)}, {v(vDT)}")
    def anchor(dst, t, tmp):
        tb = f"0x{f32bits(float(t)):08x}"
        if t == 1:
            I(f"v_exp_f32 {v(tmp)}, {v(vLR)}")
            I(f"v_fract_f32 {v(tmp+1)}, {v(vFI)}")
        else:
            I(f"v_mul_f32 {v(tmp)}, {tb}, {v(vLR)}")
            I(f"v_mul_f32 {v(tmp+1)}, {tb}, {v(vFI)}")
            I(f"v_exp_f32 {v(tmp)}, {v(tmp)}")
            I(f"v_fract_f32 {v(tmp+1)}, {v(tmp+1)}")
        I(f"v_cos_f32 {v(dst)}, {v(tmp+1)}")
        I(f"v_sin_f32 {v(dst+1)}, {v(tmp+1)}")
        I(f"v_pk_mul_f32 {v(dst,2)}, {v(dst,2)}, {v(tmp,2)} op_sel_hi:[1,0]")
    anchor(W(1), 1, vT)
    anchor(W(16), 16, vT+2)
    anchor(G(1), 256, vT+4)
    gather(2)
    st = {"pk": 0, "m0": None}
    def emit(row, reg, neg=False):
        t = vPK + (st["pk"] & 3); st["pk"] += 1
        grp = row // 28
        if st["m0"] != grp:
            I(f"s_mov_b32 m0, {s(sM+grp)}"); st["m0"] = grp
        I(f"v_cvt_pk_bf16_f32 {v(t)}, {v(reg)}, {'-' if neg else ''}{v(reg+1)}")
        I(f"ds_write_addtid_b32 {v(t)} offset:{(row % 28)*RS}")
    EW = lambda r: 15 + r
    cmul(A, W(2), W(1), W(1)); emit(EW(1), W(1))
    cmul(A, H(1), W(16), W(16)); emit(0, F(0), True)
    cmul(A, F(1), F(0), W(16))
    cmul(A, G(2), G(1), G(1))
    cmul(A, W(3), W(2), W(1)); emit(EW(2), W(2))
    cmul(A, W(4), W(2), W(2)); emit(1, F(1), True)
    cmul(A, H(2), H(1), H(1))
    cmul(A, F(2), F(0), H(1)); emit(EW(3), W(3))
    cmul(A, F(3), F(1), H(1)); emit(EW(4), W(4))
    cmul(A, G(3), G(2), G(1))
    cmul(A, G(4), G(2), G(2))
    cmul(A, W(8), W(4), W(4)); emit(2, F(2), True)
    cmul(A, H(3), H(2), H(2)); emit(3, F(3), True)
    for r in (5, 6, 7): cmul(A, W(r), W(4), W(r-4))
    emit(EW(8), W(8))
    gather(3)
    for f in range(4):
        cmul(A, F(4+f), F(f), H(2))
        if f < 3: emit(EW(5+f), W(5+f))
    for p in (5, 6, 7):
        cmul(A, G(p), G(4), G(p-4)); emit(4+p-5, F(4+p-5), True)
    emit(7, F(7), True)
    for f in range(8):
        cmul(A, F(8+f), F(f), H(3))
        if f > 0: emit(8+f-1, F(8+f-1), True)
    for r in range(9, 16):
        cmul(A, W(r), W(8), W(r-8))
        if r == 9: emit(15, F(15), True)
        else: emit(EW(r-1), W(r-1))
    emit(EW(15), W(15)); emit(31, G(1))
    prods = []
    for i in range(1, 9): prods.append((31+i, 1, 2*i))
    for p in (2, 3):
        for i in range(1, 5): prods.append((40 + 4*(p-2) + i-1, p, 4*i))
    for p in range(4, 8):
        for i in (1, 2): prods.append((48 + 2*(p-4) + i-1, p, 8*i))
    pend = []
    for n, (row, p, r) in enumerate(prods):
        t = vP + 2*(n & 3)
        cmul(A, t, G(p), W(r))
        pend.append((row, t))
        if len(pend) > 1:
            rw, tt = pend.pop(0); emit(rw, tt)
    for rw, tt in pend: emit(rw, tt)
    stamp(A, 3)
    def ustage():
        I("s_waitcnt vmcnt(0)")
        stamp(A, 4)
        for c in range(4):
            sel = v(vSEL + (c % 2))
            o = c // 2
            t = 156 + 2*c
            I(f"v_perm_b32 {v(t)}, {v(vGA+2+o)}, {v(vGA+o)}, {sel}")
            I(f"v_perm_b32 {v(t+1)}, {v(vGA+6+o)}, {v(vGA+4+o)}, {sel}")
            I(f"ds_write_b32 {v(vUW)}, {v(t)} offset:{c*USZ}")
            I(f"ds_write_b32 {v(vUW+1)}, {v(t+1)} offset:{c*USZ}")
    def wopf(i):
        if i == 0:
            I(f"s_lshl_b32 {s(sT)}, {s(S_J)}, 15")
            I(f"v_lshl_add_u32 v14, v0, 4, {s(sT)}")
        else: I(f"v_add_u32 v14, 4096, v14")
        I(f"global_load_dwordx4 v[236:239], v14, {s(S_WO,2)}")
    I(f"v_lshlrev_b32 {v(vT)}, 5, {v(vB)}")
    I(f"v_lshl_add_u32 {v(vOFF)}, {v(vG)}, 3, {v(vT)}")
    I(f"v_lshl_add_u32 {v(vT)}, {v(vG)}, 4, {v(vT)}")
    I(f"v_add_u32 {v(vLB)}, {s(sUC)}, {v(vT)}")
    I(f"v_lshlrev_b32 {v(vT)}, 5, {v(vB)}")
    I(f"v_lshrrev_b32 {v(vT+1)}, 1, {v(vG)}")
    I(f"v_lshl_add_u32 {v(vT)}, {v(vT+1)}, 4, {v(vT)}")
    I(f"v_and_b32 {v(vT+1)}, 1, {v(vG)}")
    I(f"v_lshl_add_u32 {v(vT)}, {v(vT+1)}, 9, {v(vT)}")
    I(f"s_add_u32 {s(sT)}, {s(sKC)}, {2*536}")
    I(f"v_sub_u32 {v(vKW)}, {s(sT)}, {v(vT)}")
    I(f"v_cmp_eq_u32 vcc, 0, {v(vLANE)}")
    for r in range(1, 4): I(f"v_mov_b32 {v(248+r)}, 0")
    I(f"v_cndmask_b32 v248, 0, {v(vDSK)}, vcc")
    I("s_waitcnt lgkmcnt(0)")
    I("s_barrier")
    stamp(A, 5)
    vFF = 32; vEF = 64; vK = 248
    def ktile_write(k, t):
        for j in range(4): I(f"v_permlane16_swap_b32 {v(k+j)}, {v(k+4+j)}")
        for p in range(4): I(f"v_cvt_pk_bf16_f32 {v(t+p)}, {v(k+7-2*p)}, {v(k+6-2*p)}")
        I(f"ds_write_b128 {v(vKW)}, {v(t,4)}")
        for p in range(3): I(f"v_cvt_pk_bf16_f32 {v(t+4+p)}, {v(k+6-2*p)}, {v(k+5-2*p)}")
        I(f"ds_write_b16 {v(vKW)}, {v(t)} offset:{R1OFF-2}")
        I(f"ds_write_b16_d16_hi {v(vKW)}, {v(t+3)} offset:{R1OFF+12}")
        I(f"ds_write_b96 {v(vKW)}, {v(t+4,3)} offset:{R1OFF}")
    def kphase(ntile):
        loads = []
        for ks in range(8):
            loads.append(f"ds_read_b128 {v(vFF+4*ks,4)}, {v(vFA)} offset:{16*ks}")
            for i in range(ntile):
                loads.append(f"ds_read_b128 {v(vEF+32*i+4*ks,4)}, {v(vE0+i)} offset:{16*ks}")
        per = 1 + ntile
        issued = min(len(loads), 12)
        for x in loads[:issued]: I(x)
        for ks in range(8):
            for i in range(ntile):
                idx = ks*per + 1 + i
                I(f"s_waitcnt lgkmcnt({issued-1-idx})")
                c = "0" if (ks == 0 and (ntile == 1 or i == 1)) else v(vK+4*i,4)
                I(f"v_mfma_f32_16x16x32_bf16 {v(vK+4*i,4)}, {v(vEF+32*i+4*ks,4)}, {v(vFF+4*ks,4)}, {c}")
                while issued < len(loads) and issued - idx <= 12:
                    I(loads[issued]); issued += 1
    touched = set()
    yx = [0]
    def mf(t, a_, b_):
        y = vY + 4*(t ^ yx[0])
        c = v(y,4) if t in touched else "0"
        touched.add(t)
        I(f"v_mfma_f32_16x16x32_bf16 {v(y,4)}, {v(a_,4)}, {v(b_,4)}, {c}")
    I(f"s_cmp_eq_u32 {s(sHF)}, 0")
    A.branch("s_cbranch_scc0 B_waveB")
    kphase(1)
    vLO, vHI, vKT, vPT, vV3, vV4 = 16, 17, 10, 11, 12, 13
    I(f"v_lshlrev_b32 {v(vT)}, 7, {v(vG)}")
    I(f"v_lshl_add_u32 {v(vT+1)}, {v(vB)}, 3, {v(vT)}")
    I(f"v_sub_u32 {v(vT+1)}, {X3OFF + 2*188}, {v(vT+1)}")
    I(f"v_add_u32 {v(vT+2)}, 4, {v(vT+1)}")
    I(f"v_lshl_add_u32 {v(vT+3)}, {v(vB)}, 2, {v(vT)}")
    I(f"v_sub_u32 {v(vT+3)}, {X4OFF + 2*126 + 256}, {v(vT+3)}")
    I(f"v_subrev_u32 {v(vT+4)}, 64, {v(vT+3)}")
    I(f"v_cmp_gt_u32 vcc, 2, {v(vG)}")
    I(f"v_cndmask_b32 {v(vLO)}, {v(vT+3)}, {v(vT+2)}, vcc")
    I(f"v_cndmask_b32 {v(vHI)}, {v(vT+4)}, {v(vT+1)}, vcc")
    I(f"v_add_u32 {v(vLO)}, {s(sKC)}, {v(vLO)}")
    I(f"v_add_u32 {v(vHI)}, {s(sKC)}, {v(vHI)}")
    I(f"v_cvt_pk_bf16_f32 {v(vT)}, {v(vK+1)}, {v(vK)}")
    I(f"v_cvt_pk_bf16_f32 {v(vT+1)}, {v(vK+3)}, {v(vK+2)}")
    I(f"ds_write_b32 {v(vLO)}, {v(vT)}")
    I(f"ds_write_b32 {v(vHI)}, {v(vT+1)}")
    stamp(A, 8)
    ustage()
    I(f"s_add_u32 {s(sT)}, {s(sKC)}, 2")
    I(f"v_add_u32 {v(vKT)}, {s(sT)}, {v(vLT)}")
    I(f"v_lshlrev_b32 {v(vT)}, 5, {v(vG)}")
    I(f"v_lshlrev_b32 {v(vT+1)}, 3, {v(vB)}")
    I(f"v_sub_u32 {v(vT)}, {v(vT)}, {v(vT+1)}")
    I(f"s_add_u32 {s(sT)}, {s(sKC)}, {X3OFF + 120}")
    I(f"v_add_u32 {v(vV3)}, {s(sT)}, {v(vT)}")
    I(f"v_ashrrev_i32 {v(vT)}, 1, {v(vT)}")
    I(f"s_add_u32 {s(sT)}, {s(sKC)}, {X4OFF + 60}")
    I(f"v_add_u32 {v(vV4)}, {s(sT)}, {v(vT)}")
    I("s_waitcnt lgkmcnt(0)")
    I("s_barrier")
    stamp(A, 6)
    I(f"ds_read_b128 {v(UA,4)}, {v(vLB)} offset:{480}")
    I(f"ds_read_b128 {v(UC,4)}, {v(vLB)} offset:{480-16}")
    for k in range(1, 8):
        I(f"ds_read_b128 {v(UA+4*k,4)}, {v(vLB)} offset:{480 + 512*k}")
    I("s_waitcnt lgkmcnt(7)")
    ld = []
    I(f"v_add_u32 {v(vLO)}, 512, {v(vKT)}")
    ld += toep(TP, vLO, 543-16-256)
    ld += toep(TP+4, vKT, 543-16-256)
    ld += toep(TP+8, vKT, 543-16-512)
    I(f"v_mov_b32 {v(vT)}, {s(sKC)}")
    ld.append(f"ds_read_u16 {v(vT+2)}, {v(vT)} offset:{2*32}")
    ld.append(f"ds_read_u16 {v(vT+3)}, {v(vT)} offset:{X3OFF + 2*64}")
    for Dl in (2, 3, 4):
        for ph in range(2):
            d = VV + 4*(2*(Dl-2)+ph)
            o = 128*(4-Dl) + 16*ph
            ld.append(f"ds_read_b64 {v(d,2)}, {v(vV3)} offset:{o}")
            ld.append(f"ds_read_b64 {v(d+2,2)}, {v(vV3)} offset:{o+8}")
    for Dl in (4, 5, 6, 7):
        d = VV + 24 + 4*(Dl-4)
        o = 16*(7-Dl)
        ld.append(f"ds_read2_b32 {v(d,2)}, {v(vV4)} offset0:{o} offset1:{o+1}")
        ld.append(f"ds_read2_b32 {v(d+2,2)}, {v(vV4)} offset0:{o+2} offset1:{o+3}")
    def box(k):
        uc = UC + 4*(k & 1)
        n = 6 if k < 4 else 4
        for t in range(n):
            u = uc if t in (3, 5) else UA+4*k
            I(f"v_mfma_f32_16x16x32_bf16 {v(TM+4*t,4)}, {v(u,4)}, {v(BX+4*t,4)}, 0")
            for _ in range(3):
                if ld: I(ld.pop(0))
    def cvt(k):
        sb = SS + 12*(k & 1)
        S4, S8, S12, S16, Q8, Q16 = (TM+4*t for t in range(6))
        for ph in range(2):
            for cc in range(2):
                r = 2*ph + cc
                I(f"v_cvt_pk_bf16_f32 {v(sb+4*ph+2*cc)}, {v(S16+r)}, {v(S12+r)}")
                I(f"v_cvt_pk_bf16_f32 {v(sb+4*ph+2*cc+1)}, {v(S8+r)}, {v(S4+r)}")
        if k < 4:
            for r in range(4):
                I(f"v_cvt_pk_bf16_f32 {v(sb+8+r)}, {v(Q16+r)}, {v(Q8+r)}")
    def far(k):
        sb = SS + 12*(k & 1)
        for Dl in (2, 3, 4):
            if k + Dl < 8:
                for ph in range(2): mf(k+Dl, sb+4*ph, VV + 4*(2*(Dl-2)+ph))
        if k < 4:
            for Dl in (4, 5, 6, 7):
                if k + Dl < 8: mf(k+Dl, sb+8, VV+24+4*(Dl-4))
    box(0)
    while ld: I(ld.pop(0))
    I(f"ds_read_b128 {v(UC+4,4)}, {v(vLB)} offset:{480-16+512}")
    I("s_waitcnt lgkmcnt(15)")
    I("s_waitcnt lgkmcnt(0)")
    for t in range(8): mf(t, TP, UA+4*t)
    cvt(0)
    I(f"v_lshl_or_b32 {v(vT+2)}, {v(vT+2)}, 16, {v(vT+2)}")
    I(f"v_lshl_or_b32 {v(vT+3)}, {v(vT+3)}, 16, {v(vT+3)}")
    for r in range(4):
        I(f"v_and_or_b32 {v(TP+8+r)}, {v(MK+r)}, {v(vT+2)}, {v(TP+8+r)}")
        I(f"v_and_b32 {v(MK+4+r)}, {v(MK+4+r)}, {v(vT+3)}")
    fill = [(t+1, TP+4, UA+4*t) for t in range(7)] + [(t+2, TP+8, UA+4*t) for t in range(6)] + [(t+4, MK+4, UA+4*t) for t in range(4)]
    for k in range(1, 6):
        I("s_waitcnt lgkmcnt(0)")
        box(k)
        if k < 5: I(f"ds_read_b128 {v(UC+4*((k+1)&1),4)}, {v(vLB)} offset:{480-16+512*(k+1)}")
        far(k-1)
        if k <= 4: wopf(2*k-2); wopf(2*k-1)
        for _ in range(3):
            if fill: mf(*fill.pop(0))
        cvt(k)
    while fill: mf(*fill.pop(0))
    far(5)
    A.branch("s_branch B_epi")
    A.label("B_waveB")
    touched.clear(); yx[0] = 4
    I("s_setprio 1")
    kphase(2)
    ktile_write(vK, 24)
    stamp(A, 8)
    ustage()
    vKA0 = 8
    I(f"s_add_u32 {s(sT)}, {s(sKC)}, 2")
    I(f"v_add_u32 {v(vKA0)}, {s(sT)}, {v(vLT)}")
    NB = 3
    bufB = lambda q: 32 + 40*(q % NB)
    bufA = lambda q: 32 + 40*(q % NB) + 32
    def ldB(q): return [f"ds_read_b128 {v(bufB(q)+4*t,4)}, {v(vLB)} offset:{480 + 512*t - 64*q}" for t in range(8)]
    def ldA(q): return toep(bufA(q), vKA0, 543-16-32*q) + toep(bufA(q)+4, vKA0, 543-16-256-32*q)
    I("s_waitcnt lgkmcnt(0)")
    I("s_barrier")
    stamp(A, 6)
    if PRIOB: I("s_setprio 1")
    stream = []
    for q in range(1, 8): stream += [(q, x) for x in ldA(q) + ldB(q)]
    issued = 0
    def last_idx(q): return max(i for i, (qq, _) in enumerate(stream) if qq == q)
    while issued < 14: I(stream[issued][1]); issued += 1
    for q in range(1, 8):
        if PRIOB and q == PRIOB: I("s_setprio 0")
        I(f"s_waitcnt lgkmcnt({min(15, issued-1-last_idx(q))})")
        seq = [(t, bufA(q), bufB(q)+4*t) for t in range(8)] + [(t+1, bufA(q)+4, bufB(q)+4*t) for t in range(7)]
        for m in seq:
            mf(*m)
            if issued < len(stream) and stream[issued][0] <= q + NB - 1 and issued - last_idx(q) <= 14:
                I(stream[issued][1]); issued += 1
        while q < 7 and issued <= last_idx(q+1):
            I(stream[issued][1]); issued += 1
    A.label("B_epi")
    stamp(A, 7)
    vXA = 6
    I(f"s_lshl_b32 {s(sROT)}, {s(sCH)}, 13")
    I(f"s_lshl_b32 {s(sT)}, {s(sHF)}, 12")
    I(f"s_add_u32 s6, {s(sROT)}, {s(sT)}")
    I(f"v_lshl_add_u32 {v(vXA)}, {v(vLANE)}, 4, s6")
    for i in range(4):
        I(f"ds_write_b128 {v(vXA)}, {v(vY+16+4*i,4)} offset:{1024*i}")
    I(f"v_xor_b32 {v(vXA)}, 4096, {v(vXA)}")
    I(f"s_lshl_b32 {s(sT)}, {s(sHF)}, 11")
    I(f"s_lshl_b32 {s(sROT)}, {s(sD)}, 12")
    I(f"s_add_u32 {s(sROT)}, {s(sROT)}, {s(sT)}")
    I(f"s_add_u32 {s(sROT)}, {s(sROT)}, {WS_BT}")
    I(f"s_add_u32 {s(sBT)}, {s(S_WS)}, {s(sROT)}")
    I(f"s_addc_u32 {s(sBT+1)}, {s(S_WS+1)}, 0")
    I("s_waitcnt lgkmcnt(0)")
    I("s_barrier")
    vX = 48
    for i in range(4):
        I(f"ds_read_b128 {v(vX+4*i,4)}, {v(vXA)} offset:{1024*i}")
    I(f"v_and_b32 {v(vT)}, 1, {v(vG)}")
    I(f"v_mul_u32_u24 {v(vT)}, 504, {v(vT)}")
    I(f"v_add_u32 {v(vT)}, {v(vT)}, {v(vOFF)}")
    for p in range(2):
        o = 64 + 4*p
        for i in (2*p, 2*p+1):
            I(f"s_waitcnt lgkmcnt({3-i})")
            y = vY + 4*i; x = vX + 4*i
            I(f"v_pk_add_f32 {v(y,2)}, {v(y,2)}, {v(x,2)}")
            I(f"v_pk_add_f32 {v(y+2,2)}, {v(y+2,2)}, {v(x+2,2)}")
            I(f"v_cvt_pk_bf16_f32 {v(o+2*(i&1))}, {v(y)}, {v(y+1)}")
            I(f"v_cvt_pk_bf16_f32 {v(o+2*(i&1)+1)}, {v(y+2)}, {v(y+3)}")
        I(f"v_permlane16_swap_b32 {v(o)}, {v(o+2)}")
        I(f"v_permlane16_swap_b32 {v(o+1)}, {v(o+3)}")
        I(f"global_store_dwordx4 {v(vT)}, {v(o,4)}, {s(sBT,2)} offset:{1024*p} sc0 sc1")
    stamp_out(A, 9)
    I("s_endpgm")
```

```python
import sys
from asmlib import *
from k1b import *
import importlib

HEADER = open("gated_mix__linear_attn_block__ssm_conv_s4d__prompt.s.ref").read().split("; Override launch")[0]

def kernel_desc(name, vgpr, sgpr=100, accum=None):
    accum = accum or ((vgpr + 3)//4*4)
    return f""".p2align 6
.amdhsa_kernel {name}
  .amdhsa_next_free_vgpr {vgpr}
  .amdhsa_next_free_sgpr {sgpr}
  .amdhsa_accum_offset {accum}
  .amdhsa_group_segment_fixed_size 0
  .amdhsa_kernarg_size 112
  .amdhsa_user_sgpr_count 2
  .amdhsa_user_sgpr_kernarg_segment_ptr 1
  .amdhsa_system_sgpr_workgroup_id_x 1
.end_amdhsa_kernel
"""

def k1(parts=("A","B")):
    A = Asm(); I = A.I
    A.raw(".globl k1_kernel\n.p2align 10\n.type k1_kernel,@function\nk1_kernel:")
    I("s_cmp_ge_u32 s2, 256")
    I("s_cbranch_scc1 K1_exit")
    import k1b
    if k1b.STAMP:
        I("s_memtime s[72:73]")
        I("s_memrealtime s[92:93]")
    I("s_load_dwordx16 s[16:31], s[0:1], 0")
    I("s_load_dwordx8 s[32:39], s[0:1], 64")
    I("s_load_dwordx4 s[40:43], s[0:1], 96")
    I("s_getpc_b64 s[12:13]")
    A.raw("K1_pc:")
    I("s_bfe_u32 s14, s2, 0x20003")
    I("s_lshl_b32 s14, s14, 13")
    I("v_lshl_add_u32 v2, v0, 4, s14")
    I("s_sub_u32 s12, s12, K1_pc-k1_kernel")
    I("s_subb_u32 s13, s13, 0")
    I("v_min_u32 v2, CODE_END-k1_kernel-16, v2")
    I("global_load_dwordx4 v[252:255], v2, s[12:13]")
    I("v_lshrrev_b32 v1, 6, v0")
    I(f"s_and_b32 {s(S_XCD)}, s2, 7")
    I(f"s_lshr_b32 {s(S_J)}, s2, 3")
    import os
    if os.environ.get("AFIRST"): I(f"s_xor_b32 {s(S_J)}, {s(S_J)}, 16")
    I(f"v_readfirstlane_b32 {s(S_WV)}, v1")
    I(f"s_cmp_ge_u32 {s(S_J)}, 16")
    A.branch("s_cbranch_scc1 K1_A")
    gen_B(A)
    A.label("K1_A")
    import k1a
    k1a.gen_A(A)
    A.label("K1_exit")
    I("s_endpgm")
    return A

def build(parts=("A","B"), with_k2=True, path="gated_mix__linear_attn_block__ssm_conv_s4d__prompt.s"):
    out = HEADER
    out += "; @launch kernel=k1_kernel grid=(256,1,1) block=(512,1,1) lds=163840\n"
    if with_k2:
        import k2
        out += k2.LAUNCH
    out += '.amdgcn_target "amdgcn-amd-amdhsa--gfx950"\n.text\n'
    a1 = k1(parts)
    out += a1.text()
    print("k1 instrs", a1.count, "nops", a1.nops)
    if with_k2:
        a2 = k2.gen()
        out += a2.text()
        print("k2 instrs", a2.count, "nops", a2.nops)
    out += ".p2align 10\nCODE_END:\n"
    out += '.section .rodata,"a"\n'
    out += kernel_desc("k1_kernel", 256)
    if with_k2: out += kernel_desc("k2_kernel", k2.VGPRS)
    open(path, "w").write(out)

if __name__ == "__main__":
    if "stamp" in sys.argv:
        import k1b; k1b.STAMP = True
    if len(sys.argv) > 1 and sys.argv[1] == "B":
        build(("B",), False, "kB.s")
    elif len(sys.argv) > 1 and sys.argv[1] == "AB":
        build(("A","B"), False, "kAB.s")
    elif "out" in sys.argv:
        build(path=sys.argv[sys.argv.index("out")+1])
    elif "stamp" in sys.argv:
        build(path="kS.s")
    else:
        build()
```

```python
from asmlib import *
from k1b import *
import k1b

BTOFF = 65536
RBUF = BTOFF + 8192
ZL = RBUF + 4*3*4096
LDS = ZL + 1024
LAUNCH = f"; @launch kernel=k2_kernel grid=(256,1,1) block=(256,1,1) lds={LDS}\n"
VGPRS = 256
DBGSTAMP = True
LA = 3

def gen():
    A = Asm(); I = A.I
    A.raw(".globl k2_kernel\n.p2align 8\n.type k2_kernel,@function\nk2_kernel:")
    I("s_cmp_ge_u32 s2, 256")
    I("s_cbranch_scc1 K2_exit")
    if k1b.STAMP:
        I("s_memtime s[72:73]")
        I("s_memrealtime s[92:93]")
    I(f"s_load_dwordx2 {s(S_WO,2)}, s[0:1], 16")
    I(f"s_load_dwordx2 {s(S_OUT,2)}, s[0:1], 88")
    I(f"s_load_dwordx2 {s(S_WS,2)}, s[0:1], 104")
    sRB, sCB, sT, sT2, sST, sNT, sWO = 44, 45, 46, 47, 48, 49, 50
    sSRO, sSRB = 52, 56
    sPQ, sAC = 60, 62
    sEPS = 64
    I("v_lshrrev_b32 v1, 6, v0")
    I(f"s_and_b32 {s(sT)}, s2, 7")
    I(f"v_readfirstlane_b32 {s(S_WV)}, v1")
    I(f"s_lshl_b32 {s(sRB)}, {s(sT)}, 2")
    I(f"s_bfe_u32 {s(sT)}, s2, 0x20003")
    I(f"s_add_u32 {s(sRB)}, {s(sRB)}, {s(sT)}")
    I(f"s_lshr_b32 {s(sCB)}, s2, 5")
    I("v_and_b32 v1, 63, v0")
    I(f"s_lshr_b32 {s(sST)}, {s(S_WV)}, 1")
    I(f"s_and_b32 {s(sNT)}, {s(S_WV)}, 1")
    vT = 2
    vOM, vTR1, vGG, vL16, vKA, vWOA, vTR, vBTA, vKS = 7, 8, 9, 10, 11, 12, 13, 14, 15
    vP0, vP1 = 248, 249
    I(f"v_lshlrev_b32 {v(vL16)}, 4, v1")
    I(f"v_lshrrev_b32 {v(vT+1)}, 5, v1")
    I(f"v_mul_u32_u24 {v(vT+2)}, 4352, {v(vT+1)}")
    I(f"v_and_b32 {v(vT)}, 31, v1")
    I(f"v_lshl_add_u32 {v(vKS)}, {v(vT)}, 3, {v(vT+2)}")
    I(f"v_add_u32 {v(vKS)}, 4096, {v(vKS)}")
    I(f"v_lshrrev_b32 {v(vT)}, 3, v1")
    I(f"v_and_b32 {v(vT+2)}, 7, v1")
    I(f"v_bfe_u32 {v(vT+3)}, v1, 4, 1")
    I(f"v_lshlrev_b32 {v(vT+3)}, 2, {v(vT+3)}")
    I(f"v_xor_b32 {v(vT+2)}, {v(vT+2)}, {v(vT+3)}")
    I(f"v_lshlrev_b32 {v(vT+2)}, 4, {v(vT+2)}")
    I(f"v_lshl_add_u32 {v(vWOA)}, {v(vT)}, 10, {v(vT+2)}")
    I(f"s_lshl_b32 {s(sT)}, {s(sST)}, 15")
    I(f"v_add_u32 {v(vP0)}, {s(sT)}, {v(vL16)}")
    I(f"v_xor_b32 {v(vP1)}, 0x8000, {v(vP0)}")
    sKO, sPO, sWOt = 8, 24, 80
    if k1b.STAMP: sWOt = 84
    sSRS = 60
    I(f"s_mul_i32 {s(sT)}, {s(S_WV)}, {2*4352}")
    I(f"s_add_u32 {s(sT)}, {s(sT)}, {WS_ACC}")
    I(f"s_lshl_b32 s6, {s(sRB)}, 16")
    I(f"s_lshl_b32 {s(sT2)}, {s(S_WV)}, 13")
    I(f"s_add_u32 s6, s6, {s(sT2)}")
    I(f"s_lshl_b32 {s(sWO)}, {s(S_WV)}, 17")
    I(f"s_lshl_b32 {s(sT2)}, {s(sCB)}, 7")
    I(f"s_add_u32 {s(sWO)}, {s(sWO)}, {s(sT2)}")
    for h in range(8):
        I(f"s_add_u32 s7, {s(sCB)}, {h}")
        I(f"s_and_b32 s7, s7, 7")
        I(f"s_lshl_b32 {s(sT2)}, s7, 10")
        I(f"s_add_u32 {s(sPO+h)}, s6, {s(sT2)}")
        I(f"s_add_u32 {s(sKO+h)}, {s(sT)}, {s(sT2)}")
        I(f"s_lshl_b32 {s(sT2)}, s7, 14")
        I(f"s_add_u32 {s(sWOt+h)}, {s(sWO)}, {s(sT2)}")
        I(f"s_lshr_b32 s7, s7, 2")
        I(f"s_lshl_b32 s7, s7, 8")
        I(f"s_add_u32 {s(sKO+h)}, {s(sKO+h)}, s7")
    I(f"s_mov_b32 s7, {s(sT)}")
    I(f"s_lshl_b32 m0, {s(S_WV)}, 14")
    I(f"s_mov_b32 {s(sSRO+2)}, 0x80000")
    I(f"s_mov_b32 {s(sSRO+3)}, 0x00020000")
    I(f"s_mov_b32 {s(sSRS+2)}, 0x420000")
    I(f"s_mov_b32 {s(sSRS+3)}, 0x00020000")
    I(f"v_add_u32 {v(vKA)}, 8192, {v(vWOA)}")
    I("s_waitcnt lgkmcnt(0)")
    stamp(A, 1)
    I(f"s_mov_b32 {s(sSRS)}, {s(S_WS)}")
    I(f"s_mov_b32 {s(sSRS+1)}, {s(S_WS+1)}")
    I(f"s_mov_b32 {s(sSRO)}, {s(S_WO)}")
    I(f"s_mov_b32 {s(sSRO+1)}, {s(S_WO+1)}")
    KV = 16
    PQ = 80
    ACC = 144
    NUM = [208, 224]
    WF = 240
    nvm = [0]
    vm = {"n": 0}; vidx = {}
    def kvload(h): return [f"buffer_load_dwordx4 {v(KV+8*h,4)}, {v(vL16)}, {s(sSRS,4)}, {s(sKO+h)} offen"]
    def loads(h):
        L = []
        L.append(f"buffer_load_dwordx4 {v(PQ+8*h,4)}, {v(vP0)}, {s(sSRS,4)}, {s(sPO+h)} offen")
        L.append(f"buffer_load_dwordx4 {v(PQ+8*h+4,4)}, {v(vP1)}, {s(sSRS,4)}, {s(sPO+h)} offen")
        L.append(f"buffer_load_dwordx4 {v(vWOA)}, {s(sSRO,4)}, {s(sWOt+h)} offen lds")
        L.append(f"s_add_u32 m0, m0, 1024")
        L.append(f"s_nop 0")
        L.append(f"buffer_load_dwordx4 {v(vWB)}, {s(sSRO,4)}, {s(sWOt+h)} offen lds")
        L.append(f"s_add_u32 m0, m0, 1024")
        L.append(("done", h))
        return L
    vWB = 7
    I(f"v_mov_b32 {v(vWB)}, {v(vKA)}")
    def emit_vm(L):
        for x in L:
            if isinstance(x, tuple): vidx[x[1]] = vm["n"]; continue
            I(x)
            if x.startswith(("global_load", "buffer_load")): vm["n"] += 1
    emit_vm([f"buffer_load_dwordx2 v[250:251], {v(vKS)}, {s(sSRS,4)}, s7 offen"])
    emit_vm(kvload(0) + kvload(1) + loads(0) + loads(1) + kvload(2) + kvload(3) + loads(2))
    vZW, vZR = 252, 253
    I(f"s_lshl_b32 {s(sT)}, {s(S_WV)}, 8")
    I(f"s_add_u32 {s(sT)}, {s(sT)}, {ZL}")
    I(f"s_lshl_b32 {s(sT2)}, {s(sCB)}, 3")
    I(f"v_subrev_u32 {v(vZW)}, {s(sT2)}, v1")
    I(f"v_and_b32 {v(vZW)}, 63, {v(vZW)}")
    I(f"v_lshl_add_u32 {v(vZW)}, {v(vZW)}, 2, {s(sT)}")
    I(f"v_lshrrev_b32 {v(vZR)}, 4, v1")
    I(f"v_lshl_add_u32 {v(vZR)}, {v(vZR)}, 3, {s(sT)}")
    I(f"v_bfe_u32 {v(vT)}, v1, 2, 2")
    I(f"v_lshrrev_b32 {v(vT+1)}, 5, v1")
    I(f"v_lshl_add_u32 {v(vT)}, {v(vT+1)}, 2, {v(vT)}")
    I(f"v_lshlrev_b32 {v(vT)}, 7, {v(vT)}")
    I(f"v_and_b32 {v(vT+1)}, 1, v1")
    I(f"v_bfe_u32 {v(vT+2)}, v1, 4, 1")
    I(f"v_lshl_add_u32 {v(vT+1)}, {v(vT+1)}, 1, {v(vT+2)}")
    I(f"v_bfe_u32 {v(vT+2)}, v1, 3, 1")
    I(f"v_xor_b32 {v(vT+2)}, {s(sNT)}, {v(vT+2)}")
    I(f"v_lshl_add_u32 {v(vT+1)}, {v(vT+2)}, 2, {v(vT+1)}")
    I(f"v_lshl_add_u32 {v(vT)}, {v(vT+1)}, 4, {v(vT)}")
    I(f"v_bfe_u32 {v(vT+2)}, v1, 1, 1")
    I(f"v_lshl_add_u32 {v(vT)}, {v(vT+2)}, 3, {v(vT)}")
    I(f"s_lshl_b32 {s(sT)}, {s(S_WV)}, 14")
    I(f"v_add_u32 {v(vTR)}, {s(sT)}, {v(vT)}")
    I(f"v_xor_b32 {v(vTR1)}, 64, {v(vTR)}")
    I(f"s_mov_b32 {s(sEPS)}, 0x{f32bits(1e-6):08x}")
    I(f"v_lshrrev_b32 {v(vT)}, 2, v1")
    I(f"v_and_b32 {v(vT+2)}, 3, v1")
    I(f"v_lshlrev_b32 {v(vT+2)}, 4, {v(vT+2)}")
    I(f"v_lshl_add_u32 {v(vBTA)}, {v(vT)}, 12, {v(vT+2)}")
    I(f"s_add_u32 {s(sSRB)}, {s(S_WS)}, {WS_BT}")
    I(f"s_addc_u32 {s(sSRB+1)}, {s(S_WS+1)}, 0")
    I(f"s_mov_b32 {s(sSRB+2)}, 0x200000")
    I(f"s_mov_b32 {s(sSRB+3)}, 0x00020000")
    sBO, sGO = 66, 67
    I(f"s_lshl_b32 {s(sBO)}, {s(sCB)}, 18")
    I(f"s_lshl_b32 {s(sT2)}, {s(sNT)}, 17")
    I(f"s_add_u32 {s(sBO)}, {s(sBO)}, {s(sT2)}")
    I(f"s_lshl_b32 {s(sT2)}, {s(sRB)}, 7")
    I(f"s_add_u32 {s(sBO)}, {s(sBO)}, {s(sT2)}")
    I(f"s_lshl_b32 {s(sT2)}, {s(sST)}, 6")
    I(f"s_add_u32 {s(sBO)}, {s(sBO)}, {s(sT2)}")
    I(f"s_lshl_b32 {s(sGO)}, {s(sRB)}, 8")
    I(f"s_lshl_b32 {s(sT2)}, {s(sST)}, 7")
    I(f"s_add_u32 {s(sGO)}, {s(sGO)}, {s(sT2)}")
    I(f"s_add_u32 {s(sGO)}, {s(sGO)}, {WS_G}")
    I(f"v_and_b32 {v(vGG)}, 31, v1")
    I(f"v_lshl_add_u32 {v(vGG)}, {v(vGG)}, 2, {s(sGO)}")
    def extra_loads():
        L = []
        L.append(f"s_lshl_b32 {s(sT2)}, {s(S_WV)}, 11")
        L.append(f"s_add_u32 m0, {s(sT2)}, {BTOFF}")
        L.append(f"s_add_u32 s6, {s(sBO)}, 0x10000")
        L.append(f"buffer_load_dwordx4 {v(vBTA)}, {s(sSRB,4)}, {s(sBO)} offen lds")
        L.append(f"s_add_u32 m0, m0, 1024")
        L.append(f"global_load_dword {v(vGG)}, {v(vGG)}, {s(S_WS,2)}")
        L.append(f"buffer_load_dwordx4 {v(vBTA)}, {s(sSRB,4)}, s6 offen lds")
        return L
    def norm_list(h, st):
        n = NUM[st]; o = PQ + 8*h + 4*st
        L = [f"v_add_f32 {v(n+8)}, {s(sEPS)}, {v(n+8)}", f"v_rcp_f32 {v(n+8)}, {v(n+8)}"]
        for p in range(4): L.append(f"v_pk_mul_f32 {v(n+2*p,2)}, {v(n+2*p,2)}, {v(n+8,2)} op_sel_hi:[1,0]")
        for p in range(4): L.append(f"v_cvt_pk_bf16_f32 {v(o+p)}, {v(n+2*p)}, {v(n+2*p+1)}")
        return L
    def proj(h, st, nt):
        o = PQ + 8*h + 4*st
        w = KV+8*h+4 if nt == 0 else WF + 4*(h & 1)
        d = ACC + 16*(2*st+nt)
        return f"v_mfma_f32_32x32x16_bf16 {v(d,16)}, {v(w,4)}, {v(o,4)}, {'0' if h == 0 else v(d,16)}"
    for t in range(1, 4):
        I(f"s_xor_b32 {s(sT)}, {s(S_WV)}, {t}")
        I(f"s_mul_i32 {s(sT)}, {s(sT)}, {3*4096}")
        I(f"s_add_u32 {s(sT)}, {s(sT)}, {RBUF}")
        I(f"v_add_u32 {v(vT+t)}, {s(sT)}, {v(vL16)}")
    I(f"v_bfe_u32 {v(vT)}, v1, 2, 2")
    I(f"v_lshrrev_b32 {v(vKA)}, 5, v1")
    I(f"v_lshl_add_u32 {v(vT)}, {v(vKA)}, 4, {v(vT)}")
    I(f"v_lshlrev_b32 {v(vT)}, 6, {v(vT)}")
    I(f"v_bfe_u32 v6, v1, 4, 1")
    I(f"v_lshl_add_u32 {v(vT)}, v6, 5, {v(vT)}")
    I(f"v_and_b32 v6, 3, v1")
    I(f"v_lshl_add_u32 {v(vT)}, v6, 3, {v(vT)}")
    I(f"s_lshl_b32 {s(sT)}, {s(S_WV)}, 11")
    I(f"s_add_u32 {s(sT)}, {s(sT)}, {BTOFF}")
    I(f"v_add_u32 {v(vT)}, {s(sT)}, {v(vT)}")
    I(f"s_mul_i32 {s(sT)}, {s(S_WV)}, {3*4096}")
    I(f"s_add_u32 {s(sT)}, {s(sT)}, {RBUF}")
    I(f"v_add_u32 v6, {s(sT)}, {v(vL16)}")
    vOA = vKS
    I(f"v_and_b32 {v(vOA)}, 31, v1")
    I(f"v_lshlrev_b32 {v(vKA)}, 5, {v(vKA)}")
    I(f"v_lshl_add_u32 {v(vOA)}, {v(vOA)}, 10, {v(vKA)}")
    I(f"s_lshl_b32 {s(sT)}, {s(sRB)}, 16")
    I(f"s_lshl_b32 {s(sT2)}, {s(sST)}, 15")
    I(f"s_add_u32 {s(sT)}, {s(sT)}, {s(sT2)}")
    I(f"s_lshl_b32 {s(sT2)}, {s(sCB)}, 7")
    I(f"s_add_u32 {s(sT)}, {s(sT)}, {s(sT2)}")
    I(f"s_lshl_b32 {s(sT2)}, {s(sNT)}, 6")
    I(f"s_add_u32 {s(sT)}, {s(sT)}, {s(sT2)}")
    I(f"v_add_u32 {v(vOA)}, {s(sT)}, {v(vOA)}")
    NL = 4
    I(f"s_waitcnt vmcnt({vm['n'] - 1})")
    I("v_cvt_pk_bf16_f32 v250, v250, v251")
    I(f"ds_write_b32 {v(vZW)}, v250")
    q = LQ(A); q.n = 1
    ZT = [250, 254]
    def zread(h): q.issue(f"ds_read_b64 {v(ZT[h & 1],2)}, {v(vZR)} offset:{32*h}", ("z", h))
    def prep(h):
        f = KV + 8*h; w1 = WF + 4*(h & 1); zt = ZT[h & 1]
        L = []
        L.append(lambda: I(f"s_waitcnt vmcnt({vm['n'] - vidx[h]})"))
        L.append(lambda: I(f"v_cvt_pk_bf16_f32 {v(f)}, {v(f)}, {v(f+1)}"))
        L.append(lambda: I(f"v_cvt_pk_bf16_f32 {v(f+1)}, {v(f+2)}, {v(f+3)}"))
        L.append(lambda: (q.need(("z", h)), I(f"v_mov_b32 {v(f+2)}, {v(zt)}")))
        L.append(lambda: I(f"v_mov_b32 {v(f+3)}, {v(zt+1)}"))
        L.append(lambda: q.issue(f"ds_read_b64_tr_b16 {v(f+4,2)}, {v(vTR)} offset:{2048*h}"))
        L.append(lambda: q.issue(f"ds_read_b64_tr_b16 {v(f+6,2)}, {v(vTR)} offset:{2048*h+1024}", ("w0", h)))
        L.append(lambda: I(f"v_permlane16_swap_b32 {v(f)}, {v(f+2)}"))
        L.append(lambda: I(f"v_permlane16_swap_b32 {v(f+1)}, {v(f+3)}"))
        if h + 1 < 8: L.append(lambda: zread(h+1))
        return L
    def w1read(h):
        w1 = WF + 4*(h & 1)
        return [lambda: q.issue(f"ds_read_b64_tr_b16 {v(w1,2)}, {v(vTR1)} offset:{2048*h}"),
                lambda: q.issue(f"ds_read_b64_tr_b16 {v(w1+2,2)}, {v(vTR1)} offset:{2048*h+1024}", ("w1", h))]
    def run(L):
        for x in L:
            if isinstance(x, (str, tuple)): emit_vm([x])
            else: x()
    zread(0)
    run(prep(0))
    stamp(A, 2)
    if k1b.STAMP: q.reset()
    for h in range(8):
        ld = loads(h+LA) if h + LA < 8 else (extra_loads() if h + LA == 8 else [])
        if h + 4 < 8: ld = kvload(h+4) + ld
        n0, n1 = norm_list(h, 0), norm_list(h, 1)
        pr = prep(h+1) if h < 7 else []
        hl = (len(ld)+1)//2
        I(f"v_mfma_f32_32x32x16_bf16 {v(NUM[0],16)}, {v(KV+8*h,4)}, {v(PQ+8*h,4)}, 0")
        run(ld[:hl])
        I(f"v_mfma_f32_32x32x16_bf16 {v(NUM[1],16)}, {v(KV+8*h,4)}, {v(PQ+8*h+4,4)}, 0")
        run(ld[hl:] + w1read(h))
        if h > 0:
            q.need(("w0", h-1)); I(proj(h-1, 0, 0))
            run(n0[:6])
            q.need(("w1", h-1)); I(proj(h-1, 0, 1))
            run(n0[6:] + n1[:2])
            I(proj(h-1, 1, 0))
            run(n1[2:8])
            I(proj(h-1, 1, 1))
            run(n1[8:] + pr)
        else:
            run(n0 + n1 + pr)
    q.drain()
    I("s_waitcnt vmcnt(0)")
    BB = 16; BF = 32
    for j in range(4):
        I(f"ds_read_b64_tr_b16 {v(BB+2*j,2)}, {v(vT)} offset:{256*j}")
    I(proj(7, 0, 1))
    I(f"v_sub_f32 {v(vOM)}, 1.0, {v(vGG)}")
    I(f"v_cvt_pk_bf16_f32 {v(vOM)}, {v(vOM)}, {v(vOM)}")
    I(f"v_lshlrev_b32 {v(vOM+1)}, 16, {v(vOM)}")
    I(proj(7, 1, 0))
    I("s_waitcnt lgkmcnt(0)")
    ub = []
    for p in range(8):
        ub += [f"v_lshlrev_b32 {v(BF+2*p)}, 16, {v(BB+p)}", f"v_and_b32 {v(BF+2*p+1)}, 0xffff0000, {v(BB+p)}"]
    for x in ub[:5]: I(x)
    I(proj(7, 1, 1))
    for x in ub[5:10]: I(x)
    I(proj(7, 0, 0))
    stamp(A, 3)
    rest = ub[10:] + [f"v_pk_mul_f32 {v(BF+2*p,2)}, {v(BF+2*p,2)}, {v(vOM+1,2)} op_sel_hi:[1,0]" for p in range(8)]
    for t in range(1, 4):
        for k in range(4):
            I(f"ds_write_b128 {v(vT+t)}, {v(ACC+16*t+4*k,4)} offset:{4096*(t-1)+1024*k}")
            if rest: I(rest.pop(0))
    for x in rest: I(x)
    I("s_waitcnt lgkmcnt(0)")
    I("s_barrier")
    R = 80
    for k in range(4):
        for w in range(3):
            I(f"ds_read_b128 {v(R+16*w+4*k,4)}, v6 offset:{4096*w+1024*k}")
    for k in range(4):
        I(f"s_waitcnt lgkmcnt({9-3*k})")
        for hh in range(2):
            r = 4*k + 2*hh
            I(f"v_pk_add_f32 {v(ACC+r,2)}, {v(ACC+r,2)}, {v(R+r,2)}")
            I(f"v_pk_add_f32 {v(R+16+r,2)}, {v(R+16+r,2)}, {v(R+32+r,2)}")
        for hh in range(2):
            r = 4*k + 2*hh
            I(f"v_pk_add_f32 {v(ACC+r,2)}, {v(ACC+r,2)}, {v(R+16+r,2)}")
        for hh in range(2):
            r = 4*k + 2*hh
            I(f"v_pk_fma_f32 {v(ACC+r,2)}, {v(ACC+r,2)}, {v(vOM+1,2)}, {v(BF+r,2)} op_sel:[0,1,0] op_sel_hi:[1,1,1]")
        for hh in range(2):
            r = 4*k + 2*hh
            I(f"v_cvt_pk_bf16_f32 {v(BB+r//2)}, {v(ACC+r)}, {v(ACC+r+1)}")
        if k == 1: I(f"global_store_dwordx4 {v(vOA)}, {v(BB,4)}, {s(S_OUT,2)}")
        if k == 3: I(f"global_store_dwordx4 {v(vOA)}, {v(BB+4,4)}, {s(S_OUT,2)} offset:16")
    if k1b.STAMP:
        stamp(A, 4)
        I("s_add_u32 s2, s2, 256")
        stamp_out(A, 5, 250)
    A.label("K2_exit")
    I("s_endpgm")
    return A
```

```python
from asmlib import *
from k1b import *
import k1b

RG = 16384
XREG = [0,1,2,3,4,5,6,8]
WREG = [7,8,9,7,8,9,7,9]
QOFF = [7*RG, 7*RG+8192, 9*RG, 9*RG+8192, 7*RG, 7*RG+8192, 4*RG, 4*RG+8192]
QORD = [0,4,1,5,2,6,3,7]
RED = 0
REDSZ = 4352
PERM = [0,2,4,6,1,3,5,7]
import os
LATE1 = int(os.environ.get('LATE1', 0))
import os
B9POS, B10POS, B11I = eval(os.environ.get('BPOS', '30, 90, 22'))

def phi_list(acc, out, tmp, sL, sEPS):
    L = []
    for p in range(8): L.append(f"v_pk_mul_f32 {v(tmp+2*p,2)}, {v(acc+2*p,2)}, {s(sL,2)}")
    for r in range(16):
        L.append(f"v_exp_f32 {v(tmp+r)}, {v(tmp+r)} clamp")
        L.append(f"v_max_f32 {v(acc+r)}, {s(sEPS)}, {v(acc+r)}")
    for p in range(8): L.append(f"v_pk_add_f32 {v(acc+2*p,2)}, {v(acc+2*p,2)}, {v(tmp+2*p,2)}")
    for p in range(8): L.append(f"v_cvt_pk_bf16_f32 {v(out+p)}, {v(acc+2*p)}, {v(acc+2*p+1)}")
    return L

def gen_A(A):
    I = A.I
    sRB, sHQ, sROT, sT, sT2, sLW = 44, 45, 46, 47, 48, 49
    sRH, sHP = 50, 51
    sSRX, sSRW, sSRA = 52, 56, 60
    sL, sEPS = 64, 66
    sCX, sCW = 8, 9
    sPQ = 70
    sMX, sMW = 15, 7
    sA, sB = 10, 11
    vX0, vX1, vW = 2, 3, 9
    vT = 10
    vXA = 16
    vWA = 28
    I(f"s_sub_u32 {s(sT)}, {s(S_J)}, 16")
    I(f"s_lshr_b32 {s(sRB)}, {s(sT)}, 2")
    I(f"s_and_b32 {s(sHQ)}, {s(sT)}, 3")
    I(f"s_add_u32 {s(sROT)}, {s(sRB)}, {s(sHQ)}")
    I(f"s_and_b32 {s(sROT)}, {s(sROT)}, 3")
    I(f"s_lshl_b32 {s(sROT)}, {s(sROT)}, 1")
    I(f"s_lshr_b32 {s(sT)}, {s(S_XCD)}, 1")
    I(f"s_lshl_b32 {s(sT)}, {s(sT)}, 2")
    I(f"s_add_u32 {s(sRB)}, {s(sRB)}, {s(sT)}")
    I(f"s_and_b32 {s(sT)}, {s(S_XCD)}, 1")
    I(f"s_lshl_b32 {s(sT)}, {s(sT)}, 2")
    I(f"s_add_u32 {s(sHQ)}, {s(sHQ)}, {s(sT)}")
    I("v_and_b32 v1, 63, v0")
    I(f"s_and_b32 {s(sLW)}, {s(S_WV)}, 3")
    I(f"v_lshrrev_b32 {v(vT)}, 3, v1")
    I(f"v_and_b32 {v(vT+1)}, 7, v1")
    I(f"v_lshrrev_b32 {v(vT+2)}, 4, v1")
    I(f"v_xor_b32 {v(vT+3)}, {v(vT+1)}, {v(vT+2)}")
    I(f"v_lshlrev_b32 {v(vT+3)}, 4, {v(vT+3)}")
    I(f"v_lshl_add_u32 {v(vX0)}, {v(vT)}, 10, {v(vT+3)}")
    I(f"v_xor_b32 {v(vX1)}, 64, {v(vX0)}")
    I(f"v_and_b32 {v(vT+2)}, 1, {v(vT+2)}")
    I(f"v_lshlrev_b32 {v(vT+2)}, 2, {v(vT+2)}")
    I(f"v_xor_b32 {v(vT+3)}, {v(vT+1)}, {v(vT+2)}")
    I(f"v_lshlrev_b32 {v(vT+3)}, 4, {v(vT+3)}")
    I(f"v_mul_u32_u24 {v(vW)}, 3072, {v(vT)}")
    I(f"v_add_u32 {v(vW)}, {v(vW)}, {v(vT+3)}")
    I(f"s_lshl_b32 {s(sCX)}, {s(sRB)}, 17")
    I(f"s_lshl_b32 {s(sT)}, {s(sLW)}, 15")
    I(f"s_add_u32 {s(sCX)}, {s(sCX)}, {s(sT)}")
    I(f"s_mul_i32 {s(sCW)}, {s(sLW)}, {16*3072}")
    I(f"s_lshl_b32 {s(sT)}, {s(sHQ)}, 7")
    I(f"s_add_u32 {s(sCW)}, {s(sCW)}, {s(sT)}")
    I(f"s_lshl_b32 {s(sMX)}, {s(sLW)}, 12")
    I(f"s_lshl_b32 {s(sMW)}, {s(sLW)}, 11")
    I(f"s_mov_b32 {s(sSRX+2)}, 0x200000")
    I(f"s_mov_b32 {s(sSRX+3)}, 0x00020000")
    I(f"s_mov_b32 {s(sSRW+2)}, 0x180000")
    I(f"s_mov_b32 {s(sSRW+3)}, 0x00020000")
    I(f"s_cmp_lt_u32 {s(S_WV)}, 4")
    A.branch("s_cbranch_scc1 A_setA")

    def srds():
        I(f"s_mov_b32 {s(sSRX)}, {s(S_X)}")
        I(f"s_mov_b32 {s(sSRX+1)}, {s(S_X+1)}")
        I(f"s_mov_b32 {s(sSRW)}, {s(S_WQKV)}")
        I(f"s_mov_b32 {s(sSRW+1)}, {s(S_WQKV+1)}")
    def chunk(n):
        I(f"s_add_u32 s12, {s(sROT)}, {PERM[n]}")
        I(f"s_and_b32 s12, s12, 7")
    def issue_x(n):
        I(f"s_lshl_b32 {s(sA)}, s12, 7")
        I(f"s_add_u32 m0, {s(sMX)}, {XREG[n]*RG}")
        I(f"s_add_u32 {s(sA)}, {s(sA)}, {s(sCX)}")
        for i in range(4):
            if i:
                I(f"s_add_u32 m0, m0, 1024"); I(f"s_add_u32 {s(sA)}, {s(sA)}, 8192")
            I(f"buffer_load_dwordx4 {v(vX1 if i & 1 else vX0)}, {s(sSRX,4)}, {s(sA)} offen lds")
    def issue_w(parts):
        I(f"s_mul_i32 {s(sB)}, s12, {64*3072}")
        I(f"s_add_u32 {s(sB)}, {s(sB)}, {s(sCW)}")
        for col, lds in parts:
            for h in range(2):
                I(f"s_add_u32 m0, {s(sMW)}, {lds + 1024*h}")
                I(f"s_add_u32 {s(sA)}, {s(sB)}, {col + h*8*3072}")
                I(f"buffer_load_dwordx4 {v(vW)}, {s(sSRW,4)}, {s(sA)} offen lds")
    def kvparts(n): return [(1024, WREG[n]*RG), (2048, WREG[n]*RG + 8192)]
    def frag_addrs():
        I(f"s_lshr_b32 {s(sRH)}, {s(sLW)}, 1")
        I(f"s_and_b32 {s(sHP)}, {s(sLW)}, 1")
        I(f"v_and_b32 {v(vT)}, 31, v1")
        I(f"v_lshrrev_b32 {v(vT+1)}, 5, v1")
        I(f"v_bfe_u32 {v(vT+2)}, {v(vT)}, 1, 3")
        I(f"v_xor_b32 {v(vT+2)}, {v(vT+2)}, {v(vT+1)}")
        I(f"s_lshl_b32 {s(sT)}, {s(sRH)}, 13")
        I(f"v_lshl_add_u32 {v(vT+3)}, {v(vT)}, 7, {s(sT)}")
        for ks in range(4):
            I(f"v_xor_b32 {v(vT+4)}, {2*ks}, {v(vT+2)}")
            I(f"v_lshl_add_u32 {v(vXA+ks)}, {v(vT+4)}, 4, {v(vT+3)}")
            I(f"v_add_u32 {v(vXA+4+ks)}, 0x10000, {v(vXA+ks)}")
            I(f"v_add_u32 {v(vXA+8+ks)}, 0x20000, {v(vXA+ks)}")
        I(f"v_bfe_u32 {v(vT)}, v1, 2, 2")
        I(f"v_lshl_add_u32 {v(vT+2)}, {v(vT+1)}, 3, {v(vT)}")
        I(f"v_lshlrev_b32 {v(vT+2)}, 7, {v(vT+2)}")
        I(f"v_bfe_u32 {v(vT+3)}, v1, 4, 1")
        I(f"v_bfe_u32 {v(vT+4)}, v1, 1, 1")
        I(f"v_lshl_add_u32 {v(vT+3)}, {v(vT+3)}, 1, {v(vT+4)}")
        I(f"v_bfe_u32 {v(vT+4)}, v1, 3, 1")
        I(f"v_xor_b32 {v(vT+4)}, {s(sHP)}, {v(vT+4)}")
        I(f"v_lshl_add_u32 {v(vT+3)}, {v(vT+4)}, 2, {v(vT+3)}")
        I(f"v_lshl_add_u32 {v(vT+2)}, {v(vT+3)}, 4, {v(vT+2)}")
        I(f"v_and_b32 {v(vT+4)}, 1, v1")
        I(f"v_lshl_add_u32 {v(vWA)}, {v(vT+4)}, 3, {v(vT+2)}")
        I(f"v_add_u32 {v(vWA+1)}, {7*RG}, {v(vWA)}")
        I(f"v_add_u32 {v(vWA)}, {4*RG}, {v(vWA)}")
        I(f"s_mov_b32 {s(sL)}, 0x{f32bits(LOG2E):08x}")
        I(f"s_mov_b32 {s(sL+1)}, 0x{f32bits(LOG2E):08x}")
        I(f"s_mov_b32 {s(sEPS)}, 0x{f32bits(1e-6):08x}")
    def xrd(dst, n, ks, rt):
        off = XREG[n]*RG + 4096*rt
        return f"ds_read_b128 {v(dst,4)}, {v(vXA + 4*(off >> 16) + ks)} offset:{off & 0xffff}"
    def wrd(dst, base, ks, h):
        off = base + 2048*ks + 512*h
        if off >= 7*RG: return f"ds_read_b64_tr_b16 {v(dst,2)}, {v(vWA+1)} offset:{off - 7*RG}"
        return f"ds_read_b64_tr_b16 {v(dst,2)}, {v(vWA)} offset:{off - 4*RG}"

    I("s_waitcnt lgkmcnt(0)")
    stamp(A, 1)
    srds()
    chunk(0); issue_w(kvparts(0)); issue_x(0)
    frag_addrs()
    vGA, vG16 = 30, 33
    GWF, GXF, GACC = 128, 160, 164
    QACC = 64
    I(f"v_and_b32 {v(vT)}, 15, v1")
    I(f"s_lshl_b32 {s(sT)}, {s(sHQ)}, 4")
    I(f"v_add_u32 {v(vT)}, {s(sT)}, {v(vT)}")
    I(f"v_lshrrev_b32 {v(vT+1)}, 4, v1")
    I(f"v_bfe_u32 {v(vT+2)}, {v(vT)}, 1, 3")
    I(f"v_xor_b32 {v(vT+2)}, {v(vT+2)}, {v(vT+1)}")
    I(f"v_lshlrev_b32 {v(vT+2)}, 4, {v(vT+2)}")
    I(f"v_lshl_add_u32 {v(vGA)}, {v(vT)}, 7, {v(vT+2)}")
    I(f"s_lshl_b32 {s(sT)}, {s(sHP)}, 6")
    I(f"v_xor_b32 {v(vGA)}, {s(sT)}, {v(vGA)}")
    I(f"v_add_u32 {v(vGA+1)}, 0x10000, {v(vGA)}")
    I(f"v_add_u32 {v(vGA+2)}, 0x20000, {v(vGA)}")
    I(f"v_lshlrev_b32 {v(vG16)}, 4, {v(vT+1)}")
    I(f"v_add_u32 {v(vT+3)}, {s(sT)}, {v(vG16)}")
    for r in range(32): I(f"v_mov_b32 {v(QACC+r)}, {s(sEPS)}")
    chunk(1); issue_w(kvparts(1))
    if not LATE1: issue_x(1)
    nv = 12 if LATE1 else 16
    land = {0: 8, 1: 16}
    def gwload(n):
        I(f"s_lshl_b32 {s(sA)}, s12, 7")
        I(f"v_add_u32 {v(vT)}, {s(sA)}, {v(vT+3)}")
        I(f"global_load_dwordx4 {v(GWF+4*n,4)}, {v(vT)}, {s(S_GW,2)}")
    gl = {}
    for n in range(8):
        I(f"s_waitcnt vmcnt({nv - land[n]})")
        I("s_barrier")
        if n == 0:
            if LATE1:
                chunk(1); issue_x(1); nv += 4
            for m in range(2):
                chunk(m); gwload(m); nv += 1; gl[m] = nv
        if n + 2 <= 6:
            chunk(n+2); issue_w(kvparts(n+2)); issue_x(n+2); nv += 8; land[n+2] = nv
            gwload(n+2); nv += 1; gl[n+2] = nv
        elif n == 5:
            chunk(7); issue_x(7); nv += 4
            gwload(7); nv += 1; gl[7] = nv
        elif n == 6:
            chunk(7); issue_w(kvparts(7)); nv += 4; land[7] = nv
        elif n == 7:
            for m in range(2):
                chunk(QORD[m]); issue_w([(0, QOFF[m])]); nv += 2
        if n in (5, 6, 7):
            ms = {5: (0, 1), 6: (2, 3, 4), 7: (5, 6)}[n]
            for k, m in enumerate(ms):
                off = XREG[m]*RG
                I(f"ds_read_b128 {v(216+4*k,4)}, {v(vGA + (off >> 16))} offset:{off & 0xffff}")
            I(f"s_waitcnt vmcnt({nv - gl[ms[-1]]}) lgkmcnt(0)")
            for k, m in enumerate(ms):
                I(f"v_mfma_f32_16x16x32_bf16 {v(GACC,4)}, {v(216+4*k,4)}, {v(GWF+4*m,4)}, {'0' if m == 0 else v(GACC,4)}")
    off = XREG[7]*RG
    I(f"ds_read_b128 {v(GXF,4)}, {v(vGA + (off >> 16))} offset:{off & 0xffff}")
    I(f"s_lshl_b32 {s(sT)}, {s(sRB)}, 2")
    I(f"s_lshl_b32 {s(sT2)}, {s(sRH)}, 1")
    I(f"s_add_u32 {s(sT)}, {s(sT)}, {s(sT2)}")
    I(f"s_lshl_b32 {s(sT)}, {s(sT)}, 5")
    I(f"s_lshl_b32 {s(sT2)}, {s(sHQ)}, 2")
    I(f"s_add_u32 {s(sT)}, {s(sT)}, {s(sT2)}")
    I(f"s_lshl_b32 {s(sT2)}, {s(sHP)}, 1")
    I(f"s_add_u32 {s(sT)}, {s(sT)}, {s(sT2)}")
    I(f"s_lshl_b32 {s(sT)}, {s(sT)}, 10")
    I(f"s_add_u32 {s(sPQ)}, {s(S_WS)}, {s(sT)}")
    I(f"s_addc_u32 {s(sPQ+1)}, {s(S_WS+1)}, 0")
    I(f"v_lshlrev_b32 v2, 4, v1")
    I(f"v_add_u32 v3, 0x8000, v2")
    I("s_waitcnt lgkmcnt(0)")
    I(f"v_mfma_f32_16x16x32_bf16 {v(GACC,4)}, {v(GXF,4)}, {v(GWF+28,4)}, {v(GACC,4)}")
    q = LQ(A)
    NS = 4
    QX = lambda i: 168 + 12*(i % NS)
    def qx(i, rt): q.issue(xrd(QX(i)+4*rt, QORD[i//4], i % 4, rt), ("x", i, rt))
    def qw(i, h): q.issue(wrd(QX(i)+8+2*h, QOFF[i//4], i % 4, h), ("w", i))
    for i in range(3):
        qx(i, 0); qx(i, 1)
    I("s_waitcnt vmcnt(0)")
    I("s_barrier")
    stamp(A, 3)
    if k1b.STAMP: q.reset()
    wnext = 0
    def wlimit(i):
        return state["lim"]
    state = {"lim": 8}
    for i in range(3):
        qw(i, 0); qw(i, 1)
    wnext = 3
    for i in range(32):
        for rt in range(2):
            q.need(("w", i), ("x", i, rt))
            I(f"v_mfma_f32_32x32x16_bf16 {v(QACC+16*rt,16)}, {v(QX(i)+8,4)}, {v(QX(i)+4*rt,4)}, {v(QACC+16*rt,16)}")
            if i == 5 and rt == 0:
                q.need(("w", 7), ("x", 7, 1))
                I("s_barrier"); state["lim"] = 16
                q.issue(f"ds_write_b128 {v(vT+3)}, {v(GACC,4)} offset:{RED+2*REDSZ}", "gl")
            if i == 13 and rt == 0:
                q.need("gl")
                I("s_barrier"); state["lim"] = 32
            if i == B11I and rt == 0:
                I("s_barrier")
            j = i + 3
            if j < 32:
                qx(j, rt)
                assert j < state["lim"], (i, rt)
                qw(j, rt)
    stamp(A, 4)
    for x in phi_list(QACC, 32, 96, sL, sEPS): I(x)
    I(f"global_store_dwordx4 v2, v[32:35], {s(sPQ,2)} sc0 sc1")
    I(f"global_store_dwordx4 v2, v[36:39], {s(sPQ,2)} offset:1024 sc0 sc1")
    for x in phi_list(QACC+16, 40, 96, sL, sEPS): I(x)
    I(f"global_store_dwordx4 v3, v[40:43], {s(sPQ,2)} sc0 sc1")
    I(f"global_store_dwordx4 v3, v[44:47], {s(sPQ,2)} offset:1024 sc0 sc1")
    stamp(A, 5)
    stamp_out(A, 9)
    I("s_endpgm")

    A.label("A_setA")
    frag_addrs()
    ACC = 64
    K = lambda rt: ACC + 16*rt
    V = lambda rt: ACC + 32 + 16*rt
    FR = lambda i: 128 + 16*(i % 4)
    I("s_waitcnt lgkmcnt(0)")
    stamp(A, 1)
    srds()
    I(f"s_mul_i32 {s(sT)}, {s(sHQ)}, {REDSZ}")
    I(f"s_add_u32 {s(sT)}, {s(sT)}, {WS_ACC}")
    I(f"s_add_u32 {s(sSRA)}, {s(S_WS)}, {s(sT)}")
    I(f"s_addc_u32 {s(sSRA+1)}, {s(S_WS+1)}, 0")
    I(f"s_mov_b32 {s(sSRA+2)}, {REDSZ}")
    I(f"s_mov_b32 {s(sSRA+3)}, 0x00020000")
    I(f"s_lshl_b32 {s(sT)}, {s(sHQ)}, 2")
    I(f"v_mov_b32 v5, {s(sT)}")
    I(f"s_or_b32 {s(sT)}, {s(sRB)}, {s(S_WV)}")
    I(f"s_cmp_eq_u32 {s(sT)}, 0")
    A.branch("s_cbranch_scc0 A_nozero")
    for r in range(4): I(f"v_mov_b32 {v(32+r)}, 0")
    I(f"v_lshlrev_b32 {v(vT)}, 4, v1")
    for k in range(4):
        I(f"buffer_store_dwordx4 v[32:35], {v(vT)}, {s(sSRA,4)}, 0 offen offset:{1024*k} sc0 sc1")
    I(f"v_add_u32 {v(vT+1)}, 4096, {v(vT)}")
    I(f"buffer_store_dwordx4 v[32:35], {v(vT+1)}, {s(sSRA,4)}, 0 offen sc0 sc1")
    I("s_waitcnt vmcnt(0)")
    I(f"v_mov_b32 {v(vT+1)}, 1")
    I(f"global_store_dword v5, {v(vT+1)}, {s(S_DBG,2)} sc0 sc1")
    A.label("A_nozero")
    for r in range(32): I(f"v_mov_b32 {v(ACC+r)}, {s(sEPS)}")
    vRK, vRZ, vAT = 30, 31, 6
    I(f"v_bfe_u32 {v(vT)}, v1, 4, 1")
    I(f"v_cmp_eq_u32 s[68:69], 1, {v(vT)}")
    I(f"v_lshrrev_b32 {v(vT+1)}, 5, v1")
    I(f"v_lshl_add_u32 {v(vT+1)}, {v(vT)}, 1, {v(vT+1)}")
    I(f"s_lshl_b32 {s(sT)}, {s(sHP)}, 2")
    I(f"v_add_u32 {v(vT+1)}, {s(sT)}, {v(vT+1)}")
    I(f"v_and_b32 {v(vT+2)}, 15, v1")
    I(f"v_lshl_add_u32 {v(vT+3)}, {v(vT+1)}, 5, {v(vT+2)}")
    I(f"s_mul_i32 {s(sT)}, {s(sRH)}, {REDSZ}")
    I(f"v_lshl_add_u32 {v(vRK)}, {v(vT+3)}, 4, {s(sT)}")
    I(f"v_lshl_add_u32 {v(vRZ)}, {v(vT+1)}, 5, {s(sT)}")
    I(f"v_lshlrev_b32 {v(vAT)}, 2, v0")
    I(f"v_add_u32 {v(vAT+1)}, 4096, {v(vAT)}")
    I("v_mov_b32 v4, 1")
    vONE = 248
    q = LQ(A)
    def rl(i):
        n, ks = i // 4, i % 4; f = FR(i); b = WREG[n]*RG
        return [(xrd(f, n, ks, 0), ("a", i)), (wrd(f+8, b, ks, 0), None), (wrd(f+10, b, ks, 1), ("a", i)),
                (wrd(f+12, b+8192, ks, 0), None), (wrd(f+14, b+8192, ks, 1), ("b", i)), (xrd(f+4, n, ks, 1), ("c", i))]
    I("s_barrier")
    stamp(A, 2)
    pend = []
    for i in range(32): pend += [(i,) + x for x in rl(i)]
    lim = 4
    def pop(k, cur):
        for _ in range(k):
            if pend and pend[0][0] < lim and pend[0][0] <= cur + 3:
                i, t, tag = pend.pop(0); q.issue(t, tag)
    pop(12, 0)
    for i in range(32):
        f = FR(i); X = lambda rt: v(f+4*rt,4)
        seq = [(K(0), X(0), v(f+8,4), "a"), (V(0), X(0), v(f+12,4), "b"), (K(1), X(1), v(f+8,4), "c"), (V(1), X(1), v(f+12,4), "c")]
        for m, (d, a_, b_, tg) in enumerate(seq):
            q.need((tg, i))
            c = "0" if (i == 0 and m in (1, 3)) else v(d,16)
            I(f"v_mfma_f32_32x32x16_bf16 {v(d,16)}, {a_}, {b_}, {c}")
            if i % 4 == 2 and m == 1:
                q.need(("c", i+1))
                I("s_barrier")
                lim += 4
                if i == 30:
                    for mm in (2, 3):
                        chunk(QORD[mm]); issue_w([(0, QOFF[mm])])
                    I(f"s_cmp_eq_u32 {s(sLW)}, 1")
                    I("s_cbranch_scc0 A_nf")
                    I(f"global_load_dword v4, v5, {s(S_DBG,2)} sc0 sc1")
                    A.raw("A_nf:")
            pop(2 if m % 2 == 0 else 1, i - 1 if m < 3 else i)
            if i % 4 >= 2: pop(1, i - 1 if m < 3 else i)
    assert not pend
    stamp(A, 3)
    PKK, PVV, TMP = 32, 48, 128
    D, Z = 144, 160
    for r in range(4): I(f"v_mov_b32 {v(vONE+r)}, 0x3f803f80")
    L = []
    for rt in range(2):
        L += phi_list(K(rt), PKK+8*rt, TMP, sL, sEPS)
        for p in range(8):
            L.append(f"v_cvt_pk_bf16_f32 {v(PVV+8*rt+p)}, {v(V(rt)+2*p)}, {v(V(rt)+2*p+1)}")
        for n in (2*rt, 2*rt+1):
            L.append(f"v_mfma_f32_32x32x16_bf16 {v(D,16)}, {v(PKK+4*n,4)}, {v(PVV+4*n,4)}, {'0' if n == 0 else v(D,16)}")
            L.append(f"v_mfma_f32_32x32x16_bf16 {v(Z,16)}, {v(PKK+4*n,4)}, {v(vONE,4)}, {'0' if n == 0 else v(Z,16)}")
    for n, x in enumerate(L):
        if n == B9POS:
            I("s_waitcnt vmcnt(0)")
            I("s_barrier")
            stamp(A, 4)
            for mm in range(4, 8):
                chunk(QORD[mm]); issue_w([(0, QOFF[mm])])
        if n == B10POS:
            I("s_waitcnt vmcnt(0)")
            I("s_barrier")
            stamp(A, 5)
        I(x)
    A.label("A_poll", flush=False)
    I("v_readfirstlane_b32 s12, v4")
    I("s_cmp_lg_u32 s12, 0")
    A.branch("s_cbranch_scc1 A_polled")
    I("s_sleep 2")
    I(f"global_load_dword v4, v5, {s(S_DBG,2)} sc0 sc1")
    I("s_waitcnt vmcnt(0)")
    I("s_branch A_poll")
    A.label("A_polled")
    SEL = 64
    for i in range(8): I(f"v_cndmask_b32 {v(SEL+i)}, {v(D+i)}, {v(D+8+i)}, s[68:69]")
    I(f"ds_write_b128 {v(vRK)}, {v(SEL,4)} offset:{RED}")
    I(f"ds_write_b128 {v(vRK)}, {v(SEL+4,4)} offset:{RED+256}")
    for i in range(8): I(f"v_cndmask_b32 {v(SEL+8+i)}, {v(Z+i)}, {v(Z+8+i)}, s[68:69]")
    I("s_mov_b32 exec_lo, 0x00010001"); I("s_mov_b32 exec_hi, 0x00010001")
    I(f"ds_write_b128 {v(vRZ)}, {v(SEL+8,4)} offset:{RED+4096}")
    I(f"ds_write_b128 {v(vRZ)}, {v(SEL+12,4)} offset:{RED+4112}")
    I("s_mov_b64 exec, -1")
    I("s_waitcnt lgkmcnt(0)")
    stamp(A, 6)
    I("s_barrier")
    stamp(A, 7)
    for k in range(5):
        I(f"ds_read_b32 {v(32+2*k)}, {v(vAT)} offset:{RED+1024*k}")
        I(f"ds_read_b32 {v(33+2*k)}, {v(vAT)} offset:{RED+1024*k+REDSZ}")
    for k in range(5):
        I(f"s_waitcnt lgkmcnt({8-2*k})")
        I(f"v_add_f32 {v(32+2*k)}, {v(32+2*k)}, {v(33+2*k)}")
        if k < 4: I(f"buffer_atomic_add_f32 {v(32+2*k)}, {v(vAT)}, {s(sSRA,4)}, 0 offen offset:{1024*k}")
        else: I(f"buffer_atomic_add_f32 {v(32+2*k)}, {v(vAT+1)}, {s(sSRA,4)}, 0 offen")
    I(f"s_cmp_eq_u32 {s(sLW)}, 0")
    A.branch("s_cbranch_scc0 A_gdone")
    G, G2 = 48, 52
    I(f"v_lshrrev_b32 {v(vT)}, 4, v1")
    I(f"v_lshlrev_b32 {v(vT)}, 4, {v(vT)}")
    I(f"ds_read_b128 {v(G,4)}, {v(vT)} offset:{RED+2*REDSZ}")
    I(f"ds_read_b128 {v(G2,4)}, {v(vT)} offset:{RED+2*REDSZ+64}")
    I("s_waitcnt lgkmcnt(0)")
    for r in range(4): I(f"v_add_f32 {v(G+r)}, {v(G+r)}, {v(G2+r)}")
    def rb4():
        I(f"v_cvt_pk_bf16_f32 {v(G2)}, {v(G)}, {v(G+1)}")
        I(f"v_cvt_pk_bf16_f32 {v(G2+1)}, {v(G+2)}, {v(G+3)}")
        I(f"v_lshlrev_b32 {v(G)}, 16, {v(G2)}")
        I(f"v_and_b32 {v(G+1)}, 0xffff0000, {v(G2)}")
        I(f"v_lshlrev_b32 {v(G+2)}, 16, {v(G2+1)}")
        I(f"v_and_b32 {v(G+3)}, 0xffff0000, {v(G2+1)}")
    rb4()
    for r in range(4): I(f"v_mul_f32 {v(G+r)}, 0x{f32bits(-LOG2E):08x}, {v(G+r)}")
    for r in range(4): I(f"v_exp_f32 {v(G+r)}, {v(G+r)}")
    for r in range(4): I(f"v_add_f32 {v(G+r)}, 1.0, {v(G+r)}")
    for r in range(4): I(f"v_rcp_f32 {v(G+r)}, {v(G+r)}")
    rb4()
    I(f"s_lshl_b32 {s(sT)}, {s(sRB)}, 9")
    I(f"s_lshl_b32 {s(sT2)}, {s(sHQ)}, 6")
    I(f"s_add_u32 {s(sT)}, {s(sT)}, {s(sT2)}")
    I(f"s_add_u32 {s(sT)}, {s(sT)}, {WS_G}")
    I(f"v_add_u32 {v(vT)}, {s(sT)}, {v(vT)}")
    I(f"global_store_dwordx4 {v(vT)}, {v(G,4)}, {s(S_WS,2)} sc0 sc1")
    A.label("A_gdone")
    stamp_out(A, 9)
    I("s_endpgm")
```

```python
from asmlib import *
import struct
def f32bits(x): return struct.unpack("<I", struct.pack("<f", x))[0]
LOG2E = 1.4426950408889634
LOG2E_HI = struct.unpack("<f", struct.pack("<f", LOG2E))[0]
LOG2E_LO = LOG2E - LOG2E_HI
LN2 = 0.6931471805599453
INV2PI = 0.15915494309189535

WS_PQ = 0x000000
WS_BT = 0x200000
WS_ACC = 0x400000
WS_G = 0x410000

S_X, S_WQKV, S_WO, S_U, S_LAR, S_AIM, S_CR, S_CI = 16, 18, 20, 22, 24, 26, 28, 30
S_LDT, S_DSK, S_GW, S_OUT, S_DBG, S_WS = 32, 34, 36, 38, 40, 42
S_XCD, S_J, S_WV = 3, 4, 5

RS = 2064
NROW = 56
ONEROW = NROW * RS
U0 = ONEROW + 512
USZ = 4608
K0 = U0 + 4 * USZ
KSZ = 3200
R1OFF = 1216
X3OFF = 2336
X4OFF = 2848
PT0 = K0 + 4 * KSZ
PTSZ = 2 * R1OFF
B_LDS_END = PT0 + PTSZ
CEN, CEN4, LO5 = 33, 32, 33
assert B_LDS_END <= 163840

def nib(tab):
    x = 0
    for r, t in enumerate(tab): x |= t << (4 * r)
    return x & 0xffffffff, x >> 32
T0 = list(range(16))
T1 = [0,0,1,2,2,2,3,4,4,4,5,6,6,6,7,8]
T2 = [0,0,0,1,1,1,2,2,2,2,2,3,3,3,4,4]
T3 = [0]*5 + [1]*7 + [2]*4

def cmul(A, d, x, y):
    A.I(f"v_pk_mul_f32 {v(d,2)}, {v(x,2)}, {v(y,2)} op_sel_hi:[1,0]")
    A.I(f"v_pk_fma_f32 {v(d,2)}, {v(x,2)}, {v(y,2)}, {v(d,2)} op_sel:[1,1,0] op_sel_hi:[0,1,1] neg_lo:[1,0,0]")

def exp_rbf(A, dst, src, t0, t1, sc):
    A.I(f"v_mul_f32 {v(t0)}, {s(sc)}, {v(src)}")
    A.I(f"v_fma_f32 {v(t1)}, {v(src)}, {s(sc)}, -{v(t0)}")
    A.I(f"v_fma_f32 {v(t1)}, {v(src)}, {s(sc+1)}, {v(t1)}")
    A.I(f"v_exp_f32 {v(t0)}, {v(t0)}")
    A.I(f"v_mul_f32 {v(t1)}, {s(sc+2)}, {v(t1)}")
    A.I(f"v_fma_f32 {v(t0)}, {v(t0)}, {v(t1)}, {v(t0)}")
    A.I(f"v_cvt_pk_bf16_f32 {v(t0)}, {v(t0)}, {v(t0)}")
    A.I(f"v_lshlrev_b32 {v(dst)}, 16, {v(t0)}")

STAMP = False
import os
HELP = int(os.environ.get('HELP', 0))
PRIOB = int(os.environ.get('PRIOB', 4))
WS_STAMP = 0x500000
def stamp(A, k):
    if not STAMP: return
    A.I("s_waitcnt lgkmcnt(0)")
    A.I(f"s_memtime {s(72+2*k,2)}")
    A.I("s_waitcnt lgkmcnt(0)")
def stamp_out(A, n, vr=246):
    if not STAMP: return
    I = A.I
    I("s_waitcnt lgkmcnt(0) vmcnt(0)")
    I(f"s_memtime {s(72+2*n,2)}")
    I("s_memrealtime s[94:95]")
    I("s_waitcnt lgkmcnt(0)")
    I(f"s_lshl_b32 s6, s2, 3")
    I(f"s_add_u32 s6, s6, {s(S_WV)}")
    I(f"s_lshl_b32 s6, s6, 6")
    I(f"s_add_u32 s6, s6, {WS_STAMP}")
    I(f"v_mov_b32 {v(vr)}, s6")
    for k in range(n+1):
        I(f"v_mov_b32 {v(vr+1)}, {s(72+2*k)}")
        I(f"global_store_dword {v(vr)}, {v(vr+1)}, {s(S_WS,2)} offset:{4*k}")
    I(f"v_mov_b32 {v(vr+1)}, s94")
    I(f"global_store_dword {v(vr)}, {v(vr+1)}, {s(S_WS,2)} offset:60")
    I(f"v_mov_b32 {v(vr+1)}, s92")
    I(f"global_store_dword {v(vr)}, {v(vr+1)}, {s(S_WS,2)} offset:56")
    I("s_getreg_b32 s6, hwreg(HW_REG_HW_ID)")
    I(f"v_mov_b32 {v(vr+1)}, s6")
    I(f"global_store_dword {v(vr)}, {v(vr+1)}, {s(S_WS,2)} offset:52")

def gen_B(A, mid=None):
    I = A.I
    sCH, sHF, sD0, sD, sT, sUC, sKC, sROT = 44, 45, 46, 47, 48, 49, 50, 51
    sC = 52
    sM = 56
    sTB = 58
    sBT = 68
    vLANE, vB, vG = 1, 2, 3
    vROW = 4
    vGA = 8
    vLAR, vAIM, vCR, vCI, vLDT, vDSK = 16, 17, 18, 19, 20, 21
    vT = 22
    W = lambda r: 32 + 2 * (r - 1)
    G = lambda p: 64 + 2 * (p - 1)
    F = lambda f: 80 + 2 * f
    H = lambda k: 112 + 2 * (k - 1)
    vP = 118
    vPK = 126
    vFA, vE0, vE1 = 130, 131, 132
    vY = 204
    I(f"s_and_b32 {s(sCH)}, {s(S_WV)}, 3")
    I(f"s_lshr_b32 {s(sHF)}, {s(S_WV)}, 2")
    I(f"s_lshl_b32 {s(sD0)}, {s(S_XCD)}, 6")
    I(f"s_lshl_b32 {s(sT)}, {s(S_J)}, 2")
    I(f"s_add_u32 {s(sD0)}, {s(sD0)}, {s(sT)}")
    I(f"s_add_u32 {s(sD)}, {s(sD0)}, {s(sCH)}")
    I(f"v_and_b32 {v(vLANE)}, 63, v0")
    I(f"s_lshl_b32 {s(sT)}, {s(sD)}, 8")
    I(f"s_lshl_b32 {s(sROT)}, {s(sHF)}, 7")
    I(f"s_add_u32 {s(sT)}, {s(sT)}, {s(sROT)}")
    I(f"v_lshl_add_u32 {v(vT)}, {v(vLANE)}, 1, {s(sT)}")
    I(f"s_lshl_b32 {s(sT)}, {s(sD)}, 1")
    I(f"v_mov_b32 {v(vT+1)}, {s(sT)}")
    I(f"s_lshl_b32 {s(sROT)}, {s(S_J)}, 5")
    I(f"v_add_u32 {v(vT+2)}, {s(sROT)}, v0")
    I(f"v_and_b32 {v(vT+2)}, 0x1ff, {v(vT+2)}")
    I("s_waitcnt lgkmcnt(0)")
    stamp(A, 1)
    I(f"global_load_ushort {v(vLDT)}, {v(vT+1)}, {s(S_LDT,2)}")
    I(f"global_load_ushort {v(vLAR)}, {v(vT)}, {s(S_LAR,2)}")
    I(f"global_load_ushort {v(vAIM)}, {v(vT)}, {s(S_AIM,2)}")
    I(f"global_load_ushort {v(vCR)}, {v(vT)}, {s(S_CR,2)}")
    I(f"global_load_ushort {v(vCI)}, {v(vT)}, {s(S_CI,2)}")
    I(f"global_load_ushort {v(vDSK)}, {v(vT+1)}, {s(S_DSK,2)}")
    I(f"s_lshl_b32 {s(sT)}, {s(sD0)}, 1")
    vGA = 140
    vUW, vGAD, vSEL = 148, 150, 154
    I(f"v_add_u32 {v(vT+3)}, {s(S_J)}, v0")
    I(f"v_and_b32 {v(vT+3)}, 3, {v(vT+3)}")
    I(f"v_lshl_add_u32 {v(vT+4)}, {v(vT+2)}, 2, {v(vT+3)}")
    I(f"v_lshl_add_u32 {v(vGAD)}, {v(vT+4)}, 10, {s(sT)}")
    for i in range(1, 4): I(f"v_xor_b32 {v(vGAD+i)}, {1024*i}, {v(vGAD)}")
    if HELP:
        I(f"s_lshr_b32 s8, {s(S_J)}, 2")
        I(f"s_and_b32 s9, {s(S_J)}, 3")
        I(f"s_add_u32 s10, s8, s9")
        I(f"s_and_b32 s10, s10, 3")
        I(f"s_lshl_b32 s10, s10, 1")
        I(f"s_add_u32 s10, s10, 1")
        I(f"s_lshr_b32 s11, {s(S_XCD)}, 1")
        I(f"s_lshl_b32 s11, s11, 2")
        I(f"s_add_u32 s8, s8, s11")
        I(f"s_and_b32 s11, {s(S_XCD)}, 1")
        I(f"s_lshl_b32 s11, s11, 2")
        I(f"s_add_u32 s9, s9, s11")
        I(f"s_lshl_b32 s8, s8, 17")
        I(f"s_lshl_b32 s11, s10, 7")
        I(f"s_add_u32 s8, s8, s11")
        I(f"s_mul_i32 s10, s10, {64*3072}")
        I(f"s_lshl_b32 s9, s9, 7")
        I(f"s_add_u32 s9, s9, s10")
        I(f"v_lshrrev_b32 v232, 3, v0")
        I(f"v_and_b32 v233, 7, v0")
        I(f"v_lshlrev_b32 v233, 4, v233")
        I(f"v_lshl_add_u32 v234, v232, 10, v233")
        I(f"v_add_u32 v234, s8, v234")
        I(f"v_add_u32 v235, 0x10000, v234")
        I(f"v_mul_u32_u24 v232, 3072, v232")
        I(f"v_add3_u32 v232, v232, v233, s9")
    I("s_barrier")
    if HELP:
        I(f"global_load_dwordx4 v[236:239], v232, {s(S_WQKV,2)} offset:1024")
        I(f"global_load_dwordx4 v[236:239], v232, {s(S_WQKV,2)} offset:2048")
        I(f"global_load_dwordx4 v[236:239], v234, {s(S_X,2)}")
        I(f"global_load_dwordx4 v[236:239], v235, {s(S_X,2)}")
    def gather(i): I(f"global_load_dwordx2 {v(vGA+2*i,2)}, {v(vGAD+i)}, {s(S_X,2)}")
    gather(0); gather(1)
    if mid:
        A.branch("s_branch B_rest")
        mid()
        A.label("B_rest")
    I(f"v_and_b32 {v(vT+4)}, -2, {v(vT+4)}")
    I(f"v_lshlrev_b32 {v(vUW)}, 1, {v(vT+4)}")
    I(f"v_add_u32 {v(vUW)}, {U0+512}, {v(vUW)}")
    I(f"v_xor_b32 {v(vUW+1)}, 4, {v(vUW)}")
    I(f"v_and_b32 {v(vT+3)}, 1, {v(vT+3)}")
    I(f"v_mul_u32_u24 {v(vT+3)}, 0x040404, {v(vT+3)}")
    I(f"v_lshl_or_b32 {v(vT+3)}, {v(vT+3)}, 8, {v(vT+3)}")
    I(f"v_xor_b32 {v(vSEL)}, 0x05040100, {v(vT+3)}")
    I(f"v_xor_b32 {v(vSEL+1)}, 0x07060302, {v(vT+3)}")
    I(f"v_and_b32 {v(vB)}, 15, {v(vLANE)}")
    I(f"v_lshrrev_b32 {v(vG)}, 4, {v(vLANE)}")
    I(f"s_mul_i32 {s(sUC)}, {s(sCH)}, {USZ}")
    I(f"s_add_u32 {s(sUC)}, {s(sUC)}, {U0}")
    I(f"s_mul_i32 {s(sKC)}, {s(sCH)}, {KSZ}")
    I(f"s_add_u32 {s(sKC)}, {s(sKC)}, {K0}")
    I(f"s_mov_b32 {s(sC)}, 0x{f32bits(LOG2E_HI):08x}")
    I(f"s_mov_b32 {s(sC+1)}, 0x{f32bits(LOG2E_LO):08x}")
    I(f"s_mov_b32 {s(sC+2)}, 0x{f32bits(LN2):08x}")
    for r in range(4): I(f"v_mov_b32 {v(24+r)}, 0")
    I(f"v_lshrrev_b32 {v(vT)}, 7, v0")
    I(f"v_mul_u32_u24 {v(vT)}, {USZ}, {v(vT)}")
    I(f"v_and_b32 {v(vT+1)}, 127, v0")
    I(f"v_lshl_add_u32 {v(vT)}, {v(vT+1)}, 2, {v(vT)}")
    I(f"v_add_u32 {v(vT)}, {U0}, {v(vT)}")
    I(f"ds_write_b32 {v(vT)}, v24")
    I(f"v_lshlrev_b32 {v(vT)}, 4, v0")
    I(f"v_add_u32 {v(vT)}, {K0}, {v(vT)}")
    I(f"ds_write_b128 {v(vT)}, v[24:27]")
    I(f"v_min_u32 {v(vT)}, {K0 + 4*KSZ - 16 - 8192}, {v(vT)}")
    I(f"ds_write_b128 {v(vT)}, v[24:27] offset:8192")
    I(f"v_lshlrev_b32 {v(vT+1)}, 2, {v(vT+1)}")
    I(f"v_add_u32 {v(vT+1)}, {ONEROW}, {v(vT+1)}")
    I(f"v_mov_b32 v28, 0x3f80")
    I(f"ds_write_b32 {v(vT+1)}, v28")
    lo_t = [4, 3, 2, 1, 3, 5, 0, 0]
    ln_t = [3, 5, 7, 9, 3, 2, 0, 0]
    lo_c = sum(t << (4*i) for i, t in enumerate(lo_t)); ln_c = sum(t << (4*i) for i, t in enumerate(ln_t))
    I(f"v_lshrrev_b32 {v(vT)}, 6, v0")
    I(f"v_lshlrev_b32 {v(vT+1)}, 2, {v(vT)}")
    I(f"s_mov_b32 {s(sT)}, 0x{lo_c:08x}")
    I(f"v_bfe_u32 v28, {s(sT)}, {v(vT+1)}, 4")
    I(f"s_mov_b32 {s(sT)}, 0x{ln_c:08x}")
    I(f"v_bfe_u32 v29, {s(sT)}, {v(vT+1)}, 4")
    I(f"v_subrev_u32 v30, 28, {v(vLANE)}")
    I(f"v_sub_u32 v30, v30, v28")
    I(f"v_mov_b32 v28, 0x3f80")
    I(f"v_mov_b32 v31, 0xffff")
    I(f"v_cmp_lt_u32 vcc, 3, {v(vT)}")
    I(f"v_cndmask_b32 v28, v28, v31, vcc")
    I(f"v_cmp_lt_u32 vcc, v30, v29")
    I(f"v_cndmask_b32 v28, 0, v28, vcc")
    I(f"v_lshlrev_b32 {v(vT)}, 1, v0")
    I(f"v_add_u32 {v(vT)}, {PT0}, {v(vT)}")
    I(f"ds_write_b16 {v(vT)}, v28")
    I(f"ds_write_b16 {v(vT)}, v28 offset:{R1OFF-2}")
    I(f"s_lshl_b32 {s(sM)}, {s(sCH)}, 9")
    I(f"s_lshl_b32 {s(sT)}, {s(sHF)}, 8")
    I(f"s_add_u32 {s(sM)}, {s(sM)}, {s(sT)}")
    I(f"s_add_u32 {s(sM+1)}, {s(sM)}, {28*RS}")
    I(f"v_lshrrev_b32 {v(vT)}, 1, {v(vG)}")
    I(f"v_lshlrev_b32 {v(vT)}, 7, {v(vT)}")
    I(f"v_and_b32 {v(vT+1)}, 1, {v(vG)}")
    I(f"v_lshl_add_u32 {v(vT)}, {v(vT+1)}, 8, {v(vT)}")
    I(f"s_lshl_b32 {s(sT)}, {s(sCH)}, 9")
    I(f"v_add_u32 {v(vT+1)}, {s(sT)}, {v(vT)}")
    I(f"v_mul_u32_u24 {v(vT+2)}, {RS}, {v(vB)}")
    I(f"v_add_u32 {v(vFA)}, {v(vT+1)}, {v(vT+2)}")
    I(f"s_cmp_eq_u32 {s(sHF)}, 0")
    I(f"s_cselect_b32 {s(sT)}, {40*RS}, {s(sT)}")
    I(f"s_mov_b32 s6, {15*RS}")
    I(f"s_cselect_b32 {s(sT)}, {s(sT)}, s6")
    I(f"v_add_u32 {v(vE0)}, {s(sT)}, {v(vFA)}")
    I(f"v_add_u32 {v(vT+3)}, {ONEROW}, {v(vT)}")
    I(f"v_sub_u32 {v(vT+4)}, {v(vB)}, {s(sHF)}")
    I(f"v_cmp_eq_u32 vcc, -1, {v(vT+4)}")
    I(f"v_cndmask_b32 {v(vE0)}, {v(vE0)}, {v(vT+3)}, vcc")
    lo, hi = nib(T1)
    I(f"s_mov_b32 {s(sTB)}, 0x{lo:08x}")
    I(f"s_mov_b32 {s(sTB+1)}, 0x{hi:08x}")
    I(f"v_lshlrev_b32 {v(vT+3)}, 2, {v(vB)}")
    I(f"v_lshrrev_b64 {v(vT+4,2)}, {v(vT+3)}, {s(sTB,2)}")
    I(f"v_and_b32 {v(vT+4)}, 15, {v(vT+4)}")
    I(f"v_add_u32 {v(vT+4)}, 31, {v(vT+4)}")
    I(f"v_mul_u32_u24 {v(vT+4)}, {RS}, {v(vT+4)}")
    I(f"v_add_u32 {v(vE1)}, {v(vT+1)}, {v(vT+4)}")
    vOFF, vKW, vLT, vLB = 4, 5, 6, 7
    UA, UC, VV, TP, TM, SS, BX, MK = 32, 64, 72, 112, 124, 148, 172, 196
    I(f"v_and_b32 {v(vT)}, 1, {v(vB)}")
    I(f"v_xor_b32 {v(vT)}, 1, {v(vT)}")
    I(f"v_mul_u32_u24 {v(vT+1)}, {R1OFF-2}, {v(vT)}")
    I(f"v_lshl_add_u32 {v(vT+1)}, {v(vG)}, 4, {v(vT+1)}")
    I(f"v_lshlrev_b32 {v(vT+2)}, 1, {v(vB)}")
    I(f"v_sub_u32 {v(vLT)}, {v(vT+1)}, {v(vT+2)}")
    def toep(dst, base, s0):
        o = (s0 - 1)//2
        assert 0 <= o and o+3 <= 255, o
        return [f"ds_read2_b32 {v(dst,2)}, {v(base)} offset0:{o} offset1:{o+1}",
                f"ds_read2_b32 {v(dst+2,2)}, {v(base)} offset0:{o+2} offset1:{o+3}"]
    I(f"v_add_u32 v11, {PT0+2}, {v(vLT)}")
    I("s_waitcnt lgkmcnt(0)")
    I("s_barrier")
    I(f"s_cmp_eq_u32 {s(sHF)}, 0")
    I("s_cbranch_scc0 B_nopat")
    boxes = [(0, 12), (1, 8), (0, 4), (1, 8), (2, 8), (3, 8)]
    for n, (run, ctr) in enumerate(boxes):
        for x in toep(BX+4*n, 11, 64*run + CEN - ctr): I(x)
        if n == 3: I("s_waitcnt lgkmcnt(4)")
    for x in toep(MK, 11, 64*4 + CEN4 - 15): I(x)
    for x in toep(MK+4, 11, 64*5 + LO5 - 12): I(x)
    I("s_waitcnt lgkmcnt(0)")
    A.label("B_nopat")
    I(f"s_waitcnt vmcnt({6 if HELP else 2})")
    stamp(A, 2)
    for r in (vLDT, vLAR, vAIM, vCR, vCI, vDSK):
        I(f"v_lshlrev_b32 {v(r)}, 16, {v(r)}")
    vDT = vLDT
    exp_rbf(A, vDT, vLDT, vT, vT+1, sC)
    exp_rbf(A, vLAR, vLAR, vT+2, vT+3, sC)
    vLR, vFI = vLAR, vAIM
    I(f"v_mul_f32 {v(vLR)}, {v(vLAR)}, {v(vDT)}")
    I(f"v_mul_f32 {v(vFI)}, {v(vAIM)}, {v(vDT)}")
    I(f"v_mul_f32 {v(vLR)}, 0x{f32bits(-LOG2E):08x}, {v(vLR)}")
    I(f"v_mul_f32 {v(vFI)}, 0x{f32bits(INV2PI):08x}, {v(vFI)}")
    I(f"v_add_f32 {v(vDT)}, {v(vDT)}, {v(vDT)}")
    I(f"v_mul_f32 {v(F(0))}, {v(vCR)}, {v(vDT)}")
    I(f"v_mul_f32 {v(F(0)+1)}, {v(vCI)}, {v(vDT)}")
    def anchor(dst, t, tmp):
        tb = f"0x{f32bits(float(t)):08x}"
        if t == 1:
            I(f"v_exp_f32 {v(tmp)}, {v(vLR)}")
            I(f"v_fract_f32 {v(tmp+1)}, {v(vFI)}")
        else:
            I(f"v_mul_f32 {v(tmp)}, {tb}, {v(vLR)}")
            I(f"v_mul_f32 {v(tmp+1)}, {tb}, {v(vFI)}")
            I(f"v_exp_f32 {v(tmp)}, {v(tmp)}")
            I(f"v_fract_f32 {v(tmp+1)}, {v(tmp+1)}")
        I(f"v_cos_f32 {v(dst)}, {v(tmp+1)}")
        I(f"v_sin_f32 {v(dst+1)}, {v(tmp+1)}")
        I(f"v_pk_mul_f32 {v(dst,2)}, {v(dst,2)}, {v(tmp,2)} op_sel_hi:[1,0]")
    anchor(W(1), 1, vT)
    anchor(W(16), 16, vT+2)
    anchor(G(1), 256, vT+4)
    gather(2)
    st = {"pk": 0, "m0": None}
    def emit(row, reg, neg=False):
        t = vPK + (st["pk"] & 3); st["pk"] += 1
        grp = row // 28
        if st["m0"] != grp:
            I(f"s_mov_b32 m0, {s(sM+grp)}"); st["m0"] = grp
        I(f"v_cvt_pk_bf16_f32 {v(t)}, {v(reg)}, {'-' if neg else ''}{v(reg+1)}")
        I(f"ds_write_addtid_b32 {v(t)} offset:{(row % 28)*RS}")
    EW = lambda r: 15 + r
    cmul(A, W(2), W(1), W(1)); emit(EW(1), W(1))
    cmul(A, H(1), W(16), W(16)); emit(0, F(0), True)
    cmul(A, F(1), F(0), W(16))
    cmul(A, G(2), G(1), G(1))
    cmul(A, W(3), W(2), W(1)); emit(EW(2), W(2))
    cmul(A, W(4), W(2), W(2)); emit(1, F(1), True)
    cmul(A, H(2), H(1), H(1))
    cmul(A, F(2), F(0), H(1)); emit(EW(3), W(3))
    cmul(A, F(3), F(1), H(1)); emit(EW(4), W(4))
    cmul(A, G(3), G(2), G(1))
    cmul(A, G(4), G(2), G(2))
    cmul(A, W(8), W(4), W(4)); emit(2, F(2), True)
    cmul(A, H(3), H(2), H(2)); emit(3, F(3), True)
    for r in (5, 6, 7): cmul(A, W(r), W(4), W(r-4))
    emit(EW(8), W(8))
    gather(3)
    for f in range(4):
        cmul(A, F(4+f), F(f), H(2))
        if f < 3: emit(EW(5+f), W(5+f))
    for p in (5, 6, 7):
        cmul(A, G(p), G(4), G(p-4)); emit(4+p-5, F(4+p-5), True)
    emit(7, F(7), True)
    for f in range(8):
        cmul(A, F(8+f), F(f), H(3))
        if f > 0: emit(8+f-1, F(8+f-1), True)
    for r in range(9, 16):
        cmul(A, W(r), W(8), W(r-8))
        if r == 9: emit(15, F(15), True)
        else: emit(EW(r-1), W(r-1))
    emit(EW(15), W(15)); emit(31, G(1))
    prods = []
    for i in range(1, 9): prods.append((31+i, 1, 2*i))
    for p in (2, 3):
        for i in range(1, 5): prods.append((40 + 4*(p-2) + i-1, p, 4*i))
    for p in range(4, 8):
        for i in (1, 2): prods.append((48 + 2*(p-4) + i-1, p, 8*i))
    pend = []
    for n, (row, p, r) in enumerate(prods):
        t = vP + 2*(n & 3)
        cmul(A, t, G(p), W(r))
        pend.append((row, t))
        if len(pend) > 1:
            rw, tt = pend.pop(0); emit(rw, tt)
    for rw, tt in pend: emit(rw, tt)
    stamp(A, 3)
    def ustage():
        I("s_waitcnt vmcnt(0)")
        stamp(A, 4)
        for c in range(4):
            sel = v(vSEL + (c % 2))
            o = c // 2
            t = 156 + 2*c
            I(f"v_perm_b32 {v(t)}, {v(vGA+2+o)}, {v(vGA+o)}, {sel}")
            I(f"v_perm_b32 {v(t+1)}, {v(vGA+6+o)}, {v(vGA+4+o)}, {sel}")
            I(f"ds_write_b32 {v(vUW)}, {v(t)} offset:{c*USZ}")
            I(f"ds_write_b32 {v(vUW+1)}, {v(t+1)} offset:{c*USZ}")
    def wopf(i):
        if i == 0:
            I(f"s_lshl_b32 {s(sT)}, {s(S_J)}, 15")
            I(f"v_lshl_add_u32 v14, v0, 4, {s(sT)}")
        else: I(f"v_add_u32 v14, 4096, v14")
        I(f"global_load_dwordx4 v[236:239], v14, {s(S_WO,2)}")
    I(f"v_lshlrev_b32 {v(vT)}, 5, {v(vB)}")
    I(f"v_lshl_add_u32 {v(vOFF)}, {v(vG)}, 3, {v(vT)}")
    I(f"v_lshl_add_u32 {v(vT)}, {v(vG)}, 4, {v(vT)}")
    I(f"v_add_u32 {v(vLB)}, {s(sUC)}, {v(vT)}")
    I(f"v_lshlrev_b32 {v(vT)}, 5, {v(vB)}")
    I(f"v_lshrrev_b32 {v(vT+1)}, 1, {v(vG)}")
    I(f"v_lshl_add_u32 {v(vT)}, {v(vT+1)}, 4, {v(vT)}")
    I(f"v_and_b32 {v(vT+1)}, 1, {v(vG)}")
    I(f"v_lshl_add_u32 {v(vT)}, {v(vT+1)}, 9, {v(vT)}")
    I(f"s_add_u32 {s(sT)}, {s(sKC)}, {2*536}")
    I(f"v_sub_u32 {v(vKW)}, {s(sT)}, {v(vT)}")
    I(f"v_cmp_eq_u32 vcc, 0, {v(vLANE)}")
    for r in range(1, 4): I(f"v_mov_b32 {v(248+r)}, 0")
    I(f"v_cndmask_b32 v248, 0, {v(vDSK)}, vcc")
    I("s_waitcnt lgkmcnt(0)")
    I("s_barrier")
    stamp(A, 5)
    vFF = 32; vEF = 64; vK = 248
    def ktile_write(k, t):
        for j in range(4): I(f"v_permlane16_swap_b32 {v(k+j)}, {v(k+4+j)}")
        for p in range(4): I(f"v_cvt_pk_bf16_f32 {v(t+p)}, {v(k+7-2*p)}, {v(k+6-2*p)}")
        I(f"ds_write_b128 {v(vKW)}, {v(t,4)}")
        for p in range(3): I(f"v_cvt_pk_bf16_f32 {v(t+4+p)}, {v(k+6-2*p)}, {v(k+5-2*p)}")
        I(f"ds_write_b16 {v(vKW)}, {v(t)} offset:{R1OFF-2}")
        I(f"ds_write_b16_d16_hi {v(vKW)}, {v(t+3)} offset:{R1OFF+12}")
        I(f"ds_write_b96 {v(vKW)}, {v(t+4,3)} offset:{R1OFF}")
    def kphase(ntile):
        loads = []
        for ks in range(8):
            loads.append(f"ds_read_b128 {v(vFF+4*ks,4)}, {v(vFA)} offset:{16*ks}")
            for i in range(ntile):
                loads.append(f"ds_read_b128 {v(vEF+32*i+4*ks,4)}, {v(vE0+i)} offset:{16*ks}")
        per = 1 + ntile
        issued = min(len(loads), 12)
        for x in loads[:issued]: I(x)
        for ks in range(8):
            for i in range(ntile):
                idx = ks*per + 1 + i
                I(f"s_waitcnt lgkmcnt({issued-1-idx})")
                c = "0" if (ks == 0 and (ntile == 1 or i == 1)) else v(vK+4*i,4)
                I(f"v_mfma_f32_16x16x32_bf16 {v(vK+4*i,4)}, {v(vEF+32*i+4*ks,4)}, {v(vFF+4*ks,4)}, {c}")
                while issued < len(loads) and issued - idx <= 12:
                    I(loads[issued]); issued += 1
    touched = set()
    yx = [0]
    def mf(t, a_, b_):
        y = vY + 4*(t ^ yx[0])
        c = v(y,4) if t in touched else "0"
        touched.add(t)
        I(f"v_mfma_f32_16x16x32_bf16 {v(y,4)}, {v(a_,4)}, {v(b_,4)}, {c}")
    I(f"s_cmp_eq_u32 {s(sHF)}, 0")
    A.branch("s_cbranch_scc0 B_waveB")
    kphase(1)
    vLO, vHI, vKT, vPT, vV3, vV4 = 16, 17, 10, 11, 12, 13
    I(f"v_lshlrev_b32 {v(vT)}, 7, {v(vG)}")
    I(f"v_lshl_add_u32 {v(vT+1)}, {v(vB)}, 3, {v(vT)}")
    I(f"v_sub_u32 {v(vT+1)}, {X3OFF + 2*188}, {v(vT+1)}")
    I(f"v_add_u32 {v(vT+2)}, 4, {v(vT+1)}")
    I(f"v_lshl_add_u32 {v(vT+3)}, {v(vB)}, 2, {v(vT)}")
    I(f"v_sub_u32 {v(vT+3)}, {X4OFF + 2*126 + 256}, {v(vT+3)}")
    I(f"v_subrev_u32 {v(vT+4)}, 64, {v(vT+3)}")
    I(f"v_cmp_gt_u32 vcc, 2, {v(vG)}")
    I(f"v_cndmask_b32 {v(vLO)}, {v(vT+3)}, {v(vT+2)}, vcc")
    I(f"v_cndmask_b32 {v(vHI)}, {v(vT+4)}, {v(vT+1)}, vcc")
    I(f"v_add_u32 {v(vLO)}, {s(sKC)}, {v(vLO)}")
    I(f"v_add_u32 {v(vHI)}, {s(sKC)}, {v(vHI)}")
    I(f"v_cvt_pk_bf16_f32 {v(vT)}, {v(vK+1)}, {v(vK)}")
    I(f"v_cvt_pk_bf16_f32 {v(vT+1)}, {v(vK+3)}, {v(vK+2)}")
    I(f"ds_write_b32 {v(vLO)}, {v(vT)}")
    I(f"ds_write_b32 {v(vHI)}, {v(vT+1)}")
    stamp(A, 8)
    ustage()
    I(f"s_add_u32 {s(sT)}, {s(sKC)}, 2")
    I(f"v_add_u32 {v(vKT)}, {s(sT)}, {v(vLT)}")
    I(f"v_lshlrev_b32 {v(vT)}, 5, {v(vG)}")
    I(f"v_lshlrev_b32 {v(vT+1)}, 3, {v(vB)}")
    I(f"v_sub_u32 {v(vT)}, {v(vT)}, {v(vT+1)}")
    I(f"s_add_u32 {s(sT)}, {s(sKC)}, {X3OFF + 120}")
    I(f"v_add_u32 {v(vV3)}, {s(sT)}, {v(vT)}")
    I(f"v_ashrrev_i32 {v(vT)}, 1, {v(vT)}")
    I(f"s_add_u32 {s(sT)}, {s(sKC)}, {X4OFF + 60}")
    I(f"v_add_u32 {v(vV4)}, {s(sT)}, {v(vT)}")
    I("s_waitcnt lgkmcnt(0)")
    I("s_barrier")
    stamp(A, 6)
    I(f"ds_read_b128 {v(UA,4)}, {v(vLB)} offset:{480}")
    I(f"ds_read_b128 {v(UC,4)}, {v(vLB)} offset:{480-16}")
    for k in range(1, 8):
        I(f"ds_read_b128 {v(UA+4*k,4)}, {v(vLB)} offset:{480 + 512*k}")
    I("s_waitcnt lgkmcnt(7)")
    ld = []
    I(f"v_add_u32 {v(vLO)}, 512, {v(vKT)}")
    ld += toep(TP, vLO, 543-16-256)
    ld += toep(TP+4, vKT, 543-16-256)
    ld += toep(TP+8, vKT, 543-16-512)
    I(f"v_mov_b32 {v(vT)}, {s(sKC)}")
    ld.append(f"ds_read_u16 {v(vT+2)}, {v(vT)} offset:{2*32}")
    ld.append(f"ds_read_u16 {v(vT+3)}, {v(vT)} offset:{X3OFF + 2*64}")
    for Dl in (2, 3, 4):
        for ph in range(2):
            d = VV + 4*(2*(Dl-2)+ph)
            o = 128*(4-Dl) + 16*ph
            ld.append(f"ds_read_b64 {v(d,2)}, {v(vV3)} offset:{o}")
            ld.append(f"ds_read_b64 {v(d+2,2)}, {v(vV3)} offset:{o+8}")
    for Dl in (4, 5, 6, 7):
        d = VV + 24 + 4*(Dl-4)
        o = 16*(7-Dl)
        ld.append(f"ds_read2_b32 {v(d,2)}, {v(vV4)} offset0:{o} offset1:{o+1}")
        ld.append(f"ds_read2_b32 {v(d+2,2)}, {v(vV4)} offset0:{o+2} offset1:{o+3}")
    def box(k):
        uc = UC + 4*(k & 1)
        n = 6 if k < 4 else 4
        for t in range(n):
            u = uc if t in (3, 5) else UA+4*k
            I(f"v_mfma_f32_16x16x32_bf16 {v(TM+4*t,4)}, {v(u,4)}, {v(BX+4*t,4)}, 0")
            for _ in range(3):
                if ld: I(ld.pop(0))
    def cvt(k):
        sb = SS + 12*(k & 1)
        S4, S8, S12, S16, Q8, Q16 = (TM+4*t for t in range(6))
        for ph in range(2):
            for cc in range(2):
                r = 2*ph + cc
                I(f"v_cvt_pk_bf16_f32 {v(sb+4*ph+2*cc)}, {v(S16+r)}, {v(S12+r)}")
                I(f"v_cvt_pk_bf16_f32 {v(sb+4*ph+2*cc+1)}, {v(S8+r)}, {v(S4+r)}")
        if k < 4:
            for r in range(4):
                I(f"v_cvt_pk_bf16_f32 {v(sb+8+r)}, {v(Q16+r)}, {v(Q8+r)}")
    def far(k):
        sb = SS + 12*(k & 1)
        for Dl in (2, 3, 4):
            if k + Dl < 8:
                for ph in range(2): mf(k+Dl, sb+4*ph, VV + 4*(2*(Dl-2)+ph))
        if k < 4:
            for Dl in (4, 5, 6, 7):
                if k + Dl < 8: mf(k+Dl, sb+8, VV+24+4*(Dl-4))
    box(0)
    while ld: I(ld.pop(0))
    I(f"ds_read_b128 {v(UC+4,4)}, {v(vLB)} offset:{480-16+512}")
    I("s_waitcnt lgkmcnt(15)")
    I("s_waitcnt lgkmcnt(0)")
    for t in range(8): mf(t, TP, UA+4*t)
    cvt(0)
    I(f"v_lshl_or_b32 {v(vT+2)}, {v(vT+2)}, 16, {v(vT+2)}")
    I(f"v_lshl_or_b32 {v(vT+3)}, {v(vT+3)}, 16, {v(vT+3)}")
    for r in range(4):
        I(f"v_and_or_b32 {v(TP+8+r)}, {v(MK+r)}, {v(vT+2)}, {v(TP+8+r)}")
        I(f"v_and_b32 {v(MK+4+r)}, {v(MK+4+r)}, {v(vT+3)}")
    fill = [(t+1, TP+4, UA+4*t) for t in range(7)] + [(t+2, TP+8, UA+4*t) for t in range(6)] + [(t+4, MK+4, UA+4*t) for t in range(4)]
    for k in range(1, 6):
        I("s_waitcnt lgkmcnt(0)")
        box(k)
        if k < 5: I(f"ds_read_b128 {v(UC+4*((k+1)&1),4)}, {v(vLB)} offset:{480-16+512*(k+1)}")
        far(k-1)
        if k <= 4: wopf(2*k-2); wopf(2*k-1)
        for _ in range(3):
            if fill: mf(*fill.pop(0))
        cvt(k)
    while fill: mf(*fill.pop(0))
    far(5)
    A.branch("s_branch B_epi")
    A.label("B_waveB")
    touched.clear(); yx[0] = 4
    I("s_setprio 1")
    kphase(2)
    ktile_write(vK, 24)
    stamp(A, 8)
    ustage()
    vKA0 = 8
    I(f"s_add_u32 {s(sT)}, {s(sKC)}, 2")
    I(f"v_add_u32 {v(vKA0)}, {s(sT)}, {v(vLT)}")
    NB = 3
    bufB = lambda q: 32 + 40*(q % NB)
    bufA = lambda q: 32 + 40*(q % NB) + 32
    def ldB(q): return [f"ds_read_b128 {v(bufB(q)+4*t,4)}, {v(vLB)} offset:{480 + 512*t - 64*q}" for t in range(8)]
    def ldA(q): return toep(bufA(q), vKA0, 543-16-32*q) + toep(bufA(q)+4, vKA0, 543-16-256-32*q)
    I("s_waitcnt lgkmcnt(0)")
    I("s_barrier")
    stamp(A, 6)
    if PRIOB: I("s_setprio 1")
    stream = []
    for q in range(1, 8): stream += [(q, x) for x in ldA(q) + ldB(q)]
    issued = 0
    def last_idx(q): return max(i for i, (qq, _) in enumerate(stream) if qq == q)
    while issued < 14: I(stream[issued][1]); issued += 1
    for q in range(1, 8):
        if PRIOB and q == PRIOB: I("s_setprio 0")
        I(f"s_waitcnt lgkmcnt({min(15, issued-1-last_idx(q))})")
        seq = [(t, bufA(q), bufB(q)+4*t) for t in range(8)] + [(t+1, bufA(q)+4, bufB(q)+4*t) for t in range(7)]
        for m in seq:
            mf(*m)
            if issued < len(stream) and stream[issued][0] <= q + NB - 1 and issued - last_idx(q) <= 14:
                I(stream[issued][1]); issued += 1
        while q < 7 and issued <= last_idx(q+1):
            I(stream[issued][1]); issued += 1
    A.label("B_epi")
    stamp(A, 7)
    vXA = 6
    I(f"s_lshl_b32 {s(sROT)}, {s(sCH)}, 13")
    I(f"s_lshl_b32 {s(sT)}, {s(sHF)}, 12")
    I(f"s_add_u32 s6, {s(sROT)}, {s(sT)}")
    I(f"v_lshl_add_u32 {v(vXA)}, {v(vLANE)}, 4, s6")
    for i in range(4):
        I(f"ds_write_b128 {v(vXA)}, {v(vY+16+4*i,4)} offset:{1024*i}")
    I(f"v_xor_b32 {v(vXA)}, 4096, {v(vXA)}")
    I(f"s_lshl_b32 {s(sT)}, {s(sHF)}, 11")
    I(f"s_lshl_b32 {s(sROT)}, {s(sD)}, 12")
    I(f"s_add_u32 {s(sROT)}, {s(sROT)}, {s(sT)}")
    I(f"s_add_u32 {s(sROT)}, {s(sROT)}, {WS_BT}")
    I(f"s_add_u32 {s(sBT)}, {s(S_WS)}, {s(sROT)}")
    I(f"s_addc_u32 {s(sBT+1)}, {s(S_WS+1)}, 0")
    I("s_waitcnt lgkmcnt(0)")
    I("s_barrier")
    vX = 48
    for i in range(4):
        I(f"ds_read_b128 {v(vX+4*i,4)}, {v(vXA)} offset:{1024*i}")
    I(f"v_and_b32 {v(vT)}, 1, {v(vG)}")
    I(f"v_mul_u32_u24 {v(vT)}, 504, {v(vT)}")
    I(f"v_add_u32 {v(vT)}, {v(vT)}, {v(vOFF)}")
    for p in range(2):
        o = 64 + 4*p
        for i in (2*p, 2*p+1):
            I(f"s_waitcnt lgkmcnt({3-i})")
            y = vY + 4*i; x = vX + 4*i
            I(f"v_pk_add_f32 {v(y,2)}, {v(y,2)}, {v(x,2)}")
            I(f"v_pk_add_f32 {v(y+2,2)}, {v(y+2,2)}, {v(x+2,2)}")
            I(f"v_cvt_pk_bf16_f32 {v(o+2*(i&1))}, {v(y)}, {v(y+1)}")
            I(f"v_cvt_pk_bf16_f32 {v(o+2*(i&1)+1)}, {v(y+2)}, {v(y+3)}")
        I(f"v_permlane16_swap_b32 {v(o)}, {v(o+2)}")
        I(f"v_permlane16_swap_b32 {v(o+1)}, {v(o+3)}")
        I(f"global_store_dwordx4 {v(vT)}, {v(o,4)}, {s(sBT,2)} offset:{1024*p} sc0 sc1")
    stamp_out(A, 9)
    I("s_endpgm")
```

```python
import sys
from asmlib import *
from k1b import *
import importlib

HEADER = open("gated_mix__linear_attn_block__ssm_conv_s4d__prompt.s.ref").read().split("; Override launch")[0]

def kernel_desc(name, vgpr, sgpr=100, accum=None):
    accum = accum or ((vgpr + 3)//4*4)
    return f""".p2align 6
.amdhsa_kernel {name}
  .amdhsa_next_free_vgpr {vgpr}
  .amdhsa_next_free_sgpr {sgpr}
  .amdhsa_accum_offset {accum}
  .amdhsa_group_segment_fixed_size 0
  .amdhsa_kernarg_size 112
  .amdhsa_user_sgpr_count 2
  .amdhsa_user_sgpr_kernarg_segment_ptr 1
  .amdhsa_system_sgpr_workgroup_id_x 1
.end_amdhsa_kernel
"""

def k1(parts=("A","B")):
    A = Asm(); I = A.I
    A.raw(".globl k1_kernel\n.p2align 10\n.type k1_kernel,@function\nk1_kernel:")
    I("s_cmp_ge_u32 s2, 256")
    I("s_cbranch_scc1 K1_exit")
    import k1b
    if k1b.STAMP:
        I("s_memtime s[72:73]")
        I("s_memrealtime s[92:93]")
    I("s_load_dwordx16 s[16:31], s[0:1], 0")
    I("s_load_dwordx8 s[32:39], s[0:1], 64")
    I("s_load_dwordx4 s[40:43], s[0:1], 96")
    I("s_getpc_b64 s[12:13]")
    A.raw("K1_pc:")
    I("s_bfe_u32 s14, s2, 0x20003")
    I("s_lshl_b32 s14, s14, 13")
    I("v_lshl_add_u32 v2, v0, 4, s14")
    I("s_sub_u32 s12, s12, K1_pc-k1_kernel")
    I("s_subb_u32 s13, s13, 0")
    I("v_min_u32 v2, CODE_END-k1_kernel-16, v2")
    I("global_load_dwordx4 v[252:255], v2, s[12:13]")
    I("v_lshrrev_b32 v1, 6, v0")
    I(f"s_and_b32 {s(S_XCD)}, s2, 7")
    I(f"s_lshr_b32 {s(S_J)}, s2, 3")
    import os
    if os.environ.get("AFIRST"): I(f"s_xor_b32 {s(S_J)}, {s(S_J)}, 16")
    I(f"v_readfirstlane_b32 {s(S_WV)}, v1")
    I(f"s_cmp_ge_u32 {s(S_J)}, 16")
    A.branch("s_cbranch_scc1 K1_A")
    import k1a
    def mid():
        A.label("K1_A")
        k1a.gen_A(A)
    gen_B(A, mid)
    A.label("K1_exit")
    I("s_endpgm")
    return A

def build(parts=("A","B"), with_k2=True, path="gated_mix__linear_attn_block__ssm_conv_s4d__prompt.s"):
    out = HEADER
    out += "; @launch kernel=k1_kernel grid=(256,1,1) block=(512,1,1) lds=163840\n"
    if with_k2:
        import k2
        out += k2.LAUNCH
    out += '.amdgcn_target "amdgcn-amd-amdhsa--gfx950"\n.text\n'
    a1 = k1(parts)
    out += a1.text()
    print("k1 instrs", a1.count, "nops", a1.nops)
    if with_k2:
        a2 = k2.gen()
        out += a2.text()
        print("k2 instrs", a2.count, "nops", a2.nops)
    out += ".p2align 10\nCODE_END:\n"
    out += '.section .rodata,"a"\n'
    out += kernel_desc("k1_kernel", 256)
    if with_k2: out += kernel_desc("k2_kernel", k2.VGPRS)
    open(path, "w").write(out)

if __name__ == "__main__":
    if "stamp" in sys.argv:
        import k1b; k1b.STAMP = True
    if len(sys.argv) > 1 and sys.argv[1] == "B":
        build(("B",), False, "kB.s")
    elif len(sys.argv) > 1 and sys.argv[1] == "AB":
        build(("A","B"), False, "kAB.s")
    elif "out" in sys.argv:
        build(path=sys.argv[sys.argv.index("out")+1])
    elif "stamp" in sys.argv:
        build(path="kS.s")
    else:
        build()
```

```python
from asmlib import *
from k1b import *
import k1b

RG = 16384
XREG = [0,1,2,3,4,5,6,8]
WREG = [7,8,9,7,8,9,7,9]
QOFF = [7*RG, 7*RG+8192, 9*RG, 9*RG+8192, 7*RG, 7*RG+8192, 4*RG, 4*RG+8192]
QORD = [0,4,1,5,2,6,3,7]
RED = 0
REDSZ = 4352
PERM = [0,2,4,6,1,3,5,7]
import os
LATE1 = int(os.environ.get('LATE1', 0))
import os
B9POS, B10POS, B11I, B10I = eval(os.environ.get('BPOS', '40, 110, 25, 13'))

def phi_list(acc, out, tmp, sL, sEPS, pk=True):
    L = []
    if not pk:
        for r in range(16): L.append(f"v_mul_f32 {v(tmp+r)}, {s(sL)}, {v(acc+r)}")
        for r in range(16):
            L.append(f"v_exp_f32 {v(tmp+r)}, {v(tmp+r)} clamp")
            L.append(f"v_max_f32 {v(acc+r)}, {s(sEPS)}, {v(acc+r)}")
        for r in range(16): L.append(f"v_add_f32 {v(acc+r)}, {v(acc+r)}, {v(tmp+r)}")
        for p in range(8): L.append(f"v_cvt_pk_bf16_f32 {v(out+p)}, {v(acc+2*p)}, {v(acc+2*p+1)}")
        return L
    for p in range(8): L.append(f"v_pk_mul_f32 {v(tmp+2*p,2)}, {v(acc+2*p,2)}, {s(sL,2)}")
    for r in range(16):
        L.append(f"v_exp_f32 {v(tmp+r)}, {v(tmp+r)} clamp")
        L.append(f"v_max_f32 {v(acc+r)}, {s(sEPS)}, {v(acc+r)}")
    for p in range(8): L.append(f"v_pk_add_f32 {v(acc+2*p,2)}, {v(acc+2*p,2)}, {v(tmp+2*p,2)}")
    for p in range(8): L.append(f"v_cvt_pk_bf16_f32 {v(out+p)}, {v(acc+2*p)}, {v(acc+2*p+1)}")
    return L

def gen_A(A):
    I = A.I
    sRB, sHQ, sROT, sT, sT2, sLW = 44, 45, 46, 47, 48, 49
    sRH, sHP = 50, 51
    sSRX, sSRW, sSRA = 52, 56, 60
    sL, sEPS = 64, 66
    sCX, sCW = 8, 9
    sPQ = 70
    sMX, sMW = 15, 7
    sA, sB = 10, 11
    vX0, vX1, vW = 2, 3, 9
    vT = 10
    vXA = 16
    vWA = 28
    I(f"s_sub_u32 {s(sT)}, {s(S_J)}, 16")
    I(f"s_lshr_b32 {s(sRB)}, {s(sT)}, 2")
    I(f"s_and_b32 {s(sHQ)}, {s(sT)}, 3")
    I(f"s_add_u32 {s(sROT)}, {s(sRB)}, {s(sHQ)}")
    I(f"s_and_b32 {s(sROT)}, {s(sROT)}, 3")
    I(f"s_lshl_b32 {s(sROT)}, {s(sROT)}, 1")
    I(f"s_lshr_b32 {s(sT)}, {s(S_XCD)}, 1")
    I(f"s_lshl_b32 {s(sT)}, {s(sT)}, 2")
    I(f"s_add_u32 {s(sRB)}, {s(sRB)}, {s(sT)}")
    I(f"s_and_b32 {s(sT)}, {s(S_XCD)}, 1")
    I(f"s_lshl_b32 {s(sT)}, {s(sT)}, 2")
    I(f"s_add_u32 {s(sHQ)}, {s(sHQ)}, {s(sT)}")
    I("v_and_b32 v1, 63, v0")
    I(f"s_and_b32 {s(sLW)}, {s(S_WV)}, 3")
    I(f"v_lshrrev_b32 {v(vT)}, 3, v1")
    I(f"v_and_b32 {v(vT+1)}, 7, v1")
    I(f"v_lshrrev_b32 {v(vT+2)}, 4, v1")
    I(f"v_xor_b32 {v(vT+3)}, {v(vT+1)}, {v(vT+2)}")
    I(f"v_lshlrev_b32 {v(vT+3)}, 4, {v(vT+3)}")
    I(f"v_lshl_add_u32 {v(vX0)}, {v(vT)}, 10, {v(vT+3)}")
    I(f"v_xor_b32 {v(vX1)}, 64, {v(vX0)}")
    I(f"v_and_b32 {v(vT+2)}, 1, {v(vT+2)}")
    I(f"v_lshlrev_b32 {v(vT+2)}, 2, {v(vT+2)}")
    I(f"v_xor_b32 {v(vT+3)}, {v(vT+1)}, {v(vT+2)}")
    I(f"v_lshlrev_b32 {v(vT+3)}, 4, {v(vT+3)}")
    I(f"v_mul_u32_u24 {v(vW)}, 3072, {v(vT)}")
    I(f"v_add_u32 {v(vW)}, {v(vW)}, {v(vT+3)}")
    I(f"s_lshl_b32 {s(sCX)}, {s(sRB)}, 17")
    I(f"s_lshl_b32 {s(sT)}, {s(sLW)}, 15")
    I(f"s_add_u32 {s(sCX)}, {s(sCX)}, {s(sT)}")
    I(f"s_mul_i32 {s(sCW)}, {s(sLW)}, {16*3072}")
    I(f"s_lshl_b32 {s(sT)}, {s(sHQ)}, 7")
    I(f"s_add_u32 {s(sCW)}, {s(sCW)}, {s(sT)}")
    I(f"s_lshl_b32 {s(sMX)}, {s(sLW)}, 12")
    I(f"s_lshl_b32 {s(sMW)}, {s(sLW)}, 11")
    I(f"s_mov_b32 {s(sSRX+2)}, 0x200000")
    I(f"s_mov_b32 {s(sSRX+3)}, 0x00020000")
    I(f"s_mov_b32 {s(sSRW+2)}, 0x180000")
    I(f"s_mov_b32 {s(sSRW+3)}, 0x00020000")
    I(f"s_cmp_lt_u32 {s(S_WV)}, 4")
    A.branch("s_cbranch_scc1 A_setA")

    def srds():
        I(f"s_mov_b32 {s(sSRX)}, {s(S_X)}")
        I(f"s_mov_b32 {s(sSRX+1)}, {s(S_X+1)}")
        I(f"s_mov_b32 {s(sSRW)}, {s(S_WQKV)}")
        I(f"s_mov_b32 {s(sSRW+1)}, {s(S_WQKV+1)}")
    def chunk(n):
        I(f"s_add_u32 s12, {s(sROT)}, {PERM[n]}")
        I(f"s_and_b32 s12, s12, 7")
    def issue_x(n):
        I(f"s_lshl_b32 {s(sA)}, s12, 7")
        I(f"s_add_u32 m0, {s(sMX)}, {XREG[n]*RG}")
        I(f"s_add_u32 {s(sA)}, {s(sA)}, {s(sCX)}")
        for i in range(4):
            if i:
                I(f"s_add_u32 m0, m0, 1024"); I(f"s_add_u32 {s(sA)}, {s(sA)}, 8192")
            I(f"buffer_load_dwordx4 {v(vX1 if i & 1 else vX0)}, {s(sSRX,4)}, {s(sA)} offen lds")
    def issue_w(parts):
        I(f"s_mul_i32 {s(sB)}, s12, {64*3072}")
        I(f"s_add_u32 {s(sB)}, {s(sB)}, {s(sCW)}")
        for col, lds in parts:
            for h in range(2):
                I(f"s_add_u32 m0, {s(sMW)}, {lds + 1024*h}")
                I(f"s_add_u32 {s(sA)}, {s(sB)}, {col + h*8*3072}")
                I(f"buffer_load_dwordx4 {v(vW)}, {s(sSRW,4)}, {s(sA)} offen lds")
    def kvparts(n): return [(1024, WREG[n]*RG), (2048, WREG[n]*RG + 8192)]
    def frag_addrs():
        I(f"s_lshr_b32 {s(sRH)}, {s(sLW)}, 1")
        I(f"s_and_b32 {s(sHP)}, {s(sLW)}, 1")
        I(f"v_and_b32 {v(vT)}, 31, v1")
        I(f"v_lshrrev_b32 {v(vT+1)}, 5, v1")
        I(f"v_bfe_u32 {v(vT+2)}, {v(vT)}, 1, 3")
        I(f"v_xor_b32 {v(vT+2)}, {v(vT+2)}, {v(vT+1)}")
        I(f"s_lshl_b32 {s(sT)}, {s(sRH)}, 13")
        I(f"v_lshl_add_u32 {v(vT+3)}, {v(vT)}, 7, {s(sT)}")
        for ks in range(4):
            I(f"v_xor_b32 {v(vT+4)}, {2*ks}, {v(vT+2)}")
            I(f"v_lshl_add_u32 {v(vXA+ks)}, {v(vT+4)}, 4, {v(vT+3)}")
            I(f"v_add_u32 {v(vXA+4+ks)}, 0x10000, {v(vXA+ks)}")
            I(f"v_add_u32 {v(vXA+8+ks)}, 0x20000, {v(vXA+ks)}")
        I(f"v_bfe_u32 {v(vT)}, v1, 2, 2")
        I(f"v_lshl_add_u32 {v(vT+2)}, {v(vT+1)}, 3, {v(vT)}")
        I(f"v_lshlrev_b32 {v(vT+2)}, 7, {v(vT+2)}")
        I(f"v_bfe_u32 {v(vT+3)}, v1, 4, 1")
        I(f"v_bfe_u32 {v(vT+4)}, v1, 1, 1")
        I(f"v_lshl_add_u32 {v(vT+3)}, {v(vT+3)}, 1, {v(vT+4)}")
        I(f"v_bfe_u32 {v(vT+4)}, v1, 3, 1")
        I(f"v_xor_b32 {v(vT+4)}, {s(sHP)}, {v(vT+4)}")
        I(f"v_lshl_add_u32 {v(vT+3)}, {v(vT+4)}, 2, {v(vT+3)}")
        I(f"v_lshl_add_u32 {v(vT+2)}, {v(vT+3)}, 4, {v(vT+2)}")
        I(f"v_and_b32 {v(vT+4)}, 1, v1")
        I(f"v_lshl_add_u32 {v(vWA)}, {v(vT+4)}, 3, {v(vT+2)}")
        I(f"v_add_u32 {v(vWA+1)}, {7*RG}, {v(vWA)}")
        I(f"v_add_u32 {v(vWA)}, {4*RG}, {v(vWA)}")
        I(f"s_mov_b32 {s(sL)}, 0x{f32bits(LOG2E):08x}")
        I(f"s_mov_b32 {s(sL+1)}, 0x{f32bits(LOG2E):08x}")
        I(f"s_mov_b32 {s(sEPS)}, 0x{f32bits(1e-6):08x}")
    def xrd(dst, n, ks, rt):
        off = XREG[n]*RG + 4096*rt
        return f"ds_read_b128 {v(dst,4)}, {v(vXA + 4*(off >> 16) + ks)} offset:{off & 0xffff}"
    def wrd(dst, base, ks, h):
        off = base + 2048*ks + 512*h
        if off >= 7*RG: return f"ds_read_b64_tr_b16 {v(dst,2)}, {v(vWA+1)} offset:{off - 7*RG}"
        return f"ds_read_b64_tr_b16 {v(dst,2)}, {v(vWA)} offset:{off - 4*RG}"

    I("s_waitcnt lgkmcnt(0)")
    stamp(A, 1)
    srds()
    chunk(0); issue_w(kvparts(0)); issue_x(0)
    frag_addrs()
    vGA, vG16 = 30, 33
    GWF, GXF, GACC = 128, 160, 164
    QACC = 64
    I(f"v_and_b32 {v(vT)}, 15, v1")
    I(f"s_lshl_b32 {s(sT)}, {s(sHQ)}, 4")
    I(f"v_add_u32 {v(vT)}, {s(sT)}, {v(vT)}")
    I(f"v_lshrrev_b32 {v(vT+1)}, 4, v1")
    I(f"v_bfe_u32 {v(vT+2)}, {v(vT)}, 1, 3")
    I(f"v_xor_b32 {v(vT+2)}, {v(vT+2)}, {v(vT+1)}")
    I(f"v_lshlrev_b32 {v(vT+2)}, 4, {v(vT+2)}")
    I(f"v_lshl_add_u32 {v(vGA)}, {v(vT)}, 7, {v(vT+2)}")
    I(f"s_lshl_b32 {s(sT)}, {s(sHP)}, 6")
    I(f"v_xor_b32 {v(vGA)}, {s(sT)}, {v(vGA)}")
    I(f"v_add_u32 {v(vGA+1)}, 0x10000, {v(vGA)}")
    I(f"v_add_u32 {v(vGA+2)}, 0x20000, {v(vGA)}")
    I(f"v_lshlrev_b32 {v(vG16)}, 4, {v(vT+1)}")
    I(f"v_add_u32 {v(vT+3)}, {s(sT)}, {v(vG16)}")
    for r in range(32): I(f"v_mov_b32 {v(QACC+r)}, {s(sEPS)}")
    chunk(1); issue_w(kvparts(1))
    if not LATE1: issue_x(1)
    nv = 12 if LATE1 else 16
    land = {0: 8, 1: 16}
    def gwload(n):
        I(f"s_lshl_b32 {s(sA)}, s12, 7")
        I(f"v_add_u32 {v(vT)}, {s(sA)}, {v(vT+3)}")
        I(f"global_load_dwordx4 {v(GWF+4*n,4)}, {v(vT)}, {s(S_GW,2)}")
    gl = {}
    for n in range(8):
        I(f"s_waitcnt vmcnt({nv - land[n]})")
        I("s_barrier")
        if n == 0:
            if LATE1:
                chunk(1); issue_x(1); nv += 4
            for m in range(2):
                chunk(m); gwload(m); nv += 1; gl[m] = nv
        if n + 2 <= 6:
            chunk(n+2); issue_w(kvparts(n+2)); issue_x(n+2); nv += 8; land[n+2] = nv
            gwload(n+2); nv += 1; gl[n+2] = nv
        elif n == 5:
            chunk(7); issue_x(7); nv += 4
            gwload(7); nv += 1; gl[7] = nv
        elif n == 6:
            chunk(7); issue_w(kvparts(7)); nv += 4; land[7] = nv
        elif n == 7:
            for m in range(2):
                chunk(QORD[m]); issue_w([(0, QOFF[m])]); nv += 2
        if n in (5, 6, 7):
            ms = {5: (0, 1), 6: (2, 3, 4), 7: (5, 6)}[n]
            for k, m in enumerate(ms):
                off = XREG[m]*RG
                I(f"ds_read_b128 {v(216+4*k,4)}, {v(vGA + (off >> 16))} offset:{off & 0xffff}")
            I(f"s_waitcnt vmcnt({nv - gl[ms[-1]]}) lgkmcnt(0)")
            for k, m in enumerate(ms):
                I(f"v_mfma_f32_16x16x32_bf16 {v(GACC,4)}, {v(216+4*k,4)}, {v(GWF+4*m,4)}, {'0' if m == 0 else v(GACC,4)}")
    off = XREG[7]*RG
    I(f"ds_read_b128 {v(GXF,4)}, {v(vGA + (off >> 16))} offset:{off & 0xffff}")
    I(f"s_lshl_b32 {s(sT)}, {s(sRB)}, 2")
    I(f"s_lshl_b32 {s(sT2)}, {s(sRH)}, 1")
    I(f"s_add_u32 {s(sT)}, {s(sT)}, {s(sT2)}")
    I(f"s_lshl_b32 {s(sT)}, {s(sT)}, 5")
    I(f"s_lshl_b32 {s(sT2)}, {s(sHQ)}, 2")
    I(f"s_add_u32 {s(sT)}, {s(sT)}, {s(sT2)}")
    I(f"s_lshl_b32 {s(sT2)}, {s(sHP)}, 1")
    I(f"s_add_u32 {s(sT)}, {s(sT)}, {s(sT2)}")
    I(f"s_lshl_b32 {s(sT)}, {s(sT)}, 10")
    I(f"s_add_u32 {s(sPQ)}, {s(S_WS)}, {s(sT)}")
    I(f"s_addc_u32 {s(sPQ+1)}, {s(S_WS+1)}, 0")
    I(f"v_lshlrev_b32 v2, 4, v1")
    I(f"v_add_u32 v3, 0x8000, v2")
    I("s_waitcnt lgkmcnt(0)")
    I(f"v_mfma_f32_16x16x32_bf16 {v(GACC,4)}, {v(GXF,4)}, {v(GWF+28,4)}, {v(GACC,4)}")
    q = LQ(A)
    NS = 4
    QX = lambda i: 168 + 12*(i % NS)
    def qx(i, rt): q.issue(xrd(QX(i)+4*rt, QORD[i//4], i % 4, rt), ("x", i, rt))
    def qw(i, h): q.issue(wrd(QX(i)+8+2*h, QOFF[i//4], i % 4, h), ("w", i))
    for i in range(3):
        qx(i, 0); qx(i, 1)
    I("s_waitcnt vmcnt(0)")
    I("s_barrier")
    stamp(A, 3)
    if k1b.STAMP: q.reset()
    if os.environ.get("QPRIO"): I("s_setprio 1")
    wnext = 0
    def wlimit(i):
        return state["lim"]
    state = {"lim": 8}
    for i in range(3):
        qw(i, 0); qw(i, 1)
    wnext = 3
    wq_pend = []
    for i in range(32):
        for rt in range(2):
            q.need(("w", i), ("x", i, rt))
            I(f"v_mfma_f32_32x32x16_bf16 {v(QACC+16*rt,16)}, {v(QX(i)+8,4)}, {v(QX(i)+4*rt,4)}, {v(QACC+16*rt,16)}")
            if i == 5 and rt == 0:
                q.need(("w", 7), ("x", 7, 1))
                I("s_barrier"); state["lim"] = 16
                q.issue(f"ds_write_b128 {v(vT+3)}, {v(GACC,4)} offset:{RED+2*REDSZ}", "gl")
            if i == B10I and rt == 0:
                q.need("gl")
                I("s_barrier"); state["lim"] = 32
            if i == B11I and rt == 0:
                I("s_barrier")
            j = i + 3
            if j < 32:
                qx(j, rt)
                wq_pend.append((j, rt))
            nw = 0
            while wq_pend and wq_pend[0][0] < state["lim"] and nw < 3:
                qw(*wq_pend.pop(0)); nw += 1
    assert not wq_pend
    stamp(A, 4)
    for x in phi_list(QACC, 32, 96, sL, sEPS): I(x)
    I(f"global_store_dwordx4 v2, v[32:35], {s(sPQ,2)} sc0 sc1")
    I(f"global_store_dwordx4 v2, v[36:39], {s(sPQ,2)} offset:1024 sc0 sc1")
    for x in phi_list(QACC+16, 40, 96, sL, sEPS): I(x)
    I(f"global_store_dwordx4 v3, v[40:43], {s(sPQ,2)} sc0 sc1")
    I(f"global_store_dwordx4 v3, v[44:47], {s(sPQ,2)} offset:1024 sc0 sc1")
    stamp(A, 5)
    stamp_out(A, 9)
    I("s_endpgm")

    A.label("A_setA")
    frag_addrs()
    ACC = 64
    K = lambda rt: ACC + 16*rt
    V = lambda rt: ACC + 32 + 16*rt
    FR = lambda i: 128 + 16*(i % 4)
    I("s_waitcnt lgkmcnt(0)")
    stamp(A, 1)
    srds()
    I(f"s_mul_i32 {s(sT)}, {s(sHQ)}, {REDSZ}")
    I(f"s_add_u32 {s(sT)}, {s(sT)}, {WS_ACC}")
    I(f"s_add_u32 {s(sSRA)}, {s(S_WS)}, {s(sT)}")
    I(f"s_addc_u32 {s(sSRA+1)}, {s(S_WS+1)}, 0")
    I(f"s_mov_b32 {s(sSRA+2)}, {REDSZ}")
    I(f"s_mov_b32 {s(sSRA+3)}, 0x00020000")
    I(f"s_lshl_b32 {s(sT)}, {s(sHQ)}, 2")
    I(f"v_mov_b32 v5, {s(sT)}")
    I(f"s_or_b32 {s(sT)}, {s(sRB)}, {s(S_WV)}")
    I(f"s_cmp_eq_u32 {s(sT)}, 0")
    A.branch("s_cbranch_scc0 A_nozero")
    for r in range(4): I(f"v_mov_b32 {v(32+r)}, 0")
    I(f"v_lshlrev_b32 {v(vT)}, 4, v1")
    for k in range(4):
        I(f"buffer_store_dwordx4 v[32:35], {v(vT)}, {s(sSRA,4)}, 0 offen offset:{1024*k} sc0 sc1")
    I(f"v_add_u32 {v(vT+1)}, 4096, {v(vT)}")
    I(f"buffer_store_dwordx4 v[32:35], {v(vT+1)}, {s(sSRA,4)}, 0 offen sc0 sc1")
    I("s_waitcnt vmcnt(0)")
    I(f"v_mov_b32 {v(vT+1)}, 1")
    I(f"global_store_dword v5, {v(vT+1)}, {s(S_DBG,2)} sc0 sc1")
    A.label("A_nozero")
    for r in range(32): I(f"v_mov_b32 {v(ACC+r)}, {s(sEPS)}")
    vRK, vRZ, vAT = 30, 31, 6
    I(f"v_bfe_u32 {v(vT)}, v1, 4, 1")
    I(f"v_cmp_eq_u32 s[68:69], 1, {v(vT)}")
    I(f"v_lshrrev_b32 {v(vT+1)}, 5, v1")
    I(f"v_lshl_add_u32 {v(vT+1)}, {v(vT)}, 1, {v(vT+1)}")
    I(f"s_lshl_b32 {s(sT)}, {s(sHP)}, 2")
    I(f"v_add_u32 {v(vT+1)}, {s(sT)}, {v(vT+1)}")
    I(f"v_and_b32 {v(vT+2)}, 15, v1")
    I(f"v_lshl_add_u32 {v(vT+3)}, {v(vT+1)}, 5, {v(vT+2)}")
    I(f"s_mul_i32 {s(sT)}, {s(sRH)}, {REDSZ}")
    I(f"v_lshl_add_u32 {v(vRK)}, {v(vT+3)}, 4, {s(sT)}")
    I(f"v_lshl_add_u32 {v(vRZ)}, {v(vT+1)}, 5, {s(sT)}")
    I(f"v_lshlrev_b32 {v(vAT)}, 2, v0")
    I(f"v_add_u32 {v(vAT+1)}, 4096, {v(vAT)}")
    I("v_mov_b32 v4, 1")
    vONE = 248
    q = LQ(A)
    def rl(i):
        n, ks = i // 4, i % 4; f = FR(i); b = WREG[n]*RG
        return [(xrd(f, n, ks, 0), ("a", i)), (wrd(f+8, b, ks, 0), None), (wrd(f+10, b, ks, 1), ("a", i)),
                (wrd(f+12, b+8192, ks, 0), None), (wrd(f+14, b+8192, ks, 1), ("b", i)), (xrd(f+4, n, ks, 1), ("c", i))]
    I("s_barrier")
    stamp(A, 2)
    pend = []
    for i in range(32): pend += [(i,) + x for x in rl(i)]
    lim = 4
    def pop(k, cur):
        for _ in range(k):
            if pend and pend[0][0] < lim and pend[0][0] <= cur + 3:
                i, t, tag = pend.pop(0); q.issue(t, tag)
    pop(12, 0)
    for i in range(32):
        f = FR(i); X = lambda rt: v(f+4*rt,4)
        seq = [(K(0), X(0), v(f+8,4), "a"), (V(0), X(0), v(f+12,4), "b"), (K(1), X(1), v(f+8,4), "c"), (V(1), X(1), v(f+12,4), "c")]
        for m, (d, a_, b_, tg) in enumerate(seq):
            q.need((tg, i))
            c = "0" if (i == 0 and m in (1, 3)) else v(d,16)
            I(f"v_mfma_f32_32x32x16_bf16 {v(d,16)}, {a_}, {b_}, {c}")
            if i % 4 == 2 and m == 1:
                q.need(("c", i+1))
                I("s_barrier")
                lim += 4
                if i == 30:
                    for mm in (2, 3):
                        chunk(QORD[mm]); issue_w([(0, QOFF[mm])])
                if i == 18:
                    I(f"s_cmp_eq_u32 {s(sLW)}, 1")
                    I("s_cbranch_scc0 A_nf")
                    I(f"global_load_dword v4, v5, {s(S_DBG,2)} sc0 sc1")
                    A.raw("A_nf:")
            pop(2 if m % 2 == 0 else 1, i - 1 if m < 3 else i)
            if i % 4 >= 2: pop(1, i - 1 if m < 3 else i)
    assert not pend
    stamp(A, 3)
    PKK, PVV, TMP = 32, 48, 128
    D, Z = 144, 160
    for r in range(4): I(f"v_mov_b32 {v(vONE+r)}, 0x3f803f80")
    L = []
    for rt in range(2):
        L += phi_list(K(rt), PKK+8*rt, TMP, sL, sEPS, pk=False)
        for p in range(8):
            L.append(f"v_cvt_pk_bf16_f32 {v(PVV+8*rt+p)}, {v(V(rt)+2*p)}, {v(V(rt)+2*p+1)}")
        for n in (2*rt, 2*rt+1):
            L.append(f"v_mfma_f32_32x32x16_bf16 {v(D,16)}, {v(PKK+4*n,4)}, {v(PVV+4*n,4)}, {'0' if n == 0 else v(D,16)}")
            L.append(f"v_mfma_f32_32x32x16_bf16 {v(Z,16)}, {v(PKK+4*n,4)}, {v(vONE,4)}, {'0' if n == 0 else v(Z,16)}")
    for n, x in enumerate(L):
        if n == B9POS:
            I("s_waitcnt vmcnt(0)")
            I("s_barrier")
            stamp(A, 4)
            for mm in range(4, 8):
                chunk(QORD[mm]); issue_w([(0, QOFF[mm])])
        if n == B10POS:
            I("s_waitcnt vmcnt(0)")
            I("s_barrier")
            stamp(A, 5)
        I(x)
    A.label("A_poll", flush=False)
    I("v_readfirstlane_b32 s12, v4")
    I("s_cmp_lg_u32 s12, 0")
    A.branch("s_cbranch_scc1 A_polled")
    I("s_sleep 2")
    I(f"global_load_dword v4, v5, {s(S_DBG,2)} sc0 sc1")
    I("s_waitcnt vmcnt(0)")
    I("s_branch A_poll")
    A.label("A_polled")
    SEL = 64
    for i in range(8): I(f"v_cndmask_b32 {v(SEL+i)}, {v(D+i)}, {v(D+8+i)}, s[68:69]")
    I(f"ds_write_b128 {v(vRK)}, {v(SEL,4)} offset:{RED}")
    I(f"ds_write_b128 {v(vRK)}, {v(SEL+4,4)} offset:{RED+256}")
    for i in range(8): I(f"v_cndmask_b32 {v(SEL+8+i)}, {v(Z+i)}, {v(Z+8+i)}, s[68:69]")
    I("s_mov_b32 exec_lo, 0x00010001"); I("s_mov_b32 exec_hi, 0x00010001")
    I(f"ds_write_b128 {v(vRZ)}, {v(SEL+8,4)} offset:{RED+4096}")
    I(f"ds_write_b128 {v(vRZ)}, {v(SEL+12,4)} offset:{RED+4112}")
    I("s_mov_b64 exec, -1")
    I("s_waitcnt lgkmcnt(0)")
    stamp(A, 6)
    I("s_barrier")
    stamp(A, 7)
    for k in range(5):
        I(f"ds_read_b32 {v(32+2*k)}, {v(vAT)} offset:{RED+1024*k}")
        I(f"ds_read_b32 {v(33+2*k)}, {v(vAT)} offset:{RED+1024*k+REDSZ}")
    for k in range(5):
        I(f"s_waitcnt lgkmcnt({8-2*k})")
        I(f"v_add_f32 {v(32+2*k)}, {v(32+2*k)}, {v(33+2*k)}")
        if k < 4: I(f"buffer_atomic_add_f32 {v(32+2*k)}, {v(vAT)}, {s(sSRA,4)}, 0 offen offset:{1024*k}")
        else: I(f"buffer_atomic_add_f32 {v(32+2*k)}, {v(vAT+1)}, {s(sSRA,4)}, 0 offen")
    I(f"s_cmp_eq_u32 {s(sLW)}, 0")
    A.branch("s_cbranch_scc0 A_gdone")
    G, G2 = 48, 52
    I(f"v_lshrrev_b32 {v(vT)}, 4, v1")
    I(f"v_lshlrev_b32 {v(vT)}, 4, {v(vT)}")
    I(f"ds_read_b128 {v(G,4)}, {v(vT)} offset:{RED+2*REDSZ}")
    I(f"ds_read_b128 {v(G2,4)}, {v(vT)} offset:{RED+2*REDSZ+64}")
    I("s_waitcnt lgkmcnt(0)")
    for r in range(4): I(f"v_add_f32 {v(G+r)}, {v(G+r)}, {v(G2+r)}")
    def rb4():
        I(f"v_cvt_pk_bf16_f32 {v(G2)}, {v(G)}, {v(G+1)}")
        I(f"v_cvt_pk_bf16_f32 {v(G2+1)}, {v(G+2)}, {v(G+3)}")
        I(f"v_lshlrev_b32 {v(G)}, 16, {v(G2)}")
        I(f"v_and_b32 {v(G+1)}, 0xffff0000, {v(G2)}")
        I(f"v_lshlrev_b32 {v(G+2)}, 16, {v(G2+1)}")
        I(f"v_and_b32 {v(G+3)}, 0xffff0000, {v(G2+1)}")
    rb4()
    for r in range(4): I(f"v_mul_f32 {v(G+r)}, 0x{f32bits(-LOG2E):08x}, {v(G+r)}")
    for r in range(4): I(f"v_exp_f32 {v(G+r)}, {v(G+r)}")
    for r in range(4): I(f"v_add_f32 {v(G+r)}, 1.0, {v(G+r)}")
    for r in range(4): I(f"v_rcp_f32 {v(G+r)}, {v(G+r)}")
    rb4()
    I(f"s_lshl_b32 {s(sT)}, {s(sRB)}, 9")
    I(f"s_lshl_b32 {s(sT2)}, {s(sHQ)}, 6")
    I(f"s_add_u32 {s(sT)}, {s(sT)}, {s(sT2)}")
    I(f"s_add_u32 {s(sT)}, {s(sT)}, {WS_G}")
    I(f"v_add_u32 {v(vT)}, {s(sT)}, {v(vT)}")
    I(f"global_store_dwordx4 {v(vT)}, {v(G,4)}, {s(S_WS,2)} sc0 sc1")
    A.label("A_gdone")
    stamp_out(A, 9)
    I("s_endpgm")
```

```python
from asmlib import *
from k1b import *
import k1b

BTOFF = 65536
RBUF = BTOFF + 8192
ZL = RBUF + 4*3*4096
LDS = ZL + 1024
LAUNCH = f"; @launch kernel=k2_kernel grid=(256,1,1) block=(256,1,1) lds={LDS}\n"
VGPRS = 256
DBGSTAMP = True
LA = 3

def gen():
    A = Asm(); I = A.I
    A.raw(".globl k2_kernel\n.p2align 8\n.type k2_kernel,@function\nk2_kernel:")
    I("s_cmp_ge_u32 s2, 256")
    I("s_cbranch_scc1 K2_exit")
    if k1b.STAMP:
        I("s_memtime s[72:73]")
        I("s_memrealtime s[92:93]")
    I(f"s_load_dwordx2 {s(S_WO,2)}, s[0:1], 16")
    I(f"s_load_dwordx2 {s(S_OUT,2)}, s[0:1], 88")
    I(f"s_load_dwordx2 {s(S_WS,2)}, s[0:1], 104")
    sRB, sCB, sT, sT2, sST, sNT, sWO = 44, 45, 46, 47, 48, 49, 50
    sSRO, sSRB = 52, 56
    sPQ, sAC = 60, 62
    sEPS = 64
    I("v_lshrrev_b32 v1, 6, v0")
    I(f"s_and_b32 {s(sT)}, s2, 7")
    I(f"v_readfirstlane_b32 {s(S_WV)}, v1")
    I(f"s_lshl_b32 {s(sRB)}, {s(sT)}, 2")
    I(f"s_bfe_u32 {s(sT)}, s2, 0x20003")
    I(f"s_add_u32 {s(sRB)}, {s(sRB)}, {s(sT)}")
    I(f"s_lshr_b32 {s(sCB)}, s2, 5")
    I("v_and_b32 v1, 63, v0")
    I(f"s_lshr_b32 {s(sST)}, {s(S_WV)}, 1")
    I(f"s_and_b32 {s(sNT)}, {s(S_WV)}, 1")
    vT = 2
    vOM, vTR1, vGG, vL16, vKA, vWOA, vTR, vBTA, vKS = 7, 8, 9, 10, 11, 12, 13, 14, 15
    vP0, vP1 = 248, 249
    I(f"v_lshlrev_b32 {v(vL16)}, 4, v1")
    I(f"v_lshrrev_b32 {v(vT+1)}, 5, v1")
    I(f"v_mul_u32_u24 {v(vT+2)}, 4352, {v(vT+1)}")
    I(f"v_and_b32 {v(vT)}, 31, v1")
    I(f"v_lshl_add_u32 {v(vKS)}, {v(vT)}, 3, {v(vT+2)}")
    I(f"v_add_u32 {v(vKS)}, 4096, {v(vKS)}")
    I(f"v_lshrrev_b32 {v(vT)}, 3, v1")
    I(f"v_and_b32 {v(vT+2)}, 7, v1")
    I(f"v_bfe_u32 {v(vT+3)}, v1, 4, 1")
    I(f"v_lshlrev_b32 {v(vT+3)}, 2, {v(vT+3)}")
    I(f"v_xor_b32 {v(vT+2)}, {v(vT+2)}, {v(vT+3)}")
    I(f"v_lshlrev_b32 {v(vT+2)}, 4, {v(vT+2)}")
    I(f"v_lshl_add_u32 {v(vWOA)}, {v(vT)}, 10, {v(vT+2)}")
    I(f"s_lshl_b32 {s(sT)}, {s(sST)}, 15")
    I(f"v_add_u32 {v(vP0)}, {s(sT)}, {v(vL16)}")
    I(f"v_xor_b32 {v(vP1)}, 0x8000, {v(vP0)}")
    sKO, sPO, sWOt = 8, 24, 80
    if k1b.STAMP: sWOt = 84
    sSRS = 60
    I(f"s_mul_i32 {s(sT)}, {s(S_WV)}, {2*4352}")
    I(f"s_add_u32 {s(sT)}, {s(sT)}, {WS_ACC}")
    I(f"s_lshl_b32 s6, {s(sRB)}, 16")
    I(f"s_lshl_b32 {s(sT2)}, {s(S_WV)}, 13")
    I(f"s_add_u32 s6, s6, {s(sT2)}")
    I(f"s_lshl_b32 {s(sWO)}, {s(S_WV)}, 17")
    I(f"s_lshl_b32 {s(sT2)}, {s(sCB)}, 7")
    I(f"s_add_u32 {s(sWO)}, {s(sWO)}, {s(sT2)}")
    for h in range(8):
        I(f"s_add_u32 s7, {s(sCB)}, {h}")
        I(f"s_and_b32 s7, s7, 7")
        I(f"s_lshl_b32 {s(sT2)}, s7, 10")
        I(f"s_add_u32 {s(sPO+h)}, s6, {s(sT2)}")
        I(f"s_add_u32 {s(sKO+h)}, {s(sT)}, {s(sT2)}")
        I(f"s_lshl_b32 {s(sT2)}, s7, 14")
        I(f"s_add_u32 {s(sWOt+h)}, {s(sWO)}, {s(sT2)}")
        I(f"s_lshr_b32 s7, s7, 2")
        I(f"s_lshl_b32 s7, s7, 8")
        I(f"s_add_u32 {s(sKO+h)}, {s(sKO+h)}, s7")
    I(f"s_mov_b32 s7, {s(sT)}")
    I(f"s_lshl_b32 m0, {s(S_WV)}, 14")
    I(f"s_mov_b32 {s(sSRO+2)}, 0x80000")
    I(f"s_mov_b32 {s(sSRO+3)}, 0x00020000")
    I(f"s_mov_b32 {s(sSRS+2)}, 0x420000")
    I(f"s_mov_b32 {s(sSRS+3)}, 0x00020000")
    I(f"v_add_u32 {v(vKA)}, 8192, {v(vWOA)}")
    I("s_waitcnt lgkmcnt(0)")
    stamp(A, 1)
    I(f"s_mov_b32 {s(sSRS)}, {s(S_WS)}")
    I(f"s_mov_b32 {s(sSRS+1)}, {s(S_WS+1)}")
    I(f"s_mov_b32 {s(sSRO)}, {s(S_WO)}")
    I(f"s_mov_b32 {s(sSRO+1)}, {s(S_WO+1)}")
    KV = 16
    PQ = 80
    ACC = 144
    NUM = [208, 224]
    WF = 240
    nvm = [0]
    vm = {"n": 0}; vidx = {}
    def kvload(h): return [f"buffer_load_dwordx4 {v(KV+8*h,4)}, {v(vL16)}, {s(sSRS,4)}, {s(sKO+h)} offen"]
    def loads(h):
        L = []
        L.append(f"buffer_load_dwordx4 {v(PQ+8*h,4)}, {v(vP0)}, {s(sSRS,4)}, {s(sPO+h)} offen")
        L.append(f"buffer_load_dwordx4 {v(PQ+8*h+4,4)}, {v(vP1)}, {s(sSRS,4)}, {s(sPO+h)} offen")
        L.append(f"buffer_load_dwordx4 {v(vWOA)}, {s(sSRO,4)}, {s(sWOt+h)} offen lds")
        L.append(f"s_add_u32 m0, m0, 1024")
        L.append(f"s_nop 0")
        L.append(f"buffer_load_dwordx4 {v(vWB)}, {s(sSRO,4)}, {s(sWOt+h)} offen lds")
        L.append(f"s_add_u32 m0, m0, 1024")
        L.append(("done", h))
        return L
    vWB = 7
    I(f"v_mov_b32 {v(vWB)}, {v(vKA)}")
    def emit_vm(L):
        for x in L:
            if isinstance(x, tuple): vidx[x[1]] = vm["n"]; continue
            I(x)
            if x.startswith(("global_load", "buffer_load")): vm["n"] += 1
    emit_vm([f"buffer_load_dwordx2 v[250:251], {v(vKS)}, {s(sSRS,4)}, s7 offen"])
    emit_vm(kvload(0) + kvload(1) + loads(0) + loads(1) + kvload(2) + kvload(3) + loads(2))
    vZW, vZR = 252, 253
    I(f"s_lshl_b32 {s(sT)}, {s(S_WV)}, 8")
    I(f"s_add_u32 {s(sT)}, {s(sT)}, {ZL}")
    I(f"s_lshl_b32 {s(sT2)}, {s(sCB)}, 3")
    I(f"v_subrev_u32 {v(vZW)}, {s(sT2)}, v1")
    I(f"v_and_b32 {v(vZW)}, 63, {v(vZW)}")
    I(f"v_lshl_add_u32 {v(vZW)}, {v(vZW)}, 2, {s(sT)}")
    I(f"v_lshrrev_b32 {v(vZR)}, 4, v1")
    I(f"v_lshl_add_u32 {v(vZR)}, {v(vZR)}, 3, {s(sT)}")
    I(f"v_bfe_u32 {v(vT)}, v1, 2, 2")
    I(f"v_lshrrev_b32 {v(vT+1)}, 5, v1")
    I(f"v_lshl_add_u32 {v(vT)}, {v(vT+1)}, 2, {v(vT)}")
    I(f"v_lshlrev_b32 {v(vT)}, 7, {v(vT)}")
    I(f"v_and_b32 {v(vT+1)}, 1, v1")
    I(f"v_bfe_u32 {v(vT+2)}, v1, 4, 1")
    I(f"v_lshl_add_u32 {v(vT+1)}, {v(vT+1)}, 1, {v(vT+2)}")
    I(f"v_bfe_u32 {v(vT+2)}, v1, 3, 1")
    I(f"v_xor_b32 {v(vT+2)}, {s(sNT)}, {v(vT+2)}")
    I(f"v_lshl_add_u32 {v(vT+1)}, {v(vT+2)}, 2, {v(vT+1)}")
    I(f"v_lshl_add_u32 {v(vT)}, {v(vT+1)}, 4, {v(vT)}")
    I(f"v_bfe_u32 {v(vT+2)}, v1, 1, 1")
    I(f"v_lshl_add_u32 {v(vT)}, {v(vT+2)}, 3, {v(vT)}")
    I(f"s_lshl_b32 {s(sT)}, {s(S_WV)}, 14")
    I(f"v_add_u32 {v(vTR)}, {s(sT)}, {v(vT)}")
    I(f"v_xor_b32 {v(vTR1)}, 64, {v(vTR)}")
    I(f"s_mov_b32 {s(sEPS)}, 0x{f32bits(1e-6):08x}")
    I(f"v_lshrrev_b32 {v(vT)}, 2, v1")
    I(f"v_and_b32 {v(vT+2)}, 3, v1")
    I(f"v_lshlrev_b32 {v(vT+2)}, 4, {v(vT+2)}")
    I(f"v_lshl_add_u32 {v(vBTA)}, {v(vT)}, 12, {v(vT+2)}")
    I(f"s_add_u32 {s(sSRB)}, {s(S_WS)}, {WS_BT}")
    I(f"s_addc_u32 {s(sSRB+1)}, {s(S_WS+1)}, 0")
    I(f"s_mov_b32 {s(sSRB+2)}, 0x200000")
    I(f"s_mov_b32 {s(sSRB+3)}, 0x00020000")
    sBO, sGO = 66, 67
    I(f"s_lshl_b32 {s(sBO)}, {s(sCB)}, 18")
    I(f"s_lshl_b32 {s(sT2)}, {s(sNT)}, 17")
    I(f"s_add_u32 {s(sBO)}, {s(sBO)}, {s(sT2)}")
    I(f"s_lshl_b32 {s(sT2)}, {s(sRB)}, 7")
    I(f"s_add_u32 {s(sBO)}, {s(sBO)}, {s(sT2)}")
    I(f"s_lshl_b32 {s(sT2)}, {s(sST)}, 6")
    I(f"s_add_u32 {s(sBO)}, {s(sBO)}, {s(sT2)}")
    I(f"s_lshl_b32 {s(sGO)}, {s(sRB)}, 8")
    I(f"s_lshl_b32 {s(sT2)}, {s(sST)}, 7")
    I(f"s_add_u32 {s(sGO)}, {s(sGO)}, {s(sT2)}")
    I(f"s_add_u32 {s(sGO)}, {s(sGO)}, {WS_G}")
    I(f"v_and_b32 {v(vGG)}, 31, v1")
    I(f"v_lshl_add_u32 {v(vGG)}, {v(vGG)}, 2, {s(sGO)}")
    def extra_loads():
        L = []
        L.append(f"s_lshl_b32 {s(sT2)}, {s(S_WV)}, 11")
        L.append(f"s_add_u32 m0, {s(sT2)}, {BTOFF}")
        L.append(f"s_add_u32 s6, {s(sBO)}, 0x10000")
        L.append(f"buffer_load_dwordx4 {v(vBTA)}, {s(sSRB,4)}, {s(sBO)} offen lds")
        L.append(f"s_add_u32 m0, m0, 1024")
        L.append(f"global_load_dword {v(vGG)}, {v(vGG)}, {s(S_WS,2)}")
        L.append(f"buffer_load_dwordx4 {v(vBTA)}, {s(sSRB,4)}, s6 offen lds")
        return L
    def norm_list(h, st):
        n = NUM[st]; o = PQ + 8*h + 4*st
        L = [f"v_add_f32 {v(n+8)}, {s(sEPS)}, {v(n+8)}", f"v_rcp_f32 {v(n+8)}, {v(n+8)}"]
        import os
        if os.environ.get("K2PK"):
            for p in range(4): L.append(f"v_pk_mul_f32 {v(n+2*p,2)}, {v(n+2*p,2)}, {v(n+8,2)} op_sel_hi:[1,0]")
        else:
            for r in range(8): L.append(f"v_mul_f32 {v(n+r)}, {v(n+r)}, {v(n+8)}")
        for p in range(4): L.append(f"v_cvt_pk_bf16_f32 {v(o+p)}, {v(n+2*p)}, {v(n+2*p+1)}")
        return L
    def proj(h, st, nt):
        o = PQ + 8*h + 4*st
        w = KV+8*h+4 if nt == 0 else WF + 4*(h & 1)
        d = ACC + 16*(2*st+nt)
        return f"v_mfma_f32_32x32x16_bf16 {v(d,16)}, {v(w,4)}, {v(o,4)}, {'0' if h == 0 else v(d,16)}"
    for t in range(1, 4):
        I(f"s_xor_b32 {s(sT)}, {s(S_WV)}, {t}")
        I(f"s_mul_i32 {s(sT)}, {s(sT)}, {3*4096}")
        I(f"s_add_u32 {s(sT)}, {s(sT)}, {RBUF}")
        I(f"v_add_u32 {v(vT+t)}, {s(sT)}, {v(vL16)}")
    I(f"v_bfe_u32 {v(vT)}, v1, 2, 2")
    I(f"v_lshrrev_b32 {v(vKA)}, 5, v1")
    I(f"v_lshl_add_u32 {v(vT)}, {v(vKA)}, 4, {v(vT)}")
    I(f"v_lshlrev_b32 {v(vT)}, 6, {v(vT)}")
    I(f"v_bfe_u32 v6, v1, 4, 1")
    I(f"v_lshl_add_u32 {v(vT)}, v6, 5, {v(vT)}")
    I(f"v_and_b32 v6, 3, v1")
    I(f"v_lshl_add_u32 {v(vT)}, v6, 3, {v(vT)}")
    I(f"s_lshl_b32 {s(sT)}, {s(S_WV)}, 11")
    I(f"s_add_u32 {s(sT)}, {s(sT)}, {BTOFF}")
    I(f"v_add_u32 {v(vT)}, {s(sT)}, {v(vT)}")
    I(f"s_mul_i32 {s(sT)}, {s(S_WV)}, {3*4096}")
    I(f"s_add_u32 {s(sT)}, {s(sT)}, {RBUF}")
    I(f"v_add_u32 v6, {s(sT)}, {v(vL16)}")
    vOA = vKS
    I(f"v_and_b32 {v(vOA)}, 31, v1")
    I(f"v_lshlrev_b32 {v(vKA)}, 5, {v(vKA)}")
    I(f"v_lshl_add_u32 {v(vOA)}, {v(vOA)}, 10, {v(vKA)}")
    I(f"s_lshl_b32 {s(sT)}, {s(sRB)}, 16")
    I(f"s_lshl_b32 {s(sT2)}, {s(sST)}, 15")
    I(f"s_add_u32 {s(sT)}, {s(sT)}, {s(sT2)}")
    I(f"s_lshl_b32 {s(sT2)}, {s(sCB)}, 7")
    I(f"s_add_u32 {s(sT)}, {s(sT)}, {s(sT2)}")
    I(f"s_lshl_b32 {s(sT2)}, {s(sNT)}, 6")
    I(f"s_add_u32 {s(sT)}, {s(sT)}, {s(sT2)}")
    I(f"v_add_u32 {v(vOA)}, {s(sT)}, {v(vOA)}")
    NL = 4
    I(f"s_waitcnt vmcnt({vm['n'] - 1})")
    I("v_cvt_pk_bf16_f32 v250, v250, v251")
    I(f"ds_write_b32 {v(vZW)}, v250")
    q = LQ(A); q.n = 1
    ZT = [250, 254]
    def zread(h): q.issue(f"ds_read_b64 {v(ZT[h & 1],2)}, {v(vZR)} offset:{32*h}", ("z", h))
    def prep(h):
        f = KV + 8*h; w1 = WF + 4*(h & 1); zt = ZT[h & 1]
        L = []
        L.append(lambda: I(f"s_waitcnt vmcnt({vm['n'] - vidx[h]})"))
        L.append(lambda: I(f"v_cvt_pk_bf16_f32 {v(f)}, {v(f)}, {v(f+1)}"))
        L.append(lambda: I(f"v_cvt_pk_bf16_f32 {v(f+1)}, {v(f+2)}, {v(f+3)}"))
        L.append(lambda: (q.need(("z", h)), I(f"v_mov_b32 {v(f+2)}, {v(zt)}")))
        L.append(lambda: I(f"v_mov_b32 {v(f+3)}, {v(zt+1)}"))
        L.append(lambda: q.issue(f"ds_read_b64_tr_b16 {v(f+4,2)}, {v(vTR)} offset:{2048*h}"))
        L.append(lambda: q.issue(f"ds_read_b64_tr_b16 {v(f+6,2)}, {v(vTR)} offset:{2048*h+1024}", ("w0", h)))
        L.append(lambda: I(f"v_permlane16_swap_b32 {v(f)}, {v(f+2)}"))
        L.append(lambda: I(f"v_permlane16_swap_b32 {v(f+1)}, {v(f+3)}"))
        if h + 1 < 8: L.append(lambda: zread(h+1))
        return L
    def w1read(h):
        w1 = WF + 4*(h & 1)
        return [lambda: q.issue(f"ds_read_b64_tr_b16 {v(w1,2)}, {v(vTR1)} offset:{2048*h}"),
                lambda: q.issue(f"ds_read_b64_tr_b16 {v(w1+2,2)}, {v(vTR1)} offset:{2048*h+1024}", ("w1", h))]
    def run(L):
        for x in L:
            if isinstance(x, (str, tuple)): emit_vm([x])
            else: x()
    zread(0)
    run(prep(0))
    stamp(A, 2)
    if k1b.STAMP: q.reset()
    for h in range(8):
        ld = loads(h+LA) if h + LA < 8 else (extra_loads() if h + LA == 8 else [])
        if h + 4 < 8: ld = kvload(h+4) + ld
        n0, n1 = norm_list(h, 0), norm_list(h, 1)
        pr = prep(h+1) if h < 7 else []
        hl = (len(ld)+1)//2
        I(f"v_mfma_f32_32x32x16_bf16 {v(NUM[0],16)}, {v(KV+8*h,4)}, {v(PQ+8*h,4)}, 0")
        run(ld[:hl])
        I(f"v_mfma_f32_32x32x16_bf16 {v(NUM[1],16)}, {v(KV+8*h,4)}, {v(PQ+8*h+4,4)}, 0")
        run(ld[hl:] + w1read(h))
        if h > 0:
            q.need(("w0", h-1)); I(proj(h-1, 0, 0))
            nn = n0 + n1; c = (len(nn)+3)//4 + 1
            run(nn[:c])
            q.need(("w1", h-1)); I(proj(h-1, 0, 1))
            run(nn[c:2*c])
            I(proj(h-1, 1, 0))
            run(nn[2*c:3*c])
            I(proj(h-1, 1, 1))
            run(nn[3*c:] + pr)
        else:
            run(n0 + n1 + pr)
    q.drain()
    I("s_waitcnt vmcnt(0)")
    BB = 16; BF = 32
    for j in range(4):
        I(f"ds_read_b64_tr_b16 {v(BB+2*j,2)}, {v(vT)} offset:{256*j}")
    I(proj(7, 0, 1))
    I(f"v_sub_f32 {v(vOM)}, 1.0, {v(vGG)}")
    I(f"v_cvt_pk_bf16_f32 {v(vOM)}, {v(vOM)}, {v(vOM)}")
    I(f"v_lshlrev_b32 {v(vOM+1)}, 16, {v(vOM)}")
    I(proj(7, 1, 0))
    I("s_waitcnt lgkmcnt(0)")
    ub = []
    for p in range(8):
        ub += [f"v_lshlrev_b32 {v(BF+2*p)}, 16, {v(BB+p)}", f"v_and_b32 {v(BF+2*p+1)}, 0xffff0000, {v(BB+p)}"]
    for x in ub[:5]: I(x)
    I(proj(7, 1, 1))
    for x in ub[5:10]: I(x)
    I(proj(7, 0, 0))
    stamp(A, 3)
    rest = ub[10:] + [f"v_pk_mul_f32 {v(BF+2*p,2)}, {v(BF+2*p,2)}, {v(vOM+1,2)} op_sel_hi:[1,0]" for p in range(8)]
    for t in range(1, 4):
        for k in range(4):
            I(f"ds_write_b128 {v(vT+t)}, {v(ACC+16*t+4*k,4)} offset:{4096*(t-1)+1024*k}")
            if rest: I(rest.pop(0))
    for x in rest: I(x)
    I("s_waitcnt lgkmcnt(0)")
    I("s_barrier")
    R = 80
    for k in range(4):
        for w in range(3):
            I(f"ds_read_b128 {v(R+16*w+4*k,4)}, v6 offset:{4096*w+1024*k}")
    for k in range(4):
        I(f"s_waitcnt lgkmcnt({9-3*k})")
        for hh in range(2):
            r = 4*k + 2*hh
            I(f"v_pk_add_f32 {v(ACC+r,2)}, {v(ACC+r,2)}, {v(R+r,2)}")
            I(f"v_pk_add_f32 {v(R+16+r,2)}, {v(R+16+r,2)}, {v(R+32+r,2)}")
        for hh in range(2):
            r = 4*k + 2*hh
            I(f"v_pk_add_f32 {v(ACC+r,2)}, {v(ACC+r,2)}, {v(R+16+r,2)}")
        for hh in range(2):
            r = 4*k + 2*hh
            I(f"v_pk_fma_f32 {v(ACC+r,2)}, {v(ACC+r,2)}, {v(vOM+1,2)}, {v(BF+r,2)} op_sel:[0,1,0] op_sel_hi:[1,1,1]")
        for hh in range(2):
            r = 4*k + 2*hh
            I(f"v_cvt_pk_bf16_f32 {v(BB+r//2)}, {v(ACC+r)}, {v(ACC+r+1)}")
        if k == 1: I(f"global_store_dwordx4 {v(vOA)}, {v(BB,4)}, {s(S_OUT,2)}")
        if k == 3: I(f"global_store_dwordx4 {v(vOA)}, {v(BB+4,4)}, {s(S_OUT,2)} offset:16")
    if k1b.STAMP:
        stamp(A, 4)
        I("s_add_u32 s2, s2, 256")
        stamp_out(A, 5, 250)
    A.label("K2_exit")
    I("s_endpgm")
    return A
```

```python
from asmlib import *
from k1b import *
import k1b

RG = 16384
XREG = [0,1,2,3,4,5,6,8]
WREG = [7,8,9,7,8,9,7,9]
QOFF = [7*RG, 7*RG+8192, 9*RG, 9*RG+8192, 7*RG, 0, 8192, 7*RG+8192]
QORD = [0,4,1,5,2,6,3,7]
RED = 0
REDB = 4*RG
REDSZ = 4352
PERM = [0,2,4,6,1,3,5,7]
import os
LATE1 = int(os.environ.get('LATE1', 0))
import os
B9POS, B10POS, B11I, B10I, B8POS, B9I = eval(os.environ.get('BPOS', '25, 115, 24, 13, 0, 2'))

def phi_list(acc, out, tmp, sL, sEPS, pk=True):
    L = []
    if not pk:
        for r in range(16): L.append(f"v_mul_f32 {v(tmp+r)}, {s(sL)}, {v(acc+r)}")
        for r in range(16):
            L.append(f"v_exp_f32 {v(tmp+r)}, {v(tmp+r)} clamp")
            L.append(f"v_max_f32 {v(acc+r)}, {s(sEPS)}, {v(acc+r)}")
        for r in range(16): L.append(f"v_add_f32 {v(acc+r)}, {v(acc+r)}, {v(tmp+r)}")
        for p in range(8): L.append(f"v_cvt_pk_bf16_f32 {v(out+p)}, {v(acc+2*p)}, {v(acc+2*p+1)}")
        return L
    for p in range(8): L.append(f"v_pk_mul_f32 {v(tmp+2*p,2)}, {v(acc+2*p,2)}, {s(sL,2)}")
    for r in range(16):
        L.append(f"v_exp_f32 {v(tmp+r)}, {v(tmp+r)} clamp")
        L.append(f"v_max_f32 {v(acc+r)}, {s(sEPS)}, {v(acc+r)}")
    for p in range(8): L.append(f"v_pk_add_f32 {v(acc+2*p,2)}, {v(acc+2*p,2)}, {v(tmp+2*p,2)}")
    for p in range(8): L.append(f"v_cvt_pk_bf16_f32 {v(out+p)}, {v(acc+2*p)}, {v(acc+2*p+1)}")
    return L

def gen_A(A):
    I = A.I
    sRB, sHQ, sROT, sT, sT2, sLW = 44, 45, 46, 47, 48, 49
    sRH, sHP = 50, 51
    sSRX, sSRW, sSRA = 52, 56, 60
    sL, sEPS = 64, 66
    sCX, sCW = 8, 9
    sPQ = 70
    sMX, sMW = 15, 7
    sA, sB = 10, 11
    vX0, vX1, vW = 2, 3, 9
    vT = 10
    vXA = 16
    vWA = 28
    I(f"s_sub_u32 {s(sT)}, {s(S_J)}, 16")
    I(f"s_lshr_b32 {s(sRB)}, {s(sT)}, 2")
    I(f"s_and_b32 {s(sHQ)}, {s(sT)}, 3")
    I(f"s_add_u32 {s(sROT)}, {s(sRB)}, {s(sHQ)}")
    I(f"s_and_b32 {s(sROT)}, {s(sROT)}, 3")
    I(f"s_lshl_b32 {s(sROT)}, {s(sROT)}, 1")
    I(f"s_lshr_b32 {s(sT)}, {s(S_XCD)}, 1")
    I(f"s_lshl_b32 {s(sT)}, {s(sT)}, 2")
    I(f"s_add_u32 {s(sRB)}, {s(sRB)}, {s(sT)}")
    I(f"s_and_b32 {s(sT)}, {s(S_XCD)}, 1")
    I(f"s_lshl_b32 {s(sT)}, {s(sT)}, 2")
    I(f"s_add_u32 {s(sHQ)}, {s(sHQ)}, {s(sT)}")
    I("v_and_b32 v1, 63, v0")
    I(f"s_and_b32 {s(sLW)}, {s(S_WV)}, 3")
    I(f"v_lshrrev_b32 {v(vT)}, 3, v1")
    I(f"v_and_b32 {v(vT+1)}, 7, v1")
    I(f"v_lshrrev_b32 {v(vT+2)}, 4, v1")
    I(f"v_xor_b32 {v(vT+3)}, {v(vT+1)}, {v(vT+2)}")
    I(f"v_lshlrev_b32 {v(vT+3)}, 4, {v(vT+3)}")
    I(f"v_lshl_add_u32 {v(vX0)}, {v(vT)}, 10, {v(vT+3)}")
    I(f"v_xor_b32 {v(vX1)}, 64, {v(vX0)}")
    I(f"v_and_b32 {v(vT+2)}, 1, {v(vT+2)}")
    I(f"v_lshlrev_b32 {v(vT+2)}, 2, {v(vT+2)}")
    I(f"v_xor_b32 {v(vT+3)}, {v(vT+1)}, {v(vT+2)}")
    I(f"v_lshlrev_b32 {v(vT+3)}, 4, {v(vT+3)}")
    I(f"v_mul_u32_u24 {v(vW)}, 3072, {v(vT)}")
    I(f"v_add_u32 {v(vW)}, {v(vW)}, {v(vT+3)}")
    I(f"s_lshl_b32 {s(sCX)}, {s(sRB)}, 17")
    I(f"s_lshl_b32 {s(sT)}, {s(sLW)}, 15")
    I(f"s_add_u32 {s(sCX)}, {s(sCX)}, {s(sT)}")
    I(f"s_mul_i32 {s(sCW)}, {s(sLW)}, {16*3072}")
    I(f"s_lshl_b32 {s(sT)}, {s(sHQ)}, 7")
    I(f"s_add_u32 {s(sCW)}, {s(sCW)}, {s(sT)}")
    I(f"s_lshl_b32 {s(sMX)}, {s(sLW)}, 12")
    I(f"s_lshl_b32 {s(sMW)}, {s(sLW)}, 11")
    I(f"s_mov_b32 {s(sSRX+2)}, 0x200000")
    I(f"s_mov_b32 {s(sSRX+3)}, 0x00020000")
    I(f"s_mov_b32 {s(sSRW+2)}, 0x180000")
    I(f"s_mov_b32 {s(sSRW+3)}, 0x00020000")
    I(f"s_cmp_lt_u32 {s(S_WV)}, 4")
    A.branch("s_cbranch_scc1 A_setA")

    def srds():
        I(f"s_mov_b32 {s(sSRX)}, {s(S_X)}")
        I(f"s_mov_b32 {s(sSRX+1)}, {s(S_X+1)}")
        I(f"s_mov_b32 {s(sSRW)}, {s(S_WQKV)}")
        I(f"s_mov_b32 {s(sSRW+1)}, {s(S_WQKV+1)}")
    def chunk(n):
        I(f"s_add_u32 s12, {s(sROT)}, {PERM[n]}")
        I(f"s_and_b32 s12, s12, 7")
    def issue_x(n):
        I(f"s_lshl_b32 {s(sA)}, s12, 7")
        I(f"s_add_u32 m0, {s(sMX)}, {XREG[n]*RG}")
        I(f"s_add_u32 {s(sA)}, {s(sA)}, {s(sCX)}")
        for i in range(4):
            if i:
                I(f"s_add_u32 m0, m0, 1024"); I(f"s_add_u32 {s(sA)}, {s(sA)}, 8192")
            I(f"buffer_load_dwordx4 {v(vX1 if i & 1 else vX0)}, {s(sSRX,4)}, {s(sA)} offen lds")
    def issue_w(parts):
        I(f"s_mul_i32 {s(sB)}, s12, {64*3072}")
        I(f"s_add_u32 {s(sB)}, {s(sB)}, {s(sCW)}")
        for col, lds in parts:
            for h in range(2):
                I(f"s_add_u32 m0, {s(sMW)}, {lds + 1024*h}")
                I(f"s_add_u32 {s(sA)}, {s(sB)}, {col + h*8*3072}")
                I(f"buffer_load_dwordx4 {v(vW)}, {s(sSRW,4)}, {s(sA)} offen lds")
    def dummy_w(cols):
        I(f"s_mul_i32 {s(sB)}, s12, {64*3072}")
        I(f"s_add_u32 {s(sB)}, {s(sB)}, {s(sCW)}")
        for col in cols:
            for h in range(2):
                I(f"s_add_u32 {s(sA)}, {s(sB)}, {col + h*8*3072}")
                I(f"buffer_load_dwordx4 v[244:247], {v(vW)}, {s(sSRW,4)}, {s(sA)} offen")
    def kvparts(n): return [(1024, WREG[n]*RG), (2048, WREG[n]*RG + 8192)]
    def frag_addrs():
        I(f"s_lshr_b32 {s(sRH)}, {s(sLW)}, 1")
        I(f"s_and_b32 {s(sHP)}, {s(sLW)}, 1")
        I(f"v_and_b32 {v(vT)}, 31, v1")
        I(f"v_lshrrev_b32 {v(vT+1)}, 5, v1")
        I(f"v_bfe_u32 {v(vT+2)}, {v(vT)}, 1, 3")
        I(f"v_xor_b32 {v(vT+2)}, {v(vT+2)}, {v(vT+1)}")
        I(f"s_lshl_b32 {s(sT)}, {s(sRH)}, 13")
        I(f"v_lshl_add_u32 {v(vT+3)}, {v(vT)}, 7, {s(sT)}")
        for ks in range(4):
            I(f"v_xor_b32 {v(vT+4)}, {2*ks}, {v(vT+2)}")
            I(f"v_lshl_add_u32 {v(vXA+ks)}, {v(vT+4)}, 4, {v(vT+3)}")
            I(f"v_add_u32 {v(vXA+4+ks)}, 0x10000, {v(vXA+ks)}")
            I(f"v_add_u32 {v(vXA+8+ks)}, 0x20000, {v(vXA+ks)}")
        I(f"v_bfe_u32 {v(vT)}, v1, 2, 2")
        I(f"v_lshl_add_u32 {v(vT+2)}, {v(vT+1)}, 3, {v(vT)}")
        I(f"v_lshlrev_b32 {v(vT+2)}, 7, {v(vT+2)}")
        I(f"v_bfe_u32 {v(vT+3)}, v1, 4, 1")
        I(f"v_bfe_u32 {v(vT+4)}, v1, 1, 1")
        I(f"v_lshl_add_u32 {v(vT+3)}, {v(vT+3)}, 1, {v(vT+4)}")
        I(f"v_bfe_u32 {v(vT+4)}, v1, 3, 1")
        I(f"v_xor_b32 {v(vT+4)}, {s(sHP)}, {v(vT+4)}")
        I(f"v_lshl_add_u32 {v(vT+3)}, {v(vT+4)}, 2, {v(vT+3)}")
        I(f"v_lshl_add_u32 {v(vT+2)}, {v(vT+3)}, 4, {v(vT+2)}")
        I(f"v_and_b32 {v(vT+4)}, 1, v1")
        I(f"v_lshl_add_u32 {v(vWA)}, {v(vT+4)}, 3, {v(vT+2)}")
        I(f"v_add_u32 {v(vWA+1)}, {7*RG}, {v(vWA)}")
        I(f"s_mov_b32 {s(sL)}, 0x{f32bits(LOG2E):08x}")
        I(f"s_mov_b32 {s(sL+1)}, 0x{f32bits(LOG2E):08x}")
        I(f"s_mov_b32 {s(sEPS)}, 0x{f32bits(1e-6):08x}")
    def xrd(dst, n, ks, rt):
        off = XREG[n]*RG + 4096*rt
        return f"ds_read_b128 {v(dst,4)}, {v(vXA + 4*(off >> 16) + ks)} offset:{off & 0xffff}"
    def wrd(dst, base, ks, h):
        off = base + 2048*ks + 512*h
        if off >= 7*RG: return f"ds_read_b64_tr_b16 {v(dst,2)}, {v(vWA+1)} offset:{off - 7*RG}"
        return f"ds_read_b64_tr_b16 {v(dst,2)}, {v(vWA)} offset:{off}"

    I("s_waitcnt lgkmcnt(0)")
    stamp(A, 1)
    srds()
    chunk(0); issue_w(kvparts(0)); issue_x(0)
    frag_addrs()
    vGA, vG16 = 30, 33
    GWF, GXF, GACC = 128, 160, 164
    QACC = 64
    I(f"v_and_b32 {v(vT)}, 15, v1")
    I(f"s_lshl_b32 {s(sT)}, {s(sHQ)}, 4")
    I(f"v_add_u32 {v(vT)}, {s(sT)}, {v(vT)}")
    I(f"v_lshrrev_b32 {v(vT+1)}, 4, v1")
    I(f"v_bfe_u32 {v(vT+2)}, {v(vT)}, 1, 3")
    I(f"v_xor_b32 {v(vT+2)}, {v(vT+2)}, {v(vT+1)}")
    I(f"v_lshlrev_b32 {v(vT+2)}, 4, {v(vT+2)}")
    I(f"v_lshl_add_u32 {v(vGA)}, {v(vT)}, 7, {v(vT+2)}")
    I(f"s_lshl_b32 {s(sT)}, {s(sHP)}, 6")
    I(f"v_xor_b32 {v(vGA)}, {s(sT)}, {v(vGA)}")
    I(f"v_add_u32 {v(vGA+1)}, 0x10000, {v(vGA)}")
    I(f"v_add_u32 {v(vGA+2)}, 0x20000, {v(vGA)}")
    I(f"v_lshlrev_b32 {v(vG16)}, 4, {v(vT+1)}")
    I(f"v_add_u32 {v(vT+3)}, {s(sT)}, {v(vG16)}")
    for r in range(32): I(f"v_mov_b32 {v(QACC+r)}, {s(sEPS)}")
    chunk(1); issue_w(kvparts(1))
    if not LATE1: issue_x(1)
    nv = 12 if LATE1 else 16
    land = {0: 8, 1: 16}
    def gwload(n):
        I(f"s_lshl_b32 {s(sA)}, s12, 7")
        I(f"v_add_u32 {v(vT)}, {s(sA)}, {v(vT+3)}")
        I(f"global_load_dwordx4 {v(GWF+4*n,4)}, {v(vT)}, {s(S_GW,2)}")
    gl = {}
    for n in range(8):
        I(f"s_waitcnt vmcnt({nv - land[n]})")
        I("s_barrier")
        if n + 2 <= 6:
            chunk(n+2); issue_w(kvparts(n+2)); issue_x(n+2); nv += 8; land[n+2] = nv
        elif n == 5:
            chunk(7); issue_x(7); nv += 4
            for m in range(4):
                chunk(m); gwload(m); nv += 1; gl[m] = nv
        elif n == 6:
            chunk(7); issue_w(kvparts(7)); nv += 4; land[7] = nv
            for m in range(4, 8):
                chunk(m); gwload(m); nv += 1; gl[m] = nv
        elif n == 7:
            for m in range(2):
                chunk(QORD[m]); issue_w([(0, QOFF[m])]); nv += 2
        if n in (6, 7):
            ms = {6: (0, 1, 2, 3), 7: (4, 5, 6)}[n]
            for k, m in enumerate(ms):
                off = XREG[m]*RG
                I(f"ds_read_b128 {v(216+4*k,4)}, {v(vGA + (off >> 16))} offset:{off & 0xffff}")
            I(f"s_waitcnt vmcnt({nv - gl[7 if n == 7 else 3]}) lgkmcnt(0)")
            for k, m in enumerate(ms):
                I(f"v_mfma_f32_16x16x32_bf16 {v(GACC,4)}, {v(216+4*k,4)}, {v(GWF+4*m,4)}, {'0' if m == 0 else v(GACC,4)}")
    off = XREG[7]*RG
    I(f"ds_read_b128 {v(GXF,4)}, {v(vGA + (off >> 16))} offset:{off & 0xffff}")
    I(f"s_lshl_b32 {s(sT)}, {s(sRB)}, 2")
    I(f"s_lshl_b32 {s(sT2)}, {s(sRH)}, 1")
    I(f"s_add_u32 {s(sT)}, {s(sT)}, {s(sT2)}")
    I(f"s_lshl_b32 {s(sT)}, {s(sT)}, 5")
    I(f"s_lshl_b32 {s(sT2)}, {s(sHQ)}, 2")
    I(f"s_add_u32 {s(sT)}, {s(sT)}, {s(sT2)}")
    I(f"s_lshl_b32 {s(sT2)}, {s(sHP)}, 1")
    I(f"s_add_u32 {s(sT)}, {s(sT)}, {s(sT2)}")
    I(f"s_lshl_b32 {s(sT)}, {s(sT)}, 10")
    I(f"s_add_u32 {s(sPQ)}, {s(S_WS)}, {s(sT)}")
    I(f"s_addc_u32 {s(sPQ+1)}, {s(S_WS+1)}, 0")
    I(f"v_lshlrev_b32 v2, 4, v1")
    I(f"v_add_u32 v3, 0x8000, v2")
    I("s_waitcnt lgkmcnt(0)")
    I(f"v_mfma_f32_16x16x32_bf16 {v(GACC,4)}, {v(GXF,4)}, {v(GWF+28,4)}, {v(GACC,4)}")
    q = LQ(A)
    NS = 4
    QX = lambda i: 168 + 12*(i % NS)
    def qx(i, rt): q.issue(xrd(QX(i)+4*rt, QORD[i//4], i % 4, rt), ("x", i, rt))
    def qw(i, h): q.issue(wrd(QX(i)+8+2*h, QOFF[i//4], i % 4, h), ("w", i))
    for i in range(3):
        qx(i, 0); qx(i, 1)
    I("s_barrier")
    I("s_waitcnt vmcnt(0)")
    I("s_barrier")
    stamp(A, 3)
    if k1b.STAMP: q.reset()
    if os.environ.get("QPRIO"): I("s_setprio 1")
    wnext = 0
    def wlimit(i):
        return state["lim"]
    state = {"lim": 8}
    for i in range(3):
        qw(i, 0); qw(i, 1)
    wnext = 3
    wq_pend = []
    for i in range(32):
        for rt in range(2):
            q.need(("w", i), ("x", i, rt))
            I(f"v_mfma_f32_32x32x16_bf16 {v(QACC+16*rt,16)}, {v(QX(i)+8,4)}, {v(QX(i)+4*rt,4)}, {v(QACC+16*rt,16)}")
            if i == B9I and rt == 0:
                q.need(("w", 3), ("x", 3, 1))
                I("s_barrier"); state["lim"] = 16
            if i == B10I and rt == 0:
                I("s_barrier"); state["lim"] = 28
                I(f"v_add_u32 {v(vT+3)}, {REDB}, {v(vT+3)}")
                q.issue(f"ds_write_b128 {v(vT+3)}, {v(GACC,4)} offset:{RED+2*REDSZ}", "gl")
            if i == B11I and rt == 0:
                q.need("gl")
                I("s_barrier"); state["lim"] = 32
            j = i + 3
            if j < 32:
                qx(j, rt)
                wq_pend.append((j, rt))
            nw = 0
            while wq_pend and wq_pend[0][0] < state["lim"] and nw < 3:
                qw(*wq_pend.pop(0)); nw += 1
    assert not wq_pend
    stamp(A, 4)
    for x in phi_list(QACC, 32, 96, sL, sEPS): I(x)
    I(f"global_store_dwordx4 v2, v[32:35], {s(sPQ,2)} sc0 sc1")
    I(f"global_store_dwordx4 v2, v[36:39], {s(sPQ,2)} offset:1024 sc0 sc1")
    for x in phi_list(QACC+16, 40, 96, sL, sEPS): I(x)
    I(f"global_store_dwordx4 v3, v[40:43], {s(sPQ,2)} sc0 sc1")
    I(f"global_store_dwordx4 v3, v[44:47], {s(sPQ,2)} offset:1024 sc0 sc1")
    stamp(A, 5)
    stamp_out(A, 9)
    I("s_endpgm")

    A.label("A_setA")
    frag_addrs()
    ACC = 64
    K = lambda rt: ACC + 16*rt
    V = lambda rt: ACC + 32 + 16*rt
    FR = lambda i: 128 + 16*(i % 4)
    I("s_waitcnt lgkmcnt(0)")
    stamp(A, 1)
    srds()
    I(f"s_mul_i32 {s(sT)}, {s(sHQ)}, {REDSZ}")
    I(f"s_add_u32 {s(sT)}, {s(sT)}, {WS_ACC}")
    I(f"s_add_u32 {s(sSRA)}, {s(S_WS)}, {s(sT)}")
    I(f"s_addc_u32 {s(sSRA+1)}, {s(S_WS+1)}, 0")
    I(f"s_mov_b32 {s(sSRA+2)}, {REDSZ}")
    I(f"s_mov_b32 {s(sSRA+3)}, 0x00020000")
    I(f"s_lshl_b32 {s(sT)}, {s(sHQ)}, 2")
    I(f"v_mov_b32 v5, {s(sT)}")
    I(f"s_or_b32 {s(sT)}, {s(sRB)}, {s(S_WV)}")
    I(f"s_cmp_eq_u32 {s(sT)}, 0")
    A.branch("s_cbranch_scc0 A_nozero")
    for r in range(4): I(f"v_mov_b32 {v(32+r)}, 0")
    I(f"v_lshlrev_b32 {v(vT)}, 4, v1")
    for k in range(4):
        I(f"buffer_store_dwordx4 v[32:35], {v(vT)}, {s(sSRA,4)}, 0 offen offset:{1024*k} sc0 sc1")
    I(f"v_add_u32 {v(vT+1)}, 4096, {v(vT)}")
    I(f"buffer_store_dwordx4 v[32:35], {v(vT+1)}, {s(sSRA,4)}, 0 offen sc0 sc1")
    I("s_waitcnt vmcnt(0)")
    I(f"v_mov_b32 {v(vT+1)}, 1")
    I(f"global_store_dword v5, {v(vT+1)}, {s(S_DBG,2)} sc0 sc1")
    A.label("A_nozero")
    for r in range(32): I(f"v_mov_b32 {v(ACC+r)}, {s(sEPS)}")
    vRK, vRZ, vAT = 30, 31, 6
    I(f"v_bfe_u32 {v(vT)}, v1, 4, 1")
    I(f"v_cmp_eq_u32 s[68:69], 1, {v(vT)}")
    I(f"v_lshrrev_b32 {v(vT+1)}, 5, v1")
    I(f"v_lshl_add_u32 {v(vT+1)}, {v(vT)}, 1, {v(vT+1)}")
    I(f"s_lshl_b32 {s(sT)}, {s(sHP)}, 2")
    I(f"v_add_u32 {v(vT+1)}, {s(sT)}, {v(vT+1)}")
    I(f"v_and_b32 {v(vT+2)}, 15, v1")
    I(f"v_lshl_add_u32 {v(vT+3)}, {v(vT+1)}, 5, {v(vT+2)}")
    I(f"s_mul_i32 {s(sT)}, {s(sRH)}, {REDSZ}")
    I(f"s_add_u32 {s(sT)}, {s(sT)}, {REDB}")
    I(f"v_lshl_add_u32 {v(vRK)}, {v(vT+3)}, 4, {s(sT)}")
    I(f"v_lshl_add_u32 {v(vRZ)}, {v(vT+1)}, 5, {s(sT)}")
    I(f"v_lshlrev_b32 {v(vAT)}, 2, v0")
    I(f"v_add_u32 {v(vAT+1)}, 4096, {v(vAT)}")
    I(f"v_add_u32 v8, {REDB}, {v(vAT)}")
    I("v_mov_b32 v4, 1")
    vONE = 248
    q = LQ(A)
    def rl(i):
        n, ks = i // 4, i % 4; f = FR(i); b = WREG[n]*RG
        return [(xrd(f, n, ks, 0), ("a", i)), (wrd(f+8, b, ks, 0), None), (wrd(f+10, b, ks, 1), ("a", i)),
                (wrd(f+12, b+8192, ks, 0), None), (wrd(f+14, b+8192, ks, 1), ("b", i)), (xrd(f+4, n, ks, 1), ("c", i))]
    I("s_barrier")
    stamp(A, 2)
    pend = []
    for i in range(32): pend += [(i,) + x for x in rl(i)]
    lim = 4
    def pop(k, cur):
        for _ in range(k):
            if pend and pend[0][0] < lim and pend[0][0] <= cur + 3:
                i, t, tag = pend.pop(0); q.issue(t, tag)
    pop(12, 0)
    for i in range(32):
        f = FR(i); X = lambda rt: v(f+4*rt,4)
        seq = [(K(0), X(0), v(f+8,4), "a"), (V(0), X(0), v(f+12,4), "b"), (K(1), X(1), v(f+8,4), "c"), (V(1), X(1), v(f+12,4), "c")]
        for m, (d, a_, b_, tg) in enumerate(seq):
            q.need((tg, i))
            c = "0" if (i == 0 and m in (1, 3)) else v(d,16)
            I(f"v_mfma_f32_32x32x16_bf16 {v(d,16)}, {a_}, {b_}, {c}")
            if i % 4 == 2 and m == 1:
                q.need(("c", i+1))
                I("s_barrier")
                lim += 4
                if i == 30:
                    for mm in (2, 3):
                        chunk(QORD[mm]); issue_w([(0, QOFF[mm])])
                if i == 18:
                    I(f"s_cmp_eq_u32 {s(sLW)}, 1")
                    I("s_cbranch_scc0 A_nf")
                    I(f"global_load_dword v4, v5, {s(S_DBG,2)} sc0 sc1")
                    A.raw("A_nf:")
            pop(2 if m % 2 == 0 else 1, i - 1 if m < 3 else i)
            if i % 4 >= 2: pop(1, i - 1 if m < 3 else i)
    assert not pend
    stamp(A, 3)
    PKK, PVV, TMP = 32, 48, 128
    D, Z = 144, 160
    for r in range(4): I(f"v_mov_b32 {v(vONE+r)}, 0x3f803f80")
    L = []
    for rt in range(2):
        L += phi_list(K(rt), PKK+8*rt, TMP, sL, sEPS, pk=False)
        for p in range(8):
            L.append(f"v_cvt_pk_bf16_f32 {v(PVV+8*rt+p)}, {v(V(rt)+2*p)}, {v(V(rt)+2*p+1)}")
        for n in (2*rt, 2*rt+1):
            L.append(f"v_mfma_f32_32x32x16_bf16 {v(D,16)}, {v(PKK+4*n,4)}, {v(PVV+4*n,4)}, {'0' if n == 0 else v(D,16)}")
            L.append(f"v_mfma_f32_32x32x16_bf16 {v(Z,16)}, {v(PKK+4*n,4)}, {v(vONE,4)}, {'0' if n == 0 else v(Z,16)}")
    for n, x in enumerate(L):
        if n == B8POS: I("s_barrier")
        if n == B9POS:
            I("s_waitcnt vmcnt(0)")
            I("s_barrier")
            stamp(A, 4)
            for mm in range(4, 7):
                chunk(QORD[mm]); issue_w([(0, QOFF[mm])])
        if n == B10POS:
            I("s_waitcnt vmcnt(0)")
            I("s_barrier")
            stamp(A, 5)
            chunk(QORD[7]); issue_w([(0, QOFF[7])])
        I(x)
    A.label("A_poll", flush=False)
    I("v_readfirstlane_b32 s12, v4")
    I("s_cmp_lg_u32 s12, 0")
    A.branch("s_cbranch_scc1 A_polled")
    I("s_sleep 2")
    I(f"global_load_dword v4, v5, {s(S_DBG,2)} sc0 sc1")
    I("s_waitcnt vmcnt(0)")
    I("s_branch A_poll")
    A.label("A_polled")
    SEL = 64
    for i in range(8): I(f"v_cndmask_b32 {v(SEL+i)}, {v(D+i)}, {v(D+8+i)}, s[68:69]")
    I(f"ds_write_b128 {v(vRK)}, {v(SEL,4)} offset:{RED}")
    I(f"ds_write_b128 {v(vRK)}, {v(SEL+4,4)} offset:{RED+256}")
    for i in range(8): I(f"v_cndmask_b32 {v(SEL+8+i)}, {v(Z+i)}, {v(Z+8+i)}, s[68:69]")
    I("s_mov_b32 exec_lo, 0x00010001"); I("s_mov_b32 exec_hi, 0x00010001")
    I(f"ds_write_b128 {v(vRZ)}, {v(SEL+8,4)} offset:{RED+4096}")
    I(f"ds_write_b128 {v(vRZ)}, {v(SEL+12,4)} offset:{RED+4112}")
    I("s_mov_b64 exec, -1")
    I("s_waitcnt vmcnt(0) lgkmcnt(0)")
    stamp(A, 6)
    I("s_barrier")
    stamp(A, 7)
    for k in range(5):
        I(f"ds_read_b32 {v(32+2*k)}, v8 offset:{RED+1024*k}")
        I(f"ds_read_b32 {v(33+2*k)}, v8 offset:{RED+1024*k+REDSZ}")
    for k in range(5):
        I(f"s_waitcnt lgkmcnt({8-2*k})")
        I(f"v_add_f32 {v(32+2*k)}, {v(32+2*k)}, {v(33+2*k)}")
        if k < 4: I(f"buffer_atomic_add_f32 {v(32+2*k)}, {v(vAT)}, {s(sSRA,4)}, 0 offen offset:{1024*k}")
        else: I(f"buffer_atomic_add_f32 {v(32+2*k)}, {v(vAT+1)}, {s(sSRA,4)}, 0 offen")
    I(f"s_cmp_eq_u32 {s(sLW)}, 0")
    A.branch("s_cbranch_scc0 A_gdone")
    G, G2 = 48, 52
    I(f"v_lshrrev_b32 {v(vT)}, 4, v1")
    I(f"v_lshlrev_b32 {v(vT)}, 4, {v(vT)}")
    I(f"v_add_u32 {v(vT+1)}, {REDB}, {v(vT)}")
    I(f"ds_read_b128 {v(G,4)}, {v(vT+1)} offset:{RED+2*REDSZ}")
    I(f"ds_read_b128 {v(G2,4)}, {v(vT+1)} offset:{RED+2*REDSZ+64}")
    I("s_waitcnt lgkmcnt(0)")
    for r in range(4): I(f"v_add_f32 {v(G+r)}, {v(G+r)}, {v(G2+r)}")
    def rb4():
        I(f"v_cvt_pk_bf16_f32 {v(G2)}, {v(G)}, {v(G+1)}")
        I(f"v_cvt_pk_bf16_f32 {v(G2+1)}, {v(G+2)}, {v(G+3)}")
        I(f"v_lshlrev_b32 {v(G)}, 16, {v(G2)}")
        I(f"v_and_b32 {v(G+1)}, 0xffff0000, {v(G2)}")
        I(f"v_lshlrev_b32 {v(G+2)}, 16, {v(G2+1)}")
        I(f"v_and_b32 {v(G+3)}, 0xffff0000, {v(G2+1)}")
    rb4()
    for r in range(4): I(f"v_mul_f32 {v(G+r)}, 0x{f32bits(-LOG2E):08x}, {v(G+r)}")
    for r in range(4): I(f"v_exp_f32 {v(G+r)}, {v(G+r)}")
    for r in range(4): I(f"v_add_f32 {v(G+r)}, 1.0, {v(G+r)}")
    for r in range(4): I(f"v_rcp_f32 {v(G+r)}, {v(G+r)}")
    rb4()
    I(f"s_lshl_b32 {s(sT)}, {s(sRB)}, 9")
    I(f"s_lshl_b32 {s(sT2)}, {s(sHQ)}, 6")
    I(f"s_add_u32 {s(sT)}, {s(sT)}, {s(sT2)}")
    I(f"s_add_u32 {s(sT)}, {s(sT)}, {WS_G}")
    I(f"v_add_u32 {v(vT)}, {s(sT)}, {v(vT)}")
    I(f"global_store_dwordx4 {v(vT)}, {v(G,4)}, {s(S_WS,2)} sc0 sc1")
    A.label("A_gdone")
    stamp_out(A, 9)
    I("s_endpgm")
```

```python
from asmlib import *
import struct
def f32bits(x): return struct.unpack("<I", struct.pack("<f", x))[0]
LOG2E = 1.4426950408889634
LOG2E_HI = struct.unpack("<f", struct.pack("<f", LOG2E))[0]
LOG2E_LO = LOG2E - LOG2E_HI
LN2 = 0.6931471805599453
INV2PI = 0.15915494309189535

WS_PQ = 0x000000
WS_BT = 0x200000
WS_ACC = 0x400000
WS_G = 0x410000

S_X, S_WQKV, S_WO, S_U, S_LAR, S_AIM, S_CR, S_CI = 16, 18, 20, 22, 24, 26, 28, 30
S_LDT, S_DSK, S_GW, S_OUT, S_DBG, S_WS = 32, 34, 36, 38, 40, 42
S_XCD, S_J, S_WV = 3, 4, 5

RS = 2064
NROW = 56
ONEROW = NROW * RS
U0 = ONEROW + 512
USZ = 4608
K0 = U0 + 4 * USZ
KSZ = 3200
R1OFF = 1216
X3OFF = 2336
X4OFF = 2848
PT0 = K0 + 4 * KSZ
PTSZ = 2 * R1OFF
B_LDS_END = PT0 + PTSZ
CEN, CEN4, LO5 = 33, 32, 33
assert B_LDS_END <= 163840

def nib(tab):
    x = 0
    for r, t in enumerate(tab): x |= t << (4 * r)
    return x & 0xffffffff, x >> 32
T0 = list(range(16))
T1 = [0,0,1,2,2,2,3,4,4,4,5,6,6,6,7,8]
T2 = [0,0,0,1,1,1,2,2,2,2,2,3,3,3,4,4]
T3 = [0]*5 + [1]*7 + [2]*4

def cmul(A, d, x, y):
    A.I(f"v_pk_mul_f32 {v(d,2)}, {v(x,2)}, {v(y,2)} op_sel_hi:[1,0]")
    A.I(f"v_pk_fma_f32 {v(d,2)}, {v(x,2)}, {v(y,2)}, {v(d,2)} op_sel:[1,1,0] op_sel_hi:[0,1,1] neg_lo:[1,0,0]")

def exp_rbf(A, dst, src, t0, t1, sc):
    A.I(f"v_mul_f32 {v(t0)}, {s(sc)}, {v(src)}")
    A.I(f"v_fma_f32 {v(t1)}, {v(src)}, {s(sc)}, -{v(t0)}")
    A.I(f"v_fma_f32 {v(t1)}, {v(src)}, {s(sc+1)}, {v(t1)}")
    A.I(f"v_exp_f32 {v(t0)}, {v(t0)}")
    A.I(f"v_mul_f32 {v(t1)}, {s(sc+2)}, {v(t1)}")
    A.I(f"v_fma_f32 {v(t0)}, {v(t0)}, {v(t1)}, {v(t0)}")
    A.I(f"v_cvt_pk_bf16_f32 {v(t0)}, {v(t0)}, {v(t0)}")
    A.I(f"v_lshlrev_b32 {v(dst)}, 16, {v(t0)}")

STAMP = False
import os
HELP = int(os.environ.get('HELP', 0))
GUP, GL = eval(os.environ.get('GCFG', '1, [[],[1],[2],[3]]'))
PRIOB = int(os.environ.get('PRIOB', 4))
WS_STAMP = 0x500000
def stamp(A, k):
    if not STAMP: return
    A.I("s_waitcnt lgkmcnt(0)")
    A.I(f"s_memtime {s(72+2*k,2)}")
    A.I("s_waitcnt lgkmcnt(0)")
def stamp_out(A, n, vr=246):
    if not STAMP: return
    I = A.I
    I("s_waitcnt lgkmcnt(0) vmcnt(0)")
    I(f"s_memtime {s(72+2*n,2)}")
    I("s_memrealtime s[94:95]")
    I("s_waitcnt lgkmcnt(0)")
    I(f"s_lshl_b32 s6, s2, 3")
    I(f"s_add_u32 s6, s6, {s(S_WV)}")
    I(f"s_lshl_b32 s6, s6, 6")
    I(f"s_add_u32 s6, s6, {WS_STAMP}")
    I(f"v_mov_b32 {v(vr)}, s6")
    for k in range(n+1):
        I(f"v_mov_b32 {v(vr+1)}, {s(72+2*k)}")
        I(f"global_store_dword {v(vr)}, {v(vr+1)}, {s(S_WS,2)} offset:{4*k}")
    I(f"v_mov_b32 {v(vr+1)}, s94")
    I(f"global_store_dword {v(vr)}, {v(vr+1)}, {s(S_WS,2)} offset:60")
    I(f"v_mov_b32 {v(vr+1)}, s92")
    I(f"global_store_dword {v(vr)}, {v(vr+1)}, {s(S_WS,2)} offset:56")
    I("s_getreg_b32 s6, hwreg(HW_REG_HW_ID)")
    I(f"v_mov_b32 {v(vr+1)}, s6")
    I(f"global_store_dword {v(vr)}, {v(vr+1)}, {s(S_WS,2)} offset:52")

def gen_B(A, mid=None):
    I = A.I
    sCH, sHF, sD0, sD, sT, sUC, sKC, sROT = 44, 45, 46, 47, 48, 49, 50, 51
    sC = 52
    sM = 56
    sTB = 58
    sBT = 68
    vLANE, vB, vG = 1, 2, 3
    vROW = 4
    vGA = 8
    vLAR, vAIM, vCR, vCI, vLDT, vDSK = 16, 17, 18, 19, 20, 21
    vT = 22
    W = lambda r: 32 + 2 * (r - 1)
    G = lambda p: 64 + 2 * (p - 1)
    F = lambda f: 80 + 2 * f
    H = lambda k: 112 + 2 * (k - 1)
    vP = 118
    vPK = 126
    vFA, vE0, vE1 = 130, 131, 132
    vY = 204
    I(f"s_and_b32 {s(sCH)}, {s(S_WV)}, 3")
    I(f"s_lshr_b32 {s(sHF)}, {s(S_WV)}, 2")
    I(f"s_lshl_b32 {s(sD0)}, {s(S_XCD)}, 6")
    I(f"s_lshl_b32 {s(sT)}, {s(S_J)}, 2")
    I(f"s_add_u32 {s(sD0)}, {s(sD0)}, {s(sT)}")
    I(f"s_add_u32 {s(sD)}, {s(sD0)}, {s(sCH)}")
    I(f"v_and_b32 {v(vLANE)}, 63, v0")
    I(f"s_lshl_b32 {s(sT)}, {s(sD)}, 8")
    I(f"s_lshl_b32 {s(sROT)}, {s(sHF)}, 7")
    I(f"s_add_u32 {s(sT)}, {s(sT)}, {s(sROT)}")
    I(f"v_lshl_add_u32 {v(vT)}, {v(vLANE)}, 1, {s(sT)}")
    I(f"s_lshl_b32 {s(sT)}, {s(sD)}, 1")
    I(f"v_mov_b32 {v(vT+1)}, {s(sT)}")
    I(f"s_lshl_b32 {s(sROT)}, {s(S_J)}, 5")
    I(f"v_add_u32 {v(vT+2)}, {s(sROT)}, v0")
    I(f"v_and_b32 {v(vT+2)}, 0x1ff, {v(vT+2)}")
    I("s_waitcnt lgkmcnt(0)")
    stamp(A, 1)
    I(f"global_load_ushort {v(vLDT)}, {v(vT+1)}, {s(S_LDT,2)}")
    I(f"global_load_ushort {v(vLAR)}, {v(vT)}, {s(S_LAR,2)}")
    I(f"global_load_ushort {v(vAIM)}, {v(vT)}, {s(S_AIM,2)}")
    I(f"global_load_ushort {v(vCR)}, {v(vT)}, {s(S_CR,2)}")
    I(f"global_load_ushort {v(vCI)}, {v(vT)}, {s(S_CI,2)}")
    I(f"global_load_ushort {v(vDSK)}, {v(vT+1)}, {s(S_DSK,2)}")
    I(f"s_lshl_b32 {s(sT)}, {s(sD0)}, 1")
    vGA = 140
    vUW, vGAD, vSEL = 148, 150, 154
    I(f"v_add_u32 {v(vT+3)}, {s(S_J)}, v0")
    I(f"v_and_b32 {v(vT+3)}, 3, {v(vT+3)}")
    I(f"v_lshl_add_u32 {v(vT+4)}, {v(vT+2)}, 2, {v(vT+3)}")
    I(f"v_lshl_add_u32 {v(vGAD)}, {v(vT+4)}, 10, {s(sT)}")
    for i in range(1, 4): I(f"v_xor_b32 {v(vGAD+i)}, {1024*i}, {v(vGAD)}")
    if HELP:
        I(f"s_lshr_b32 s8, {s(S_J)}, 2")
        I(f"s_and_b32 s9, {s(S_J)}, 3")
        I(f"s_add_u32 s10, s8, s9")
        I(f"s_and_b32 s10, s10, 3")
        I(f"s_lshl_b32 s10, s10, 1")
        I(f"s_add_u32 s10, s10, 1")
        I(f"s_lshr_b32 s11, {s(S_XCD)}, 1")
        I(f"s_lshl_b32 s11, s11, 2")
        I(f"s_add_u32 s8, s8, s11")
        I(f"s_and_b32 s11, {s(S_XCD)}, 1")
        I(f"s_lshl_b32 s11, s11, 2")
        I(f"s_add_u32 s9, s9, s11")
        I(f"s_lshl_b32 s8, s8, 17")
        I(f"s_lshl_b32 s11, s10, 7")
        I(f"s_add_u32 s8, s8, s11")
        I(f"s_mul_i32 s10, s10, {64*3072}")
        I(f"s_lshl_b32 s9, s9, 7")
        I(f"s_add_u32 s9, s9, s10")
        I(f"v_lshrrev_b32 v232, 3, v0")
        I(f"v_and_b32 v233, 7, v0")
        I(f"v_lshlrev_b32 v233, 4, v233")
        I(f"v_lshl_add_u32 v234, v232, 10, v233")
        I(f"v_add_u32 v234, s8, v234")
        I(f"v_add_u32 v235, 0x10000, v234")
        I(f"v_mul_u32_u24 v232, 3072, v232")
        I(f"v_add3_u32 v232, v232, v233, s9")
    I("s_barrier")
    if HELP:
        I(f"global_load_dwordx4 v[236:239], v232, {s(S_WQKV,2)} offset:1024")
        I(f"global_load_dwordx4 v[236:239], v232, {s(S_WQKV,2)} offset:2048")
        I(f"global_load_dwordx4 v[236:239], v234, {s(S_X,2)}")
        I(f"global_load_dwordx4 v[236:239], v235, {s(S_X,2)}")
    def gather(i): I(f"global_load_dwordx2 {v(vGA+2*i,2)}, {v(vGAD+i)}, {s(S_X,2)}")
    for gi in range(GUP): gather(gi)
    if mid:
        A.branch("s_branch B_rest")
        mid()
        A.label("B_rest")
    I(f"v_and_b32 {v(vT+4)}, -2, {v(vT+4)}")
    I(f"v_lshlrev_b32 {v(vUW)}, 1, {v(vT+4)}")
    I(f"v_add_u32 {v(vUW)}, {U0+512}, {v(vUW)}")
    I(f"v_xor_b32 {v(vUW+1)}, 4, {v(vUW)}")
    I(f"v_and_b32 {v(vT+3)}, 1, {v(vT+3)}")
    I(f"v_mul_u32_u24 {v(vT+3)}, 0x040404, {v(vT+3)}")
    I(f"v_lshl_or_b32 {v(vT+3)}, {v(vT+3)}, 8, {v(vT+3)}")
    I(f"v_xor_b32 {v(vSEL)}, 0x05040100, {v(vT+3)}")
    I(f"v_xor_b32 {v(vSEL+1)}, 0x07060302, {v(vT+3)}")
    I(f"v_and_b32 {v(vB)}, 15, {v(vLANE)}")
    I(f"v_lshrrev_b32 {v(vG)}, 4, {v(vLANE)}")
    I(f"s_mul_i32 {s(sUC)}, {s(sCH)}, {USZ}")
    I(f"s_add_u32 {s(sUC)}, {s(sUC)}, {U0}")
    I(f"s_mul_i32 {s(sKC)}, {s(sCH)}, {KSZ}")
    I(f"s_add_u32 {s(sKC)}, {s(sKC)}, {K0}")
    I(f"s_mov_b32 {s(sC)}, 0x{f32bits(LOG2E_HI):08x}")
    I(f"s_mov_b32 {s(sC+1)}, 0x{f32bits(LOG2E_LO):08x}")
    I(f"s_mov_b32 {s(sC+2)}, 0x{f32bits(LN2):08x}")
    for r in range(4): I(f"v_mov_b32 {v(24+r)}, 0")
    I(f"v_lshrrev_b32 {v(vT)}, 7, v0")
    I(f"v_mul_u32_u24 {v(vT)}, {USZ}, {v(vT)}")
    I(f"v_and_b32 {v(vT+1)}, 127, v0")
    I(f"v_lshl_add_u32 {v(vT)}, {v(vT+1)}, 2, {v(vT)}")
    I(f"v_add_u32 {v(vT)}, {U0}, {v(vT)}")
    I(f"ds_write_b32 {v(vT)}, v24")
    I(f"v_lshlrev_b32 {v(vT)}, 4, v0")
    I(f"v_add_u32 {v(vT)}, {K0}, {v(vT)}")
    I(f"ds_write_b128 {v(vT)}, v[24:27]")
    I(f"v_min_u32 {v(vT)}, {K0 + 4*KSZ - 16 - 8192}, {v(vT)}")
    I(f"ds_write_b128 {v(vT)}, v[24:27] offset:8192")
    I(f"v_lshlrev_b32 {v(vT+1)}, 2, {v(vT+1)}")
    I(f"v_add_u32 {v(vT+1)}, {ONEROW}, {v(vT+1)}")
    I(f"v_mov_b32 v28, 0x3f80")
    I(f"ds_write_b32 {v(vT+1)}, v28")
    lo_t = [4, 3, 2, 1, 3, 5, 0, 0]
    ln_t = [3, 5, 7, 9, 3, 2, 0, 0]
    lo_c = sum(t << (4*i) for i, t in enumerate(lo_t)); ln_c = sum(t << (4*i) for i, t in enumerate(ln_t))
    I(f"v_lshrrev_b32 {v(vT)}, 6, v0")
    I(f"v_lshlrev_b32 {v(vT+1)}, 2, {v(vT)}")
    I(f"s_mov_b32 {s(sT)}, 0x{lo_c:08x}")
    I(f"v_bfe_u32 v28, {s(sT)}, {v(vT+1)}, 4")
    I(f"s_mov_b32 {s(sT)}, 0x{ln_c:08x}")
    I(f"v_bfe_u32 v29, {s(sT)}, {v(vT+1)}, 4")
    I(f"v_subrev_u32 v30, 28, {v(vLANE)}")
    I(f"v_sub_u32 v30, v30, v28")
    I(f"v_mov_b32 v28, 0x3f80")
    I(f"v_mov_b32 v31, 0xffff")
    I(f"v_cmp_lt_u32 vcc, 3, {v(vT)}")
    I(f"v_cndmask_b32 v28, v28, v31, vcc")
    I(f"v_cmp_lt_u32 vcc, v30, v29")
    I(f"v_cndmask_b32 v28, 0, v28, vcc")
    I(f"v_lshlrev_b32 {v(vT)}, 1, v0")
    I(f"v_add_u32 {v(vT)}, {PT0}, {v(vT)}")
    I(f"ds_write_b16 {v(vT)}, v28")
    I(f"ds_write_b16 {v(vT)}, v28 offset:{R1OFF-2}")
    I(f"s_lshl_b32 {s(sM)}, {s(sCH)}, 9")
    I(f"s_lshl_b32 {s(sT)}, {s(sHF)}, 8")
    I(f"s_add_u32 {s(sM)}, {s(sM)}, {s(sT)}")
    I(f"s_add_u32 {s(sM+1)}, {s(sM)}, {28*RS}")
    I(f"v_lshrrev_b32 {v(vT)}, 1, {v(vG)}")
    I(f"v_lshlrev_b32 {v(vT)}, 7, {v(vT)}")
    I(f"v_and_b32 {v(vT+1)}, 1, {v(vG)}")
    I(f"v_lshl_add_u32 {v(vT)}, {v(vT+1)}, 8, {v(vT)}")
    I(f"s_lshl_b32 {s(sT)}, {s(sCH)}, 9")
    I(f"v_add_u32 {v(vT+1)}, {s(sT)}, {v(vT)}")
    I(f"v_mul_u32_u24 {v(vT+2)}, {RS}, {v(vB)}")
    I(f"v_add_u32 {v(vFA)}, {v(vT+1)}, {v(vT+2)}")
    I(f"s_cmp_eq_u32 {s(sHF)}, 0")
    I(f"s_cselect_b32 {s(sT)}, {40*RS}, {s(sT)}")
    I(f"s_mov_b32 s6, {15*RS}")
    I(f"s_cselect_b32 {s(sT)}, {s(sT)}, s6")
    I(f"v_add_u32 {v(vE0)}, {s(sT)}, {v(vFA)}")
    I(f"v_add_u32 {v(vT+3)}, {ONEROW}, {v(vT)}")
    I(f"v_sub_u32 {v(vT+4)}, {v(vB)}, {s(sHF)}")
    I(f"v_cmp_eq_u32 vcc, -1, {v(vT+4)}")
    I(f"v_cndmask_b32 {v(vE0)}, {v(vE0)}, {v(vT+3)}, vcc")
    lo, hi = nib(T1)
    I(f"s_mov_b32 {s(sTB)}, 0x{lo:08x}")
    I(f"s_mov_b32 {s(sTB+1)}, 0x{hi:08x}")
    I(f"v_lshlrev_b32 {v(vT+3)}, 2, {v(vB)}")
    I(f"v_lshrrev_b64 {v(vT+4,2)}, {v(vT+3)}, {s(sTB,2)}")
    I(f"v_and_b32 {v(vT+4)}, 15, {v(vT+4)}")
    I(f"v_add_u32 {v(vT+4)}, 31, {v(vT+4)}")
    I(f"v_mul_u32_u24 {v(vT+4)}, {RS}, {v(vT+4)}")
    I(f"v_add_u32 {v(vE1)}, {v(vT+1)}, {v(vT+4)}")
    vOFF, vKW, vLT, vLB = 4, 5, 6, 7
    UA, UC, VV, TP, TM, SS, BX, MK = 32, 64, 72, 112, 124, 148, 172, 196
    I(f"v_and_b32 {v(vT)}, 1, {v(vB)}")
    I(f"v_xor_b32 {v(vT)}, 1, {v(vT)}")
    I(f"v_mul_u32_u24 {v(vT+1)}, {R1OFF-2}, {v(vT)}")
    I(f"v_lshl_add_u32 {v(vT+1)}, {v(vG)}, 4, {v(vT+1)}")
    I(f"v_lshlrev_b32 {v(vT+2)}, 1, {v(vB)}")
    I(f"v_sub_u32 {v(vLT)}, {v(vT+1)}, {v(vT+2)}")
    def toep(dst, base, s0):
        o = (s0 - 1)//2
        assert 0 <= o and o+3 <= 255, o
        return [f"ds_read2_b32 {v(dst,2)}, {v(base)} offset0:{o} offset1:{o+1}",
                f"ds_read2_b32 {v(dst+2,2)}, {v(base)} offset0:{o+2} offset1:{o+3}"]
    I(f"v_add_u32 v11, {PT0+2}, {v(vLT)}")
    I("s_waitcnt lgkmcnt(0)")
    I("s_barrier")
    I(f"s_cmp_eq_u32 {s(sHF)}, 0")
    I("s_cbranch_scc0 B_nopat")
    boxes = [(0, 12), (1, 8), (0, 4), (1, 8), (2, 8), (3, 8)]
    for n, (run, ctr) in enumerate(boxes):
        for x in toep(BX+4*n, 11, 64*run + CEN - ctr): I(x)
        if n == 3: I("s_waitcnt lgkmcnt(4)")
    for x in toep(MK, 11, 64*4 + CEN4 - 15): I(x)
    for x in toep(MK+4, 11, 64*5 + LO5 - 12): I(x)
    I("s_waitcnt lgkmcnt(0)")
    A.label("B_nopat")
    I(f"s_waitcnt vmcnt({GUP})")
    stamp(A, 2)
    for r in (vLDT, vLAR, vAIM, vCR, vCI, vDSK):
        I(f"v_lshlrev_b32 {v(r)}, 16, {v(r)}")
    vDT = vLDT
    exp_rbf(A, vDT, vLDT, vT, vT+1, sC)
    exp_rbf(A, vLAR, vLAR, vT+2, vT+3, sC)
    vLR, vFI = vLAR, vAIM
    I(f"v_mul_f32 {v(vLR)}, {v(vLAR)}, {v(vDT)}")
    I(f"v_mul_f32 {v(vFI)}, {v(vAIM)}, {v(vDT)}")
    I(f"v_mul_f32 {v(vLR)}, 0x{f32bits(-LOG2E):08x}, {v(vLR)}")
    I(f"v_mul_f32 {v(vFI)}, 0x{f32bits(INV2PI):08x}, {v(vFI)}")
    I(f"v_add_f32 {v(vDT)}, {v(vDT)}, {v(vDT)}")
    I(f"v_mul_f32 {v(F(0))}, {v(vCR)}, {v(vDT)}")
    I(f"v_mul_f32 {v(F(0)+1)}, {v(vCI)}, {v(vDT)}")
    def anchor(dst, t, tmp):
        tb = f"0x{f32bits(float(t)):08x}"
        if t == 1:
            I(f"v_exp_f32 {v(tmp)}, {v(vLR)}")
            I(f"v_fract_f32 {v(tmp+1)}, {v(vFI)}")
        else:
            I(f"v_mul_f32 {v(tmp)}, {tb}, {v(vLR)}")
            I(f"v_mul_f32 {v(tmp+1)}, {tb}, {v(vFI)}")
            I(f"v_exp_f32 {v(tmp)}, {v(tmp)}")
            I(f"v_fract_f32 {v(tmp+1)}, {v(tmp+1)}")
        I(f"v_cos_f32 {v(dst)}, {v(tmp+1)}")
        I(f"v_sin_f32 {v(dst+1)}, {v(tmp+1)}")
        I(f"v_pk_mul_f32 {v(dst,2)}, {v(dst,2)}, {v(tmp,2)} op_sel_hi:[1,0]")
    anchor(W(1), 1, vT)
    anchor(W(16), 16, vT+2)
    anchor(G(1), 256, vT+4)
    for gi in GL[0]: gather(gi)
    st = {"pk": 0, "m0": None}
    def emit(row, reg, neg=False):
        t = vPK + (st["pk"] & 3); st["pk"] += 1
        grp = row // 28
        if st["m0"] != grp:
            I(f"s_mov_b32 m0, {s(sM+grp)}"); st["m0"] = grp
        I(f"v_cvt_pk_bf16_f32 {v(t)}, {v(reg)}, {'-' if neg else ''}{v(reg+1)}")
        I(f"ds_write_addtid_b32 {v(t)} offset:{(row % 28)*RS}")
    EW = lambda r: 15 + r
    cmul(A, W(2), W(1), W(1)); emit(EW(1), W(1))
    cmul(A, H(1), W(16), W(16)); emit(0, F(0), True)
    cmul(A, F(1), F(0), W(16))
    cmul(A, G(2), G(1), G(1))
    cmul(A, W(3), W(2), W(1)); emit(EW(2), W(2))
    cmul(A, W(4), W(2), W(2)); emit(1, F(1), True)
    cmul(A, H(2), H(1), H(1))
    cmul(A, F(2), F(0), H(1)); emit(EW(3), W(3))
    cmul(A, F(3), F(1), H(1)); emit(EW(4), W(4))
    cmul(A, G(3), G(2), G(1))
    cmul(A, G(4), G(2), G(2))
    cmul(A, W(8), W(4), W(4)); emit(2, F(2), True)
    cmul(A, H(3), H(2), H(2)); emit(3, F(3), True)
    for r in (5, 6, 7): cmul(A, W(r), W(4), W(r-4))
    emit(EW(8), W(8))
    for gi in GL[1]: gather(gi)
    for f in range(4):
        cmul(A, F(4+f), F(f), H(2))
        if f < 3: emit(EW(5+f), W(5+f))
    for p in (5, 6, 7):
        cmul(A, G(p), G(4), G(p-4)); emit(4+p-5, F(4+p-5), True)
    emit(7, F(7), True)
    for f in range(8):
        cmul(A, F(8+f), F(f), H(3))
        if f > 0: emit(8+f-1, F(8+f-1), True)
    for r in range(9, 16):
        cmul(A, W(r), W(8), W(r-8))
        if r == 9: emit(15, F(15), True)
        else: emit(EW(r-1), W(r-1))
    emit(EW(15), W(15)); emit(31, G(1))
    for gi in GL[2]: gather(gi)
    prods = []
    for i in range(1, 9): prods.append((31+i, 1, 2*i))
    for p in (2, 3):
        for i in range(1, 5): prods.append((40 + 4*(p-2) + i-1, p, 4*i))
    for p in range(4, 8):
        for i in (1, 2): prods.append((48 + 2*(p-4) + i-1, p, 8*i))
    pend = []
    for n, (row, p, r) in enumerate(prods):
        t = vP + 2*(n & 3)
        cmul(A, t, G(p), W(r))
        pend.append((row, t))
        if len(pend) > 1:
            rw, tt = pend.pop(0); emit(rw, tt)
    for rw, tt in pend: emit(rw, tt)
    for gi in GL[3]: gather(gi)
    stamp(A, 3)
    def ustage():
        I("s_waitcnt vmcnt(0)")
        stamp(A, 4)
        for c in range(4):
            sel = v(vSEL + (c % 2))
            o = c // 2
            t = 156 + 2*c
            I(f"v_perm_b32 {v(t)}, {v(vGA+2+o)}, {v(vGA+o)}, {sel}")
            I(f"v_perm_b32 {v(t+1)}, {v(vGA+6+o)}, {v(vGA+4+o)}, {sel}")
            I(f"ds_write_b32 {v(vUW)}, {v(t)} offset:{c*USZ}")
            I(f"ds_write_b32 {v(vUW+1)}, {v(t+1)} offset:{c*USZ}")
    def wopf(i):
        if i == 0:
            I(f"s_lshl_b32 {s(sT)}, {s(S_J)}, 15")
            I(f"v_lshl_add_u32 v14, v0, 4, {s(sT)}")
        else: I(f"v_add_u32 v14, 4096, v14")
        I(f"global_load_dwordx4 v[236:239], v14, {s(S_WO,2)}")
    I(f"v_lshlrev_b32 {v(vT)}, 5, {v(vB)}")
    I(f"v_lshl_add_u32 {v(vOFF)}, {v(vG)}, 3, {v(vT)}")
    I(f"v_lshl_add_u32 {v(vT)}, {v(vG)}, 4, {v(vT)}")
    I(f"v_add_u32 {v(vLB)}, {s(sUC)}, {v(vT)}")
    I(f"v_lshlrev_b32 {v(vT)}, 5, {v(vB)}")
    I(f"v_lshrrev_b32 {v(vT+1)}, 1, {v(vG)}")
    I(f"v_lshl_add_u32 {v(vT)}, {v(vT+1)}, 4, {v(vT)}")
    I(f"v_and_b32 {v(vT+1)}, 1, {v(vG)}")
    I(f"v_lshl_add_u32 {v(vT)}, {v(vT+1)}, 9, {v(vT)}")
    I(f"s_add_u32 {s(sT)}, {s(sKC)}, {2*536}")
    I(f"v_sub_u32 {v(vKW)}, {s(sT)}, {v(vT)}")
    I(f"v_cmp_eq_u32 vcc, 0, {v(vLANE)}")
    for r in range(1, 4): I(f"v_mov_b32 {v(248+r)}, 0")
    I(f"v_cndmask_b32 v248, 0, {v(vDSK)}, vcc")
    I("s_waitcnt lgkmcnt(0)")
    I("s_barrier")
    stamp(A, 5)
    vFF = 32; vEF = 64; vK = 248
    def ktile_write(k, t):
        for j in range(4): I(f"v_permlane16_swap_b32 {v(k+j)}, {v(k+4+j)}")
        for p in range(4): I(f"v_cvt_pk_bf16_f32 {v(t+p)}, {v(k+7-2*p)}, {v(k+6-2*p)}")
        I(f"ds_write_b128 {v(vKW)}, {v(t,4)}")
        for p in range(3): I(f"v_cvt_pk_bf16_f32 {v(t+4+p)}, {v(k+6-2*p)}, {v(k+5-2*p)}")
        I(f"ds_write_b16 {v(vKW)}, {v(t)} offset:{R1OFF-2}")
        I(f"ds_write_b16_d16_hi {v(vKW)}, {v(t+3)} offset:{R1OFF+12}")
        I(f"ds_write_b96 {v(vKW)}, {v(t+4,3)} offset:{R1OFF}")
    def kphase(ntile):
        loads = []
        for ks in range(8):
            loads.append(f"ds_read_b128 {v(vFF+4*ks,4)}, {v(vFA)} offset:{16*ks}")
            for i in range(ntile):
                loads.append(f"ds_read_b128 {v(vEF+32*i+4*ks,4)}, {v(vE0+i)} offset:{16*ks}")
        per = 1 + ntile
        issued = min(len(loads), 12)
        for x in loads[:issued]: I(x)
        for ks in range(8):
            for i in range(ntile):
                idx = ks*per + 1 + i
                I(f"s_waitcnt lgkmcnt({issued-1-idx})")
                c = "0" if (ks == 0 and (ntile == 1 or i == 1)) else v(vK+4*i,4)
                I(f"v_mfma_f32_16x16x32_bf16 {v(vK+4*i,4)}, {v(vEF+32*i+4*ks,4)}, {v(vFF+4*ks,4)}, {c}")
                while issued < len(loads) and issued - idx <= 12:
                    I(loads[issued]); issued += 1
    touched = set()
    yx = [0]
    def mf(t, a_, b_):
        y = vY + 4*(t ^ yx[0])
        c = v(y,4) if t in touched else "0"
        touched.add(t)
        I(f"v_mfma_f32_16x16x32_bf16 {v(y,4)}, {v(a_,4)}, {v(b_,4)}, {c}")
    I(f"s_cmp_eq_u32 {s(sHF)}, 0")
    A.branch("s_cbranch_scc0 B_waveB")
    kphase(1)
    vLO, vHI, vKT, vPT, vV3, vV4 = 16, 17, 10, 11, 12, 13
    I(f"v_lshlrev_b32 {v(vT)}, 7, {v(vG)}")
    I(f"v_lshl_add_u32 {v(vT+1)}, {v(vB)}, 3, {v(vT)}")
    I(f"v_sub_u32 {v(vT+1)}, {X3OFF + 2*188}, {v(vT+1)}")
    I(f"v_add_u32 {v(vT+2)}, 4, {v(vT+1)}")
    I(f"v_lshl_add_u32 {v(vT+3)}, {v(vB)}, 2, {v(vT)}")
    I(f"v_sub_u32 {v(vT+3)}, {X4OFF + 2*126 + 256}, {v(vT+3)}")
    I(f"v_subrev_u32 {v(vT+4)}, 64, {v(vT+3)}")
    I(f"v_cmp_gt_u32 vcc, 2, {v(vG)}")
    I(f"v_cndmask_b32 {v(vLO)}, {v(vT+3)}, {v(vT+2)}, vcc")
    I(f"v_cndmask_b32 {v(vHI)}, {v(vT+4)}, {v(vT+1)}, vcc")
    I(f"v_add_u32 {v(vLO)}, {s(sKC)}, {v(vLO)}")
    I(f"v_add_u32 {v(vHI)}, {s(sKC)}, {v(vHI)}")
    I(f"v_cvt_pk_bf16_f32 {v(vT)}, {v(vK+1)}, {v(vK)}")
    I(f"v_cvt_pk_bf16_f32 {v(vT+1)}, {v(vK+3)}, {v(vK+2)}")
    I(f"ds_write_b32 {v(vLO)}, {v(vT)}")
    I(f"ds_write_b32 {v(vHI)}, {v(vT+1)}")
    stamp(A, 8)
    ustage()
    I(f"s_add_u32 {s(sT)}, {s(sKC)}, 2")
    I(f"v_add_u32 {v(vKT)}, {s(sT)}, {v(vLT)}")
    I(f"v_lshlrev_b32 {v(vT)}, 5, {v(vG)}")
    I(f"v_lshlrev_b32 {v(vT+1)}, 3, {v(vB)}")
    I(f"v_sub_u32 {v(vT)}, {v(vT)}, {v(vT+1)}")
    I(f"s_add_u32 {s(sT)}, {s(sKC)}, {X3OFF + 120}")
    I(f"v_add_u32 {v(vV3)}, {s(sT)}, {v(vT)}")
    I(f"v_ashrrev_i32 {v(vT)}, 1, {v(vT)}")
    I(f"s_add_u32 {s(sT)}, {s(sKC)}, {X4OFF + 60}")
    I(f"v_add_u32 {v(vV4)}, {s(sT)}, {v(vT)}")
    I("s_waitcnt lgkmcnt(0)")
    I("s_barrier")
    stamp(A, 6)
    I(f"ds_read_b128 {v(UA,4)}, {v(vLB)} offset:{480}")
    I(f"ds_read_b128 {v(UC,4)}, {v(vLB)} offset:{480-16}")
    for k in range(1, 8):
        I(f"ds_read_b128 {v(UA+4*k,4)}, {v(vLB)} offset:{480 + 512*k}")
    I("s_waitcnt lgkmcnt(7)")
    ld = []
    I(f"v_add_u32 {v(vLO)}, 512, {v(vKT)}")
    ld += toep(TP, vLO, 543-16-256)
    ld += toep(TP+4, vKT, 543-16-256)
    ld += toep(TP+8, vKT, 543-16-512)
    I(f"v_mov_b32 {v(vT)}, {s(sKC)}")
    ld.append(f"ds_read_u16 {v(vT+2)}, {v(vT)} offset:{2*32}")
    ld.append(f"ds_read_u16 {v(vT+3)}, {v(vT)} offset:{X3OFF + 2*64}")
    for Dl in (2, 3, 4):
        for ph in range(2):
            d = VV + 4*(2*(Dl-2)+ph)
            o = 128*(4-Dl) + 16*ph
            ld.append(f"ds_read_b64 {v(d,2)}, {v(vV3)} offset:{o}")
            ld.append(f"ds_read_b64 {v(d+2,2)}, {v(vV3)} offset:{o+8}")
    for Dl in (4, 5, 6, 7):
        d = VV + 24 + 4*(Dl-4)
        o = 16*(7-Dl)
        ld.append(f"ds_read2_b32 {v(d,2)}, {v(vV4)} offset0:{o} offset1:{o+1}")
        ld.append(f"ds_read2_b32 {v(d+2,2)}, {v(vV4)} offset0:{o+2} offset1:{o+3}")
    def box(k):
        uc = UC + 4*(k & 1)
        n = 6 if k < 4 else 4
        for t in range(n):
            u = uc if t in (3, 5) else UA+4*k
            I(f"v_mfma_f32_16x16x32_bf16 {v(TM+4*t,4)}, {v(u,4)}, {v(BX+4*t,4)}, 0")
            for _ in range(3):
                if ld: I(ld.pop(0))
    def cvt(k):
        sb = SS + 12*(k & 1)
        S4, S8, S12, S16, Q8, Q16 = (TM+4*t for t in range(6))
        for ph in range(2):
            for cc in range(2):
                r = 2*ph + cc
                I(f"v_cvt_pk_bf16_f32 {v(sb+4*ph+2*cc)}, {v(S16+r)}, {v(S12+r)}")
                I(f"v_cvt_pk_bf16_f32 {v(sb+4*ph+2*cc+1)}, {v(S8+r)}, {v(S4+r)}")
        if k < 4:
            for r in range(4):
                I(f"v_cvt_pk_bf16_f32 {v(sb+8+r)}, {v(Q16+r)}, {v(Q8+r)}")
    def far(k):
        sb = SS + 12*(k & 1)
        for Dl in (2, 3, 4):
            if k + Dl < 8:
                for ph in range(2): mf(k+Dl, sb+4*ph, VV + 4*(2*(Dl-2)+ph))
        if k < 4:
            for Dl in (4, 5, 6, 7):
                if k + Dl < 8: mf(k+Dl, sb+8, VV+24+4*(Dl-4))
    box(0)
    while ld: I(ld.pop(0))
    I(f"ds_read_b128 {v(UC+4,4)}, {v(vLB)} offset:{480-16+512}")
    I("s_waitcnt lgkmcnt(15)")
    I("s_waitcnt lgkmcnt(0)")
    for t in range(8): mf(t, TP, UA+4*t)
    cvt(0)
    I(f"v_lshl_or_b32 {v(vT+2)}, {v(vT+2)}, 16, {v(vT+2)}")
    I(f"v_lshl_or_b32 {v(vT+3)}, {v(vT+3)}, 16, {v(vT+3)}")
    for r in range(4):
        I(f"v_and_or_b32 {v(TP+8+r)}, {v(MK+r)}, {v(vT+2)}, {v(TP+8+r)}")
        I(f"v_and_b32 {v(MK+4+r)}, {v(MK+4+r)}, {v(vT+3)}")
    fill = [(t+1, TP+4, UA+4*t) for t in range(7)] + [(t+2, TP+8, UA+4*t) for t in range(6)] + [(t+4, MK+4, UA+4*t) for t in range(4)]
    for k in range(1, 6):
        I("s_waitcnt lgkmcnt(0)")
        box(k)
        if k < 5: I(f"ds_read_b128 {v(UC+4*((k+1)&1),4)}, {v(vLB)} offset:{480-16+512*(k+1)}")
        far(k-1)
        if k <= 4: wopf(2*k-2); wopf(2*k-1)
        for _ in range(3):
            if fill: mf(*fill.pop(0))
        cvt(k)
    while fill: mf(*fill.pop(0))
    far(5)
    A.branch("s_branch B_epi")
    A.label("B_waveB")
    touched.clear(); yx[0] = 4
    I("s_setprio 1")
    kphase(2)
    ktile_write(vK, 24)
    stamp(A, 8)
    ustage()
    vKA0 = 8
    I(f"s_add_u32 {s(sT)}, {s(sKC)}, 2")
    I(f"v_add_u32 {v(vKA0)}, {s(sT)}, {v(vLT)}")
    NB = 3
    bufB = lambda q: 32 + 40*(q % NB)
    bufA = lambda q: 32 + 40*(q % NB) + 32
    def ldB(q): return [f"ds_read_b128 {v(bufB(q)+4*t,4)}, {v(vLB)} offset:{480 + 512*t - 64*q}" for t in range(8)]
    def ldA(q): return toep(bufA(q), vKA0, 543-16-32*q) + toep(bufA(q)+4, vKA0, 543-16-256-32*q)
    I("s_waitcnt lgkmcnt(0)")
    I("s_barrier")
    stamp(A, 6)
    if PRIOB: I("s_setprio 1")
    stream = []
    for q in range(1, 8): stream += [(q, x) for x in ldA(q) + ldB(q)]
    issued = 0
    def last_idx(q): return max(i for i, (qq, _) in enumerate(stream) if qq == q)
    while issued < 14: I(stream[issued][1]); issued += 1
    for q in range(1, 8):
        if PRIOB and q == PRIOB: I("s_setprio 0")
        I(f"s_waitcnt lgkmcnt({min(15, issued-1-last_idx(q))})")
        seq = [(t, bufA(q), bufB(q)+4*t) for t in range(8)] + [(t+1, bufA(q)+4, bufB(q)+4*t) for t in range(7)]
        for m in seq:
            mf(*m)
            if issued < len(stream) and stream[issued][0] <= q + NB - 1 and issued - last_idx(q) <= 14:
                I(stream[issued][1]); issued += 1
        while q < 7 and issued <= last_idx(q+1):
            I(stream[issued][1]); issued += 1
    A.label("B_epi")
    stamp(A, 7)
    vXA = 6
    I(f"s_lshl_b32 {s(sROT)}, {s(sCH)}, 13")
    I(f"s_lshl_b32 {s(sT)}, {s(sHF)}, 12")
    I(f"s_add_u32 s6, {s(sROT)}, {s(sT)}")
    I(f"v_lshl_add_u32 {v(vXA)}, {v(vLANE)}, 4, s6")
    for i in range(4):
        I(f"ds_write_b128 {v(vXA)}, {v(vY+16+4*i,4)} offset:{1024*i}")
    I(f"v_xor_b32 {v(vXA)}, 4096, {v(vXA)}")
    I(f"s_lshl_b32 {s(sT)}, {s(sHF)}, 11")
    I(f"s_lshl_b32 {s(sROT)}, {s(sD)}, 12")
    I(f"s_add_u32 {s(sROT)}, {s(sROT)}, {s(sT)}")
    I(f"s_add_u32 {s(sROT)}, {s(sROT)}, {WS_BT}")
    I(f"s_add_u32 {s(sBT)}, {s(S_WS)}, {s(sROT)}")
    I(f"s_addc_u32 {s(sBT+1)}, {s(S_WS+1)}, 0")
    I("s_waitcnt lgkmcnt(0)")
    I("s_barrier")
    vX = 48
    for i in range(4):
        I(f"ds_read_b128 {v(vX+4*i,4)}, {v(vXA)} offset:{1024*i}")
    I(f"v_and_b32 {v(vT)}, 1, {v(vG)}")
    I(f"v_mul_u32_u24 {v(vT)}, 504, {v(vT)}")
    I(f"v_add_u32 {v(vT)}, {v(vT)}, {v(vOFF)}")
    for p in range(2):
        o = 64 + 4*p
        for i in (2*p, 2*p+1):
            I(f"s_waitcnt lgkmcnt({3-i})")
            y = vY + 4*i; x = vX + 4*i
            I(f"v_pk_add_f32 {v(y,2)}, {v(y,2)}, {v(x,2)}")
            I(f"v_pk_add_f32 {v(y+2,2)}, {v(y+2,2)}, {v(x+2,2)}")
            I(f"v_cvt_pk_bf16_f32 {v(o+2*(i&1))}, {v(y)}, {v(y+1)}")
            I(f"v_cvt_pk_bf16_f32 {v(o+2*(i&1)+1)}, {v(y+2)}, {v(y+3)}")
        I(f"v_permlane16_swap_b32 {v(o)}, {v(o+2)}")
        I(f"v_permlane16_swap_b32 {v(o+1)}, {v(o+3)}")
        I(f"global_store_dwordx4 {v(vT)}, {v(o,4)}, {s(sBT,2)} offset:{1024*p} sc0 sc1")
    stamp_out(A, 9)
    I("s_endpgm")
```
